```python
import torch

def _softmax(x, axis=-1):
    return torch.softmax(x, dim=axis)

def _gelu(x):
    return torch.nn.functional.gelu(x, approximate='tanh')

def _silu(x):
    return torch.nn.functional.silu(x)

def _sigmoid(x):
    return torch.sigmoid(x)

def _layernorm(x, axis=-1, eps=1e-05):
    m = x.mean(dim=axis, keepdim=True)
    v = x.var(dim=axis, keepdim=True, unbiased=False)
    return (x - m) / torch.sqrt(v + eps)

def _scatter_add(tgt, idx, src, axis=0):
    return tgt.clone().index_add_(axis, idx, src)

def _segment_sum(src, seg, n):
    out = torch.zeros((n,) + src.shape[1:], dtype=src.dtype)
    return out.index_add_(0, seg, src)

def _pad(x, pw):
    flat = tuple((v for pair in reversed(pw) for v in pair))
    return torch.nn.functional.pad(x, flat)
kernel_name = 'adaLN_cond__mha_block__moe_arch_mod__prompt'

def setup_inputs():

    _w = lambda a: (lambda t: t.to(torch.bfloat16) if t.is_floating_point() else t)(torch.as_tensor(a))

    def _A_setup():
        B, S, D, H = (1, 2048, 1024, 32)
        return {'x': _w((lambda *s: torch.randn(*s, dtype=torch.bfloat16) * 0.05)(B, S, D)), 'wqkv': _w((lambda *s: torch.randn(*s, dtype=torch.bfloat16) * 0.05)(D, 3 * D)), 'wo': _w((lambda *s: torch.randn(*s, dtype=torch.bfloat16) * 0.05)(D, D))}
    _A_in = _A_setup()

    def _B_setup():
        B, S, D, F, C = (1, 2048, 1024, 3584, 1)
        return {'x': _w((lambda *s: torch.randn(*s, dtype=torch.bfloat16) * 0.05)(B, S, D)), 'w_r': _w((lambda *s: torch.randn(*s, dtype=torch.bfloat16) * 0.05)(D)), 'w_gate': _w((lambda *s: torch.randn(*s, dtype=torch.bfloat16) * 0.05)(D, F)), 'w_up': _w((lambda *s: torch.randn(*s, dtype=torch.bfloat16) * 0.05)(D, F)), 'w_down': _w((lambda *s: torch.randn(*s, dtype=torch.bfloat16) * 0.05)(F, D))}
    _B_in = _B_setup()
    return {'A_x': _A_in['x'], 'A_wqkv': _A_in['wqkv'], 'A_wo': _A_in['wo'], 'B_x': _B_in['x'], 'B_w_r': _B_in['w_r'], 'B_w_gate': _B_in['w_gate'], 'B_w_up': _B_in['w_up'], 'B_w_down': _B_in['w_down'], 'c': _w((lambda *s: torch.randn(*s, dtype=torch.bfloat16) * 0.1)(1, 1024) * 8.0), 'w_mod': _w((lambda *s: torch.randn(*s, dtype=torch.bfloat16) * 0.1)(1024, 6 * 1024) * 1024 ** (-0.5) * 8.0)}

def reference(A_x, A_wqkv, A_wo, B_x, B_w_r, B_w_gate, B_w_up, B_w_down, c, w_mod):

    def _A_ref(x, wqkv, wo):
        B, S, D = x.shape
        H = 32
        Dh = D // H
        qkv = (lambda x, *d: x.permute(*d))((x @ wqkv).reshape(B, S, 3, H, Dh), 2, 0, 3, 1, 4)
        q, k, v = (qkv[0], qkv[1], qkv[2])
        scores = torch.einsum('bhqd,bhkd->bhqk', q, k) * Dh ** (-0.5)
        p = _softmax(scores, axis=-1)
        o = torch.einsum('bhqk,bhkd->bhqd', p, v)
        return (lambda x, *d: x.permute(*d))(o, 0, 2, 1, 3).reshape(B, S, D) @ wo

    def _B_ref(x, w_r, w_gate, w_up, w_down):
        B, S, D = x.shape
        C = 1
        r = x @ w_r
        idx = torch.argsort(-r, axis=-1)[:, :C]
        idx_e = (lambda x, n, axis: torch.repeat_interleave(x, n, dim=axis))(idx.reshape(B, C, 1), D, axis=2)
        x_sel = (lambda x, i, axis: torch.take_along_dim(x, i, dim=axis))(x, idx_e, axis=1)
        g = _silu(x_sel @ w_gate)
        u = x_sel @ w_up
        y = g * u @ w_down
        r_sel = _sigmoid((lambda x, i, axis: torch.take_along_dim(x, i, dim=axis))(r, idx, axis=1))
        y = y * r_sel.reshape(B, C, 1)
        b_off = (torch.arange(B) * S).reshape(B, 1)
        flat_idx = (idx + b_off).reshape(B * C)
        zero = (x * 0.0).reshape(B * S, D)
        upd = _scatter_add(zero, flat_idx, y.reshape(B * C, D), axis=0)
        return x + upd.reshape(B, S, D)
    x = A_x
    mod = (_silu(c) @ w_mod).reshape(c.shape[0], 6, 1, -1)
    sa, ca, ga, sb, cb, gb = (mod[:, 0].clone(), mod[:, 1].clone(), mod[:, 2].clone(), mod[:, 3].clone(), mod[:, 4].clone(), mod[:, 5].clone())
    h = _layernorm(x, axis=-1) * (1 + ca) + sa
    x = x + ga * _A_ref(h, A_wqkv, A_wo)
    h = _layernorm(x, axis=-1) * (1 + cb) + sb
    x = x + gb * _B_ref(h, B_w_r, B_w_gate, B_w_up, B_w_down)
    return x
```

```python
import sys, math, os
FLAGS = set(os.environ.get('GENFLAGS', '').split(','))

NAME = "adaLN_cond__mha_block__moe_arch_mod__prompt"

KA_X, KA_WQKV, KA_WO, KA_BX, KA_WR, KA_WG, KA_WU, KA_WD, KA_C, KA_WMOD, KA_OUT, KA_DBG, KA_WS = [8*i for i in range(13)]

WS_MOD = 0x000000
WS_KEY = 0x008000
WS_STAT = 0x010000
WS_SEL = 0x018000
WS_Y   = 0x1900000
WS_H   = 0x100000
WS_Q   = 0x500000
WS_K   = 0x900000
WS_V   = 0xD00000
WS_O   = 0x1100000
WS_X1  = 0x1500000
WS_SIZE = 0x10000000

class K:
    def __init__(self, name):
        self.name = name
        self.lines = []
        self.lab = 0
    def __call__(self, s):
        for l in s.strip("\n").split("\n"):
            self.lines.append("    " + l.strip())
    def label(self, l):
        self.lines.append(f"{l}:")
    def newlabel(self, base="L"):
        self.lab += 1
        return f"{self.name}_{base}{self.lab}"
    def text(self):
        return "\n".join(self.lines) + "\n"

def srd(k, d, b, nbytes):
    k(f"s_mov_b32 s{d}, s{b}")
    k(f"s_and_b32 s{d+1}, s{b+1}, 0xffff")
    k(f"s_mov_b32 s{d+2}, {nbytes}")
    k(f"s_mov_b32 s{d+3}, 0x00020000")

def wave_sum(k, v, t):
    k(f"""
    s_nop 1
    v_add_f32_dpp v{t}, v{v}, v{v} quad_perm:[1,0,3,2] row_mask:0xf bank_mask:0xf
    s_nop 1
    v_add_f32_dpp v{v}, v{t}, v{t} quad_perm:[2,3,0,1] row_mask:0xf bank_mask:0xf
    s_nop 1
    v_add_f32_dpp v{t}, v{v}, v{v} row_half_mirror row_mask:0xf bank_mask:0xf
    s_nop 1
    v_add_f32_dpp v{v}, v{t}, v{t} row_mirror row_mask:0xf bank_mask:0xf
    s_nop 0
    v_mov_b32 v{t}, v{v}
    s_nop 1
    v_permlane16_swap_b32 v{v}, v{t}
    s_nop 0
    v_add_f32 v{v}, v{v}, v{t}
    v_mov_b32 v{t}, v{v}
    s_nop 1
    v_permlane32_swap_b32 v{v}, v{t}
    s_nop 0
    v_add_f32 v{v}, v{v}, v{t}
    """)

def round_bf16_pair(k, a, b, t):
    k(f"v_cvt_pk_bf16_f32 v{t}, v{a}, v{b}")
    k(f"v_lshlrev_b32 v{a}, 16, v{t}")
    k(f"v_and_b32 v{b}, 0xffff0000, v{t}")

def unpack_bf16(k, src, dst):
    k(f"v_lshlrev_b32 v{dst}, 16, v{src}")
    k(f"v_and_b32 v{dst+1}, 0xffff0000, v{src}")

WS_STAMP = 0x2000000
def stamp(k, idx, sreg=80):
    if 'stamp' not in FLAGS: return
    k(f"s_memtime s[{sreg+4*idx}:{sreg+4*idx+1}]")
    k(f"s_memrealtime s[{sreg+4*idx+2}:{sreg+4*idx+3}]")
    k("s_waitcnt lgkmcnt(0)")
def stamp_store(k, n, srd_ws, wgreg, wavereg, sreg=80, vt=250):
    if 'stamp' not in FLAGS: return
    k(f"s_lshl_b32 s79, s{wgreg}, 3")
    k(f"s_add_u32 s79, s79, s{wavereg}")
    k(f"s_lshl_b32 s79, s79, 7")
    k(f"s_add_u32 s79, s79, {WS_STAMP}")
    k(f"v_mov_b32 v{vt}, 0")
    for i in range(n):
        for j in range(4):
            k(f"v_mov_b32 v{vt+1}, s{sreg+4*i+j}")
            k(f"buffer_store_dword v{vt+1}, v{vt}, s[{srd_ws}:{srd_ws+3}], s79 offen offset:{16*i+4*j}")
            k("s_nop 1")

kernels = []

def finish(k, grid, block, lds, vgpr, sgpr=102, agpr=0):
    kernels.append((k.name, grid, block, lds, vgpr, sgpr, agpr, k.text()))

def gen_mod():
    k = K("mod_kernel")
    k(f"""
    s_cmp_ge_u32 s2, 192
    s_cbranch_scc1 mod_kernel_end
    s_load_dwordx2 s[4:5], s[0:1], {KA_C}
    s_load_dwordx2 s[6:7], s[0:1], {KA_WMOD}
    s_load_dwordx2 s[8:9], s[0:1], {KA_WS}
    s_and_b32 s20, s2, 0xfffffff0
    s_and_b32 s21, s2, 7
    s_lshl_b32 s21, s21, 1
    s_or_b32 s20, s20, s21
    s_lshr_b32 s21, s2, 3
    s_and_b32 s21, s21, 1
    s_or_b32 s20, s20, s21          ; s20 = slab
    s_lshl_b32 s21, s20, 6
    v_lshrrev_b32 v1, 6, v0         ; wave
    v_and_b32 v2, 63, v0            ; lane
    v_lshrrev_b32 v3, 2, v2         ; l>>2
    v_lshl_add_u32 v3, v1, 6, v3    ; row0 = 64*w + (l>>2)
    v_and_b32 v4, 3, v2
    v_lshlrev_b32 v4, 4, v4         ; (l&3)*16
    s_mov_b32 s22, 12288
    v_mul_lo_u32 v5, v3, s22
    v_add3_u32 v5, v5, v4, s21
    v_lshlrev_b32 v6, 1, v3         ; c offset
    s_waitcnt lgkmcnt(0)
    """)
    srd(k, 12, 4, 2048)
    srd(k, 16, 6, 1024*6144*2)
    srd(k, 24, 8, WS_SIZE)
    k(f"""
    s_mov_b32 s28, {16*12288}
    s_mov_b32 s29, {32*12288}
    s_mov_b32 s30, {48*12288}
    buffer_load_dwordx4 v[16:19], v5, s[16:19], 0 offen
    buffer_load_dwordx4 v[20:23], v5, s[16:19], s28 offen
    buffer_load_dwordx4 v[24:27], v5, s[16:19], s29 offen
    buffer_load_dwordx4 v[28:31], v5, s[16:19], s30 offen
    buffer_load_ushort v8, v6, s[12:15], 0 offen
    buffer_load_ushort v9, v6, s[12:15], 0 offen offset:32
    buffer_load_ushort v10, v6, s[12:15], 0 offen offset:64
    buffer_load_ushort v11, v6, s[12:15], 0 offen offset:96
    s_mov_b32 s31, 0xbfb8aa3b      ; -log2(e)
    s_waitcnt vmcnt(0)
    """)
    for i in range(4):
        r = 8 + i
        k(f"""
        v_lshlrev_b32 v{r}, 16, v{r}
        v_mul_f32 v12, s31, v{r}
        v_exp_f32 v12, v12
        s_nop 0
        v_add_f32 v12, 1.0, v12
        v_rcp_f32 v12, v12
        s_nop 0
        v_mul_f32 v{r}, v{r}, v12
        """)
    round_bf16_pair(k, 8, 9, 12)
    round_bf16_pair(k, 10, 11, 12)
    for i in range(4):
        for j in range(4):
            src = 16 + 4*i + j
            k(f"v_lshlrev_b32 v12, 16, v{src}")
            k(f"v_and_b32 v13, 0xffff0000, v{src}")
            if i == 0:
                k(f"v_mul_f32 v{32+2*j}, v{8+i}, v12")
                k(f"v_mul_f32 v{33+2*j}, v{8+i}, v13")
            else:
                k(f"v_fmac_f32 v{32+2*j}, v{8+i}, v12")
                k(f"v_fmac_f32 v{33+2*j}, v{8+i}, v13")
    k("s_nop 1")
    for j in range(8):
        k(f"v_add_f32_dpp v{40+j}, v{32+j}, v{32+j} row_ror:4 row_mask:0xf bank_mask:0xf")
    for j in range(8):
        k(f"v_add_f32_dpp v{32+j}, v{40+j}, v{40+j} row_ror:8 row_mask:0xf bank_mask:0xf")
    for j in range(8):
        k(f"v_mov_b32 v{40+j}, v{32+j}")
    k("s_nop 1")
    for j in range(8):
        k(f"v_permlane16_swap_b32 v{32+j}, v{40+j}")
    for j in range(8):
        k(f"v_add_f32 v{32+j}, v{32+j}, v{40+j}")
    for j in range(8):
        k(f"v_mov_b32 v{40+j}, v{32+j}")
    k("s_nop 1")
    for j in range(8):
        k(f"v_permlane32_swap_b32 v{32+j}, v{40+j}")
    for j in range(8):
        k(f"v_add_f32 v{32+j}, v{32+j}, v{40+j}")
    k(f"""
    v_lshlrev_b32 v12, 7, v1
    v_lshl_add_u32 v12, v2, 5, v12
    v_cmp_gt_u32 vcc, 4, v2
    s_and_saveexec_b64 s[32:33], vcc
    ds_write_b128 v12, v[32:35]
    ds_write_b128 v12, v[36:39] offset:16
    s_mov_b64 exec, s[32:33]
    s_waitcnt lgkmcnt(0)
    s_barrier
    v_readfirstlane_b32 s34, v1
    s_nop 3
    s_cmp_lg_u32 s34, 0
    s_cbranch_scc1 mod_kernel_end
    v_and_b32 v12, 31, v2
    v_lshlrev_b32 v12, 2, v12
    v_lshrrev_b32 v13, 5, v2
    v_lshl_add_u32 v12, v13, 10, v12
    """)
    for j in range(8):
        k(f"ds_read_b32 v{32+j}, v12 offset:{128*j}")
    k("s_waitcnt lgkmcnt(0)")
    for j in range(1, 8):
        k(f"v_add_f32 v32, v32, v{32+j}")
    k(f"""
    v_mov_b32 v33, v32
    s_nop 1
    v_permlane32_swap_b32 v32, v33
    s_nop 0
    v_add_f32 v32, v32, v33
    v_cvt_pk_bf16_f32 v32, v32, v32
    v_lshlrev_b32 v12, 1, v2
    v_add_u32 v12, s21, v12
    v_cmp_gt_u32 vcc, 32, v2
    s_and_saveexec_b64 s[32:33], vcc
    buffer_store_short v32, v12, s[24:27], 0 offen
    s_mov_b64 exec, s[32:33]
    s_cmp_lg_u32 s2, 0
    s_cbranch_scc1 mod_kernel_end
    v_mov_b32 v13, 0
    v_mov_b32 v12, {WS_KEY}
    v_cmp_eq_u32 vcc, 0, v2
    s_and_saveexec_b64 s[32:33], vcc
    buffer_store_dword v13, v12, s[24:27], 0 offen
    s_mov_b64 exec, s[32:33]
    """)
    k.label("mod_kernel_end")
    k("s_endpgm")
    finish(k, (192,1,1), (1024,1,1), 2048, 48, 48)

def ln_core(k, X, T):
    S, U, M, R = T, T+1, T+2, T+3
    k(f"v_add_f32 v{S}, v{X}, v{X+1}")
    for i in range(2, 16):
        k(f"v_add_f32 v{S}, v{S}, v{X+i}")
    wave_sum(k, S, U)
    k(f"v_mul_f32 v{M}, 0x3a800000, v{S}")
    k(f"v_sub_f32 v{U}, v{X}, v{M}")
    k(f"v_mul_f32 v{S}, v{U}, v{U}")
    for i in range(1, 16):
        k(f"v_sub_f32 v{U}, v{X+i}, v{M}")
        k(f"v_fmac_f32 v{S}, v{U}, v{U}")
    wave_sum(k, S, U)
    k(f"v_mul_f32 v{S}, 0x3a800000, v{S}")
    round_bf16_pair(k, M, S, U)
    k(f"v_add_f32 v{S}, 0x3727c5ac, v{S}")
    k(f"v_cvt_pk_bf16_f32 v{S}, v{S}, v{S}")
    k(f"v_lshlrev_b32 v{S}, 16, v{S}")
    k(f"v_sqrt_f32 v{S}, v{S}")
    k("s_nop 0")
    k(f"v_cvt_pk_bf16_f32 v{S}, v{S}, v{S}")
    k(f"v_lshlrev_b32 v{S}, 16, v{S}")
    k(f"v_rcp_f32 v{R}, v{S}")
    for i in range(16):
        k(f"v_sub_f32 v{X+i}, v{X+i}, v{M}")
    for i in range(0, 16, 2):
        round_bf16_pair(k, X+i, X+i+1, U)
    for i in range(16):
        k(f"v_mul_f32 v{X+i}, v{X+i}, v{R}")
    for i in range(0, 16, 2):
        round_bf16_pair(k, X+i, X+i+1, U)

def modulate(k, X, C, Sh, T):
    for j in range(8):
        unpack_bf16(k, C+j, T)
        k(f"v_add_f32 v{T}, 1.0, v{T}")
        k(f"v_add_f32 v{T+1}, 1.0, v{T+1}")
        round_bf16_pair(k, T, T+1, T+2)
        k(f"v_mul_f32 v{X+2*j}, v{X+2*j}, v{T}")
        k(f"v_mul_f32 v{X+2*j+1}, v{X+2*j+1}, v{T+1}")
        round_bf16_pair(k, X+2*j, X+2*j+1, T+2)
        unpack_bf16(k, Sh+j, T)
        k(f"v_add_f32 v{X+2*j}, v{X+2*j}, v{T}")
        k(f"v_add_f32 v{X+2*j+1}, v{X+2*j+1}, v{T+1}")

def gen_ln1():
    k = K("ln1_kernel")
    k(f"""
    s_cmp_ge_u32 s2, 512
    s_cbranch_scc1 ln1_kernel_end
    s_load_dwordx2 s[4:5], s[0:1], {KA_X}
    s_load_dwordx2 s[8:9], s[0:1], {KA_WS}
    v_lshrrev_b32 v1, 6, v0
    v_and_b32 v2, 63, v0
    s_lshl_b32 s20, s2, 13
    v_lshlrev_b32 v3, 11, v1
    v_lshl_add_u32 v3, v2, 4, v3
    v_add_u32 v3, s20, v3
    v_lshlrev_b32 v4, 4, v2         ; lane*16
    s_waitcnt lgkmcnt(0)
    """)
    srd(k, 12, 4, 2048*1024*2)
    srd(k, 24, 8, WS_SIZE)
    k(f"""
    buffer_load_dwordx4 v[8:11], v3, s[12:15], 0 offen
    buffer_load_dwordx4 v[12:15], v3, s[12:15], 0 offen offset:1024
    buffer_load_dwordx4 v[40:43], v4, s[24:27], 0 offen offset:{WS_MOD}
    buffer_load_dwordx4 v[44:47], v4, s[24:27], 0 offen offset:{WS_MOD+1024}
    buffer_load_dwordx4 v[48:51], v4, s[24:27], 0 offen offset:{WS_MOD+2048}
    buffer_load_dwordx4 v[52:55], v4, s[24:27], 0 offen offset:{WS_MOD+3072}
    s_waitcnt vmcnt(4)
    """)
    for j in range(8):
        unpack_bf16(k, 8+j, 16+2*j)
    ln_core(k, 16, 32)
    k("s_waitcnt vmcnt(0)")
    modulate(k, 16, 48, 40, 32)
    for j in range(8):
        k(f"v_cvt_pk_bf16_f32 v{8+j}, v{16+2*j}, v{17+2*j}")
    k(f"""
    s_mov_b32 s21, {WS_H}
    buffer_store_dwordx4 v[8:11], v3, s[24:27], s21 offen
    buffer_store_dwordx4 v[12:15], v3, s[24:27], s21 offen offset:1024
    v_lshrrev_b32 v5, 9, v3
    v_and_b32 v5, 0xfffffffc, v5
    v_lshl_add_u32 v5, v2, 13, v5
    v_mov_b32 v6, 0
    s_mov_b32 s22, {WS_STAT}
    v_cmp_gt_u32 vcc, 3, v2
    s_and_saveexec_b64 s[28:29], vcc
    buffer_store_dword v6, v5, s[24:27], s22 offen
    """)
    k.label("ln1_kernel_end")
    k("s_endpgm")
    finish(k, (512,1,1), (256,1,1), 0, 56, 32)

QK_SCALE = 32 ** -0.5 * 1.4426950408889634
import struct
def f32bits(x):
    return struct.unpack("<I", struct.pack("<f", x))[0]

def gen_qkv():
    k = K("qkv_kernel")
    NST = 16
    A_SLOT = 16384
    B_BASE = 65536
    B_SLOT = 24576
    k(f"""
    s_cmp_ge_u32 s2, 256
    s_cbranch_scc1 qkv_kernel_end
    s_load_dwordx2 s[4:5], s[0:1], {KA_WQKV}
    s_load_dwordx2 s[6:7], s[0:1], {KA_WS}
    v_lshrrev_b32 v1, 6, v0
    v_and_b32 v2, 63, v0               ; lane
    s_and_b32 s20, s2, 7               ; x
    s_lshr_b32 s21, s2, 3              ; j
    v_readfirstlane_b32 s18, v1
    s_and_b32 s16, s20, 1
    s_lshl_b32 s16, s16, 3
    s_and_b32 s22, s21, 7
    s_add_u32 s16, s16, s22            ; bm
    s_lshr_b32 s17, s20, 1
    s_lshl_b32 s17, s17, 2
    s_lshr_b32 s22, s21, 3
    s_add_u32 s17, s17, s22            ; bn
    s_waitcnt lgkmcnt(0)
    """)
    srd(k, 8, 4, 1024*3072*2)
    srd(k, 12, 6, WS_SIZE)
    k(f"""
    s_cmp_ge_u32 s18, 4
    s_cbranch_scc1 qkv_producer
    """)
    k(f"""
    s_and_b32 s19, s18, 1              ; wm
    s_lshr_b32 s23, s18, 1             ; hd
    v_and_b32 v3, 31, v2               ; l&31
    v_lshrrev_b32 v4, 5, v2            ; hh
    v_lshrrev_b32 v5, 1, v3
    v_and_b32 v5, 7, v5                ; f = (t>>1)&7
    v_xor_b32 v5, v5, v4               ; hh ^ f
    v_lshlrev_b32 v5, 4, v5
    v_lshl_add_u32 v5, v3, 7, v5       ; (l&31)*128 + chunk*16
    s_lshl_b32 s24, s19, 13            ; wm*64*128
    v_add_u32 v8, s24, v5              ; vA[0]
    v_xor_b32 v9, 32, v8
    v_xor_b32 v10, 64, v8
    v_xor_b32 v11, 0x60, v8
    ; vB
    v_lshrrev_b32 v5, 2, v2
    v_and_b32 v5, 3, v5                ; r
    v_lshl_add_u32 v6, v4, 3, v5       ; 8hh + r
    v_lshlrev_b32 v6, 7, v6            ; *128
    v_lshrrev_b32 v5, 1, v5            ; r>>1
    v_xor_b32 v5, s23, v5              ; hd ^ (r>>1)
    v_lshl_add_u32 v6, v5, 6, v6
    v_lshrrev_b32 v5, 4, v2
    v_and_b32 v5, 1, v5                ; ng
    v_lshl_add_u32 v6, v5, 5, v6
    v_and_b32 v5, 3, v2                ; c
    v_lshl_add_u32 v6, v5, 3, v6
    v_add_u32 v12, {B_BASE}, v6
    v_add_u32 v13, {B_BASE + 2*B_SLOT}, v6
    """)
    ACC = 64
    SETS = [24, 44]
    for i in range(96):
        k(f"v_mov_b32 v{ACC+i}, 0")
    def reads(st, slot, ks):
        S = SETS[st]
        r = []
        r.append(f"ds_read_b128 v[{S}:{S+3}], v{8+ks} offset:{slot*A_SLOT}")
        r.append(f"ds_read_b128 v[{S+4}:{S+7}], v{8+ks} offset:{slot*A_SLOT+4096}")
        for seg in range(3):
            for j in range(2):
                d = S + 8 + 4*seg + 2*j
                r.append(f"ds_read_b64_tr_b16 v[{d}:{d+1}], v{12+(slot>>1)} offset:{(slot&1)*B_SLOT + seg*8192 + ks*2048 + j*512}")
        return r
    def mfmas(st):
        S = SETS[st]
        r = []
        for seg in range(3):
            for tt in range(2):
                a = ACC + 16*(2*seg + tt)
                W = f"v[{S+8+4*seg}:{S+11+4*seg}]"
                H = f"v[{S+4*tt}:{S+4*tt+3}]"
                if seg < 2:
                    r.append(f"v_mfma_f32_32x32x16_bf16 v[{a}:{a+15}], {W}, {H}, v[{a}:{a+15}]")
                else:
                    r.append(f"v_mfma_f32_32x32x16_bf16 v[{a}:{a+15}], {H}, {W}, v[{a}:{a+15}]")
        return r
    k("s_mov_b32 s25, 0")
    stamp(k, 0)
    k("s_barrier")
    stamp(k, 1)
    for r in reads(0, 0, 0):
        k(r)
    k.label("qkv_cloop")
    cur = 0
    for slot in range(4):
        for ks in range(4):
            m = mfmas(cur)
            if 'nomfma' in FLAGS: m = ['s_nop 0']*6
            if ks < 3:
                rd = reads(cur ^ 1, slot, ks + 1)
            else:
                rd = reads(cur ^ 1, (slot + 1) & 3, 0)
            if 'nords' in FLAGS: rd = ['s_nop 0']*8
            k("s_waitcnt lgkmcnt(0)")
            k(m[0])
            if ks == 3:
                k("s_barrier")
            k(rd[2]); k(rd[3])
            k(m[1])
            k(rd[4]); k(rd[5])
            k(m[2])
            k(rd[0]); k(rd[6])
            k(m[3])
            k(rd[1]); k(rd[7])
            k(m[4])
            k(m[5])
            cur ^= 1
    k(f"""
    s_add_u32 s25, s25, 1
    s_cmp_lt_u32 s25, 4
    s_cbranch_scc1 qkv_cloop
    s_waitcnt lgkmcnt(0)
    """)
    stamp(k, 2)
    k(f"""
    s_lshl_b32 s26, s17, 1
    s_add_u32 s26, s26, s23            ; head
    s_lshl_b32 s26, s26, 17
    s_lshl_b32 s27, s16, 2
    s_lshl_b32 s28, s19, 1
    s_add_u32 s27, s27, s28
    s_lshl_b32 s27, s27, 11
    s_add_u32 s26, s26, s27
    s_add_u32 s28, s26, {WS_Q}
    s_add_u32 s29, s26, {WS_K}
    s_add_u32 s30, s26, {WS_V}
    s_mov_b32 s31, {f32bits(QK_SCALE)}
    v_lshlrev_b32 v3, 4, v2            ; lane*16
    s_nop 7
    """)
    for seg in range(3):
        for tt in range(2):
            a = ACC + 16*(2*seg + tt)
            if seg == 0:
                for i in range(16):
                    k(f"v_mul_f32 v{a+i}, s31, v{a+i}")
            for m in range(2):
                d = 24 + 4*((2*seg + tt)*2 + m) % 40
                d = 24 + (4*(((2*seg + tt)*2 + m) % 10))
                for i in range(4):
                    k(f"v_cvt_pk_bf16_f32 v{d+i}, v{a+8*m+2*i}, v{a+8*m+2*i+1}")
                k(f"buffer_store_dwordx4 v[{d}:{d+3}], v3, s[12:15], s{28+seg} offen offset:{tt*2048+m*1024}")
    if 'stamp' in FLAGS:
        k("s_waitcnt vmcnt(0)")
        stamp(k, 3)
        stamp_store(k, 4, 12, 2, 18)
    k("s_endpgm")
    k.label("qkv_producer")
    k(f"""
    s_sub_u32 s19, s18, 4              ; w
    v_lshrrev_b32 v3, 3, v2            ; l>>3
    s_lshl_b32 s23, s19, 3
    v_add_u32 v3, s23, v3              ; 8w + (l>>3)
    v_lshrrev_b32 v4, 4, v2            ; l>>4
    s_and_b32 s24, s19, 1
    s_lshl_b32 s24, s24, 2
    v_add_u32 v5, s24, v4              ; 4(w&1) + (l>>4)
    v_and_b32 v6, 7, v2
    v_xor_b32 v5, v5, v6
    v_lshlrev_b32 v5, 4, v5
    v_lshl_add_u32 v8, v3, 11, v5      ; vA
    s_mov_b32 s24, 6144
    v_mul_lo_u32 v9, v3, s24
    v_lshrrev_b32 v5, 2, v2
    v_xor_b32 v5, v5, v4
    v_and_b32 v5, 1, v5                ; hd
    v_lshl_add_u32 v9, v5, 6, v9
    v_and_b32 v5, 3, v2
    v_lshl_add_u32 v9, v5, 4, v9       ; vB
    s_lshl_b32 s25, s16, 18
    s_add_u32 s25, s25, {WS_H}
    s_lshl_b32 s26, s17, 7
    s_lshl_b32 s27, s19, 10            ; w*1024
    """)
    def issue(s):
        slot = s & 3
        if 'nodma' in FLAGS: return
        for i in range(4):
            k(f"s_add_u32 m0, s27, {slot*A_SLOT + i*4096}")
            k(f"s_add_u32 s28, s25, {i*65536 + s*128}")
            k(f"buffer_load_dwordx4 v8, s[12:15], s28 offen lds")
        for i in range(6):
            k(f"s_add_u32 m0, s27, {B_BASE + slot*B_SLOT + i*4096}")
            k(f"s_add_u32 s28, s26, {(i&1)*32*6144 + (i>>1)*2048 + s*393216}")
            k(f"buffer_load_dwordx4 v9, s[8:11], s28 offen lds")
    for s in range(4):
        issue(s)
    issued = 4
    for b in range(NST + 1):
        if b < NST:
            k(f"s_waitcnt vmcnt({10*(issued - b - 1)})")
        k("s_barrier")
        if b >= 1 and b + 3 < NST:
            issue(b + 3)
            issued += 1
    k.label("qkv_kernel_end")
    k("s_endpgm")
    finish(k, (256,1,1), (512,1,1), 163840, 256 if 'stamp' in FLAGS else 160, 102 if 'stamp' in FLAGS else 40)

def gen_attn():
    k = K("attn_kernel")
    Q, NEGM, SA, SB, P, O, Lr, ONES = 8, 16, 32, 48, 64, 72, 88, 92
    KB = [96, 104]; VB = [112, 120]
    S = [SA, SB]
    SLOT = 32768
    k(f"""
    s_cmp_ge_u32 s2, 256
    s_cbranch_scc1 attn_kernel_end
    s_load_dwordx2 s[6:7], s[0:1], {KA_WS}
    v_lshrrev_b32 v1, 6, v0
    v_and_b32 v6, 63, v0               ; lane
    s_and_b32 s20, s2, 7               ; x
    s_lshr_b32 s21, s2, 3              ; j
    v_readfirstlane_b32 s18, v1
    s_lshr_b32 s22, s21, 3
    s_lshl_b32 s22, s22, 3
    s_add_u32 s16, s20, s22            ; head
    s_and_b32 s17, s21, 7              ; qblock
    v_lshlrev_b32 v5, 4, v6            ; lane*16
    s_lshl_b32 s23, s16, 17            ; head*64*2048
    s_lshl_b32 s24, s17, 3
    s_add_u32 s24, s24, s18
    s_lshl_b32 s25, s24, 11
    s_add_u32 s25, s25, s23
    s_add_u32 s25, s25, {WS_Q}         ; Q soffset
    s_lshl_b32 s26, s18, 11            ; wave*2048
    s_add_u32 s26, s26, s23
    s_add_u32 s27, s26, {WS_V}
    s_add_u32 s26, s26, {WS_K}
    s_lshl_b32 s28, s18, 12
    s_waitcnt lgkmcnt(0)
    """)
    srd(k, 12, 6, WS_SIZE)
    def dma(slot_sreg_or_imm):
        if isinstance(slot_sreg_or_imm, int):
            k(f"s_add_u32 m0, s28, {slot_sreg_or_imm}")
        else:
            k(f"s_add_u32 m0, s28, {slot_sreg_or_imm}")
        k("s_nop 0")
        k("buffer_load_dwordx4 v5, s[12:15], s26 offen lds")
        k("buffer_load_dwordx4 v5, s[12:15], s26 offen offset:1024 lds")
        k("s_add_u32 m0, m0, 2048")
        k("s_add_u32 s26, s26, 16384")
        k("buffer_load_dwordx4 v5, s[12:15], s27 offen lds")
        k("buffer_load_dwordx4 v5, s[12:15], s27 offen offset:1024 lds")
        k("s_add_u32 s27, s27, 16384")
    k(f"""
    buffer_load_dwordx4 v[{Q}:{Q+3}], v5, s[12:15], s25 offen
    buffer_load_dwordx4 v[{Q+4}:{Q+7}], v5, s[12:15], s25 offen offset:1024
    """)
    dma(0)
    dma(SLOT)
    k(f"""
    v_lshrrev_b32 v1, 2, v6
    v_xor_b32 v1, v1, v6
    v_and_b32 v1, 4, v1
    v_cmp_eq_u32 vcc, 0, v1
    v_mov_b32 v7, 0x3f803f80
    s_nop 1
    v_cndmask_b32 v{ONES}, 0, v7, vcc
    v_cndmask_b32 v{ONES+1}, 0, v7, vcc
    v_cndmask_b32 v{ONES+2}, 0, v7, vcc
    v_cndmask_b32 v{ONES+3}, 0, v7, vcc
    v_mov_b32 v2, v5
    v_add_u32 v3, {SLOT}, v5
    s_mov_b32 s30, 0
    s_mov_b32 s31, {SLOT}
    s_mov_b32 s32, {2*SLOT}
    s_mov_b32 s33, 0                   ; stage
    """)
    for i in range(16):
        k(f"v_mov_b32 v{O+i}, 0")
    for i in range(4):
        k(f"v_mov_b32 v{Lr+i}, 0")
    stamp(k, 0)
    k(f"""
    s_waitcnt vmcnt(4)
    s_barrier
    """)
    stamp(k, 1)
    k(f"""
    ds_read_b128 v[{KB[0]}:{KB[0]+3}], v2 offset:0
    ds_read_b128 v[{KB[0]+4}:{KB[0]+7}], v2 offset:1024
    ds_read_b128 v[{KB[1]}:{KB[1]+3}], v2 offset:4096
    ds_read_b128 v[{KB[1]+4}:{KB[1]+7}], v2 offset:{4096+1024}
    ds_read_b128 v[{VB[0]}:{VB[0]+3}], v2 offset:2048
    ds_read_b128 v[{VB[0]+4}:{VB[0]+7}], v2 offset:3072
    s_waitcnt lgkmcnt(4)
    v_mfma_f32_32x32x16_bf16 v[{SA}:{SA+15}], v[{KB[0]}:{KB[0]+3}], v[{Q}:{Q+3}], 0
    v_mfma_f32_32x32x16_bf16 v[{SA}:{SA+15}], v[{KB[0]+4}:{KB[0]+7}], v[{Q+4}:{Q+7}], v[{SA}:{SA+15}]
    s_nop 15
    s_nop 3
    """)
    def tile_max(src, d, t):
        k(f"v_max3_f32 v{d}, v{src}, v{src+1}, v{src+2}")
        for i in range(3, 15, 2):
            k(f"v_max3_f32 v{d}, v{d}, v{src+i}, v{src+i+1}")
        k(f"v_max_f32 v{d}, v{d}, v{src+15}")
        k(f"v_mov_b32 v{t}, v{d}")
        k("s_nop 1")
        k(f"v_permlane32_swap_b32 v{d}, v{t}")
        k("s_nop 0")
        k(f"v_max_f32 v{d}, v{d}, v{t}")
    tile_max(SA, 1, 7)
    for i in range(16):
        k(f"v_sub_f32 v{NEGM+i}, 0, v1")
    k(f"""
    s_nop 1
    v_mfma_f32_32x32x16_bf16 v[{SA}:{SA+15}], v[{KB[0]}:{KB[0]+3}], v[{Q}:{Q+3}], v[{NEGM}:{NEGM+15}]
    v_mfma_f32_32x32x16_bf16 v[{SA}:{SA+15}], v[{KB[0]+4}:{KB[0]+7}], v[{Q+4}:{Q+7}], v[{SA}:{SA+15}]
    s_nop 11
    """)
    k.label("attn_loop")
    for i in range(8):
        c = i & 1; n = c ^ 1
        Sc, Sn = S[c], S[n]
        Kn, Kc = KB[n], KB[c]
        Vc, Vn = VB[c], VB[n]
        k2 = ("v2", (i+2)*4096) if i + 2 < 8 else ("v3", (i+2-8)*4096)
        v1_ = ("v2", (i+1)*4096) if i + 1 < 8 else ("v3", (i+1-8)*4096)
        if i == 6:
            lab = k.newlabel("nodma")
            k(f"""
            s_waitcnt vmcnt(0)
            s_barrier
            s_cmp_ge_u32 s33, 6
            s_cbranch_scc1 {lab}
            """)
            dma("s32")
            k.label(lab)
        k(f"""
        s_waitcnt lgkmcnt(2)
        v_mfma_f32_32x32x16_bf16 v[{Sn}:{Sn+15}], v[{Kn}:{Kn+3}], v[{Q}:{Q+3}], v[{NEGM}:{NEGM+15}]
        """)
        for e in range(0, 4):
            k(f"v_exp_f32 v{Sc+e}, v{Sc+e}")
        k(f"v_mfma_f32_32x32x16_bf16 v[{Sn}:{Sn+15}], v[{Kn+4}:{Kn+7}], v[{Q+4}:{Q+7}], v[{Sn}:{Sn+15}]")
        k(f"ds_read_b128 v[{Kc}:{Kc+3}], {k2[0]} offset:{k2[1]}")
        k(f"ds_read_b128 v[{Kc+4}:{Kc+7}], {k2[0]} offset:{k2[1]+1024}")
        for e in range(4, 8):
            k(f"v_exp_f32 v{Sc+e}, v{Sc+e}")
        k(f"ds_read_b128 v[{Vn}:{Vn+3}], {v1_[0]} offset:{v1_[1]+2048}")
        k(f"ds_read_b128 v[{Vn+4}:{Vn+7}], {v1_[0]} offset:{v1_[1]+3072}")
        for e in range(4):
            k(f"v_cvt_pk_bf16_f32 v{P+e}, v{Sc+2*e}, v{Sc+2*e+1}")
        for e in range(8, 12):
            k(f"v_exp_f32 v{Sc+e}, v{Sc+e}")
        k("s_waitcnt lgkmcnt(4)")
        k(f"v_mfma_f32_32x32x16_bf16 v[{O}:{O+15}], v[{Vc}:{Vc+3}], v[{P}:{P+3}], v[{O}:{O+15}]")
        for e in range(12, 16):
            k(f"v_exp_f32 v{Sc+e}, v{Sc+e}")
        k(f"v_mfma_f32_16x16x32_bf16 v[{Lr}:{Lr+3}], v[{ONES}:{ONES+3}], v[{P}:{P+3}], v[{Lr}:{Lr+3}]")
        for e in range(4, 8):
            k(f"v_cvt_pk_bf16_f32 v{P+e}, v{Sc+2*e}, v{Sc+2*e+1}")
        k("s_nop 1")
        k(f"v_mfma_f32_32x32x16_bf16 v[{O}:{O+15}], v[{Vc+4}:{Vc+7}], v[{P+4}:{P+7}], v[{O}:{O+15}]")
        k(f"v_mfma_f32_16x16x32_bf16 v[{Lr}:{Lr+3}], v[{ONES}:{ONES+3}], v[{P+4}:{P+7}], v[{Lr}:{Lr+3}]")
    k(f"""
    s_mov_b32 s34, s30
    s_mov_b32 s30, s31
    s_mov_b32 s31, s32
    s_mov_b32 s32, s34
    v_mov_b32 v2, v3
    v_add_u32 v3, s31, v5
    s_add_u32 s33, s33, 1
    s_cmp_lt_u32 s33, 8
    s_cbranch_scc1 attn_loop
    s_waitcnt lgkmcnt(0)
    s_nop 15
    """)
    stamp(k, 2)
    k(f"v_mul_f32 v1, 0, v{O}")
    for i in range(1, 16):
        k(f"v_fmac_f32 v1, 0, v{O+i}")
    k(f"""
    v_add_f32 v1, v1, v{Lr}
    s_mov_b32 s34, {0 if 'forcesafe' in FLAGS else 0x4e800000}          ; 2^30
    v_cmp_nlt_f32 vcc, v1, s34
    s_nop 1
    s_cmp_lg_u64 vcc, 0
    s_cbranch_scc1 attn_safe
    """)
    k.label("attn_fin")
    k(f"""
    v_rcp_f32 v1, v{Lr}
    s_lshl_b32 s25, s24, 5
    s_add_u32 s25, s25, s16
    s_lshl_b32 s25, s25, 11
    s_add_u32 s25, s25, {WS_O}
    """)
    for i in range(16):
        k(f"v_mul_f32 v{O+i}, v{O+i}, v1")
    for e in range(8):
        k(f"v_cvt_pk_bf16_f32 v{P+e}, v{O+2*e}, v{O+2*e+1}")
    k(f"""
    buffer_store_dwordx4 v[{P}:{P+3}], v5, s[12:15], s25 offen
    buffer_store_dwordx4 v[{P+4}:{P+7}], v5, s[12:15], s25 offen offset:1024
    """)
    if 'stamp' in FLAGS:
        k("s_waitcnt vmcnt(0)")
        stamp(k, 3)
        stamp_store(k, 4, 12, 2, 18)
    k("s_endpgm")
    k.label("attn_safe")
    M = 2; AL = 3
    k(f"""
    s_add_u32 s26, s23, {WS_K}
    s_add_u32 s27, s23, {WS_V}
    s_mov_b32 s33, 0
    v_mov_b32 v{M}, 0xff7fffff
    """)
    for i in range(16):
        k(f"v_mov_b32 v{O+i}, 0")
    for i in range(4):
        k(f"v_mov_b32 v{Lr+i}, 0")
    k.label("attn_safe_loop")
    k(f"""
    buffer_load_dwordx4 v[{KB[0]}:{KB[0]+3}], v5, s[12:15], s26 offen
    buffer_load_dwordx4 v[{KB[0]+4}:{KB[0]+7}], v5, s[12:15], s26 offen offset:1024
    buffer_load_dwordx4 v[{VB[0]}:{VB[0]+3}], v5, s[12:15], s27 offen
    buffer_load_dwordx4 v[{VB[0]+4}:{VB[0]+7}], v5, s[12:15], s27 offen offset:1024
    s_add_u32 s26, s26, 2048
    s_add_u32 s27, s27, 2048
    s_waitcnt vmcnt(0)
    v_mfma_f32_32x32x16_bf16 v[{SA}:{SA+15}], v[{KB[0]}:{KB[0]+3}], v[{Q}:{Q+3}], 0
    v_mfma_f32_32x32x16_bf16 v[{SA}:{SA+15}], v[{KB[0]+4}:{KB[0]+7}], v[{Q+4}:{Q+7}], v[{SA}:{SA+15}]
    s_nop 15
    s_nop 3
    """)
    tile_max(SA, 1, 7)
    k(f"""
    v_max_f32 v1, v1, v{M}
    v_sub_f32 v{AL}, v{M}, v1
    v_exp_f32 v{AL}, v{AL}
    v_mov_b32 v{M}, v1
    """)
    for i in range(16):
        k(f"v_sub_f32 v{SA+i}, v{SA+i}, v1")
    for i in range(16):
        k(f"v_exp_f32 v{SA+i}, v{SA+i}")
    for i in range(16):
        k(f"v_mul_f32 v{O+i}, v{O+i}, v{AL}")
    for i in range(4):
        k(f"v_mul_f32 v{Lr+i}, v{Lr+i}, v{AL}")
    for e in range(8):
        k(f"v_cvt_pk_bf16_f32 v{P+e}, v{SA+2*e}, v{SA+2*e+1}")
    k(f"""
    s_nop 1
    v_mfma_f32_32x32x16_bf16 v[{O}:{O+15}], v[{VB[0]}:{VB[0]+3}], v[{P}:{P+3}], v[{O}:{O+15}]
    v_mfma_f32_16x16x32_bf16 v[{Lr}:{Lr+3}], v[{ONES}:{ONES+3}], v[{P}:{P+3}], v[{Lr}:{Lr+3}]
    v_mfma_f32_32x32x16_bf16 v[{O}:{O+15}], v[{VB[0]+4}:{VB[0]+7}], v[{P+4}:{P+7}], v[{O}:{O+15}]
    v_mfma_f32_16x16x32_bf16 v[{Lr}:{Lr+3}], v[{ONES}:{ONES+3}], v[{P+4}:{P+7}], v[{Lr}:{Lr+3}]
    s_nop 15
    s_nop 3
    s_add_u32 s33, s33, 1
    s_cmp_lt_u32 s33, 64
    s_cbranch_scc1 attn_safe_loop
    s_branch attn_fin
    """)
    k.label("attn_kernel_end")
    k("s_endpgm")
    finish(k, (256,1,1), (512,1,1), 3*SLOT, 256 if 'stamp' in FLAGS else 128, 102 if 'stamp' in FLAGS else 40)

def gen_wo():
    k = K("wo_kernel")
    NST, R = 16, 6
    SLOT = 24576
    WOFF = 8192
    k(f"""
    s_cmp_ge_u32 s2, 256
    s_cbranch_scc1 wo_kernel_end
    s_load_dwordx2 s[4:5], s[0:1], {KA_WO}
    s_load_dwordx2 s[6:7], s[0:1], {KA_WS}
    s_load_dwordx2 s[36:37], s[0:1], {KA_X}
    s_load_dwordx2 s[38:39], s[0:1], {KA_WR}
    v_lshrrev_b32 v1, 6, v0
    v_and_b32 v2, 63, v0               ; lane
    s_and_b32 s20, s2, 7               ; x
    s_lshr_b32 s21, s2, 3              ; j
    v_readfirstlane_b32 s18, v1
    s_lshr_b32 s16, s20, 1
    s_lshl_b32 s16, s16, 3
    s_and_b32 s22, s21, 7
    s_add_u32 s16, s16, s22            ; bm (0..31)
    s_and_b32 s17, s20, 1
    s_lshl_b32 s17, s17, 2
    s_lshr_b32 s22, s21, 3
    s_add_u32 s17, s17, s22            ; bn (0..7)
    s_waitcnt lgkmcnt(0)
    """)
    srd(k, 8, 4, 1024*1024*2)
    srd(k, 12, 6, WS_SIZE)
    k(f"""
    s_cmp_ge_u32 s18, 4
    s_cbranch_scc1 wo_producer
    """)
    srd(k, 40, 36, 2048*1024*2)
    srd(k, 44, 38, 2048)
    XR, GA, CB, WR = 128, 144, 152, 160
    k(f"""
    v_and_b32 v3, 31, v2               ; tok
    v_lshrrev_b32 v4, 5, v2            ; hh
    v_lshlrev_b32 v5, 11, v3
    v_lshl_add_u32 v5, v4, 3, v5
    s_lshl_b32 s24, s16, 17            ; bm*64*2048
    s_lshl_b32 s25, s17, 8             ; bn*256
    s_lshl_b32 s26, s18, 6             ; w*64
    s_add_u32 s25, s25, s26
    s_add_u32 s26, s24, s25
    s_add_u32 s27, s26, 65536          ; tt=1
    v_lshlrev_b32 v6, 3, v4            ; hh*8
    s_add_u32 s28, s25, {WS_MOD + 2*2048}   ; ga
    s_add_u32 s29, s25, {WS_MOD + 4*2048}   ; cb
    """)
    for tt in range(2):
        for q in range(4):
            r = XR + 8*tt + 2*q
            k(f"buffer_load_dwordx2 v[{r}:{r+1}], v5, s[40:43], s{26+tt} offen offset:{16*q}")
    for q in range(4):
        k(f"buffer_load_dwordx2 v[{GA+2*q}:{GA+2*q+1}], v6, s[12:15], s28 offen offset:{16*q}")
        k(f"buffer_load_dwordx2 v[{CB+2*q}:{CB+2*q+1}], v6, s[12:15], s29 offen offset:{16*q}")
        k(f"buffer_load_dwordx2 v[{WR+2*q}:{WR+2*q+1}], v6, s[44:47], s25 offen offset:{16*q}")
    k(f"""
    v_lshlrev_b32 v8, 4, v2
    v_add_u32 v9, {2*SLOT}, v8
    v_add_u32 v10, {4*SLOT}, v8
    v_lshrrev_b32 v7, 2, v2
    v_and_b32 v7, 3, v7                ; r
    v_lshl_add_u32 v11, v4, 2, v7      ; 4hh + r
    v_lshlrev_b32 v11, 8, v11          ; *256
    v_xor_b32 v7, s18, v7              ; w ^ r
    v_lshl_add_u32 v11, v7, 6, v11
    v_lshrrev_b32 v7, 4, v2
    v_and_b32 v7, 1, v7                ; ng
    v_lshl_add_u32 v11, v7, 5, v11
    v_and_b32 v7, 3, v2
    v_lshl_add_u32 v11, v7, 3, v11
    v_add_u32 v11, {WOFF}, v11
    v_add_u32 v12, {2*SLOT}, v11
    v_add_u32 v13, {4*SLOT}, v11
    """)
    ACC = 16
    SETS = [48, 96 - 0]
    SETS = [48, 176]
    for i in range(32):
        k(f"v_mov_b32 v{ACC+i}, 0")
    def reads(st, s):
        S = SETS[st]; slot = s % R
        r = []
        for ks in range(4):
            b = S + 12*ks
            base = (slot & 1)*SLOT
            r.append(f"ds_read_b64_tr_b16 v[{b+8}:{b+9}], v{11+(slot>>1)} offset:{base + ks*4096}")
            r.append(f"ds_read_b64_tr_b16 v[{b+10}:{b+11}], v{11+(slot>>1)} offset:{base + ks*4096 + 2048}")
            r.append(f"ds_read_b128 v[{b}:{b+3}], v{8+(slot>>1)} offset:{base + ks*1024}")
            r.append(f"ds_read_b128 v[{b+4}:{b+7}], v{8+(slot>>1)} offset:{base + 4096 + ks*1024}")
        return r
    def mfmas(st):
        S = SETS[st]; r = []
        for ks in range(4):
            b = S + 12*ks
            for tt in range(2):
                a = ACC + 16*tt
                r.append(f"v_mfma_f32_32x32x16_bf16 v[{a}:{a+15}], v[{b+8}:{b+11}], v[{b+4*tt}:{b+4*tt+3}], v[{a}:{a+15}]")
        return r
    k("s_barrier")
    for r in reads(0, 0):
        k(r)
    for s in range(NST):
        m = mfmas(s & 1)
        k("s_waitcnt lgkmcnt(0)")
        k(m[0])
        if s + 1 < NST:
            k("s_barrier")
            rd = reads((s + 1) & 1, s + 1)
        else:
            rd = []
        for i in range(1, 8):
            for r in rd[(i-1)*3:(i-1)*3+3]:
                k(r)
            k(m[i])
    U = 48; G = 64; T = 80; ST = 84
    k("s_waitcnt vmcnt(0)")
    for j in range(8):
        unpack_bf16(k, GA+j, G+2*j)
        unpack_bf16(k, CB+j, U+2*j)
        k(f"v_add_f32 v{U+2*j}, 1.0, v{U+2*j}")
        k(f"v_add_f32 v{U+2*j+1}, 1.0, v{U+2*j+1}")
        round_bf16_pair(k, U+2*j, U+2*j+1, T)
        unpack_bf16(k, WR+j, T)
        k(f"v_mul_f32 v{U+2*j}, v{U+2*j}, v{T}")
        k(f"v_mul_f32 v{U+2*j+1}, v{U+2*j+1}, v{T+1}")
    k(f"""
    v_lshlrev_b32 v5, 11, v3
    v_lshl_add_u32 v5, v4, 4, v5
    s_add_u32 s26, s26, {WS_X1}
    s_add_u32 s27, s27, {WS_X1}
    """)
    for tt in range(2):
        a = ACC + 16*tt
        s1, s2_, s3 = ST + 3*tt, ST + 3*tt + 1, ST + 3*tt + 2
        for j in range(8):
            x0, x1 = a + 2*j, a + 2*j + 1
            round_bf16_pair(k, x0, x1, T)
            k(f"v_mul_f32 v{x0}, v{x0}, v{G+2*j}")
            k(f"v_mul_f32 v{x1}, v{x1}, v{G+2*j+1}")
            round_bf16_pair(k, x0, x1, T)
            unpack_bf16(k, XR + 8*tt + j, T)
            k(f"v_add_f32 v{x0}, v{x0}, v{T}")
            k(f"v_add_f32 v{x1}, v{x1}, v{T+1}")
            d = XR + 8*tt + j
            k(f"v_cvt_pk_bf16_f32 v{d}, v{x0}, v{x1}")
            k(f"v_lshlrev_b32 v{x0}, 16, v{d}")
            k(f"v_and_b32 v{x1}, 0xffff0000, v{d}")
            if j == 0:
                k(f"v_add_f32 v{s1}, v{x0}, v{x1}")
                k(f"v_mul_f32 v{s2_}, v{x0}, v{x0}")
                k(f"v_mul_f32 v{s3}, v{x0}, v{U+2*j}")
            else:
                k(f"v_add_f32 v{s1}, v{s1}, v{x0}")
                k(f"v_add_f32 v{s1}, v{s1}, v{x1}")
                k(f"v_fmac_f32 v{s2_}, v{x0}, v{x0}")
                k(f"v_fmac_f32 v{s3}, v{x0}, v{U+2*j}")
            k(f"v_fmac_f32 v{s2_}, v{x1}, v{x1}")
            k(f"v_fmac_f32 v{s3}, v{x1}, v{U+2*j+1}")
        for q in (0, 2):
            d = XR + 8*tt + 2*q
            k("s_nop 1")
            k(f"v_permlane32_swap_b32 v{d}, v{d+2}")
            k(f"v_permlane32_swap_b32 v{d+1}, v{d+3}")
            k(f"buffer_store_dwordx4 v[{d}:{d+3}], v5, s[12:15], s{26+tt} offen offset:{16*q}")
    k(f"""
    v_lshlrev_b32 v5, 2, v2            ; lane*4
    s_lshl_b32 s26, s16, 8
    s_add_u32 s26, s26, {WS_STAT}
    s_add_u32 s27, s26, 8192
    s_add_u32 s28, s26, 16384
    s_nop 1
    """)
    for i in range(3):
        k(f"v_permlane32_swap_b32 v{ST+i}, v{ST+3+i}")
    k("s_nop 0")
    for i in range(3):
        k(f"v_add_f32 v{ST+i}, v{ST+i}, v{ST+3+i}")
    for i in range(3):
        k(f"buffer_atomic_add_f32 v{ST+i}, v5, s[12:15], s{26+i} offen")
    k("s_endpgm")
    k.label("wo_producer")
    k(f"""
    s_sub_u32 s19, s18, 4              ; w
    v_lshlrev_b32 v8, 4, v2            ; o: lane*16
    v_lshrrev_b32 v3, 4, v2
    s_lshl_b32 s23, s19, 2
    v_add_u32 v4, s23, v3              ; 4w + row
    v_lshlrev_b32 v9, 11, v4
    v_lshrrev_b32 v5, 2, v2
    v_xor_b32 v5, v5, v3
    v_and_b32 v5, 3, v5
    v_lshl_add_u32 v9, v5, 6, v9
    v_and_b32 v5, 3, v2
    v_lshl_add_u32 v9, v5, 4, v9       ; vW
    s_lshl_b32 s25, s16, 1
    s_lshr_b32 s24, s19, 1
    s_add_u32 s25, s25, s24            ; T = 2bm + (w>>1)
    s_lshl_b32 s25, s25, 16
    s_and_b32 s24, s19, 1
    s_lshl_b32 s24, s24, 11
    s_add_u32 s25, s25, s24
    s_add_u32 s25, s25, {WS_O}
    s_lshl_b32 s26, s17, 8
    s_lshl_b32 s27, s19, 11
    s_lshl_b32 s29, s19, 10
    """)
    def issue(s):
        slot = s % R
        k(f"s_add_u32 m0, s27, {slot*SLOT}")
        k(f"s_add_u32 s28, s25, {s*4096}")
        k(f"buffer_load_dwordx4 v8, s[12:15], s28 offen lds")
        k(f"buffer_load_dwordx4 v8, s[12:15], s28 offen offset:1024 lds")
        for i in range(4):
            k(f"s_add_u32 m0, s29, {slot*SLOT + WOFF + i*4096}")
            k(f"s_add_u32 s28, s26, {(s*64 + i*16)*2048}")
            k(f"buffer_load_dwordx4 v9, s[8:11], s28 offen lds")
    for s in range(R):
        issue(s)
    issued = R
    for b in range(NST):
        k(f"s_waitcnt vmcnt({6*(issued - b - 1)})")
        k("s_barrier")
        if b >= 1 and b - 1 + R < NST:
            issue(b - 1 + R)
            issued += 1
    k.label("wo_kernel_end")
    k("s_endpgm")
    finish(k, (256,1,1), (512,1,1), R*SLOT, 224, 48)

def wave_red_u32max(k, v, t):
    k(f"""
    s_nop 1
    v_max_u32_dpp v{t}, v{v}, v{v} quad_perm:[1,0,3,2] row_mask:0xf bank_mask:0xf
    s_nop 1
    v_max_u32_dpp v{v}, v{t}, v{t} quad_perm:[2,3,0,1] row_mask:0xf bank_mask:0xf
    s_nop 1
    v_max_u32_dpp v{t}, v{v}, v{v} row_half_mirror row_mask:0xf bank_mask:0xf
    s_nop 1
    v_max_u32_dpp v{v}, v{t}, v{t} row_mirror row_mask:0xf bank_mask:0xf
    s_nop 0
    v_mov_b32 v{t}, v{v}
    s_nop 1
    v_permlane16_swap_b32 v{v}, v{t}
    s_nop 0
    v_max_u32 v{v}, v{v}, v{t}
    v_mov_b32 v{t}, v{v}
    s_nop 1
    v_permlane32_swap_b32 v{v}, v{t}
    s_nop 0
    v_max_u32 v{v}, v{v}, v{t}
    """)

def round_bf16(k, a):
    k(f"v_cvt_pk_bf16_f32 v{a}, v{a}, v{a}")
    k(f"v_lshlrev_b32 v{a}, 16, v{a}")

NGEMV = 224
def gen_moe():
    k = K("moe_kernel")
    k(f"""
    s_cmp_ge_u32 s2, {NGEMV + 256}
    s_cbranch_scc1 moe_kernel_end
    s_load_dwordx2 s[6:7], s[0:1], {KA_WS}
    s_load_dwordx2 s[36:37], s[0:1], {KA_WG}
    s_load_dwordx2 s[38:39], s[0:1], {KA_WU}
    s_load_dwordx2 s[40:41], s[0:1], {KA_WD}
    s_load_dwordx2 s[42:43], s[0:1], {KA_WR}
    s_load_dwordx2 s[44:45], s[0:1], {KA_OUT}
    v_lshrrev_b32 v1, 6, v0
    v_and_b32 v2, 63, v0               ; lane
    s_nop 0
    v_readfirstlane_b32 s18, v1
    v_lshlrev_b32 v4, 4, v2            ; lane*16
    s_waitcnt lgkmcnt(0)
    """)
    srd(k, 12, 6, WS_SIZE)
    k(f"""
    s_cmp_ge_u32 s2, {NGEMV}
    s_cbranch_scc1 moe_ln2
    """)
    srd(k, 48, 36, 1024*3584*2)
    srd(k, 52, 38, 1024*3584*2)
    srd(k, 56, 40, 3584*1024*2)
    srd(k, 60, 42, 2048)
    GW, UW, DW, STT = 64, 80, 96, 112
    k(f"""
    v_lshlrev_b32 v5, 4, v0            ; t*16
    s_mov_b32 s20, {WS_STAT}
    s_mov_b32 s21, {WS_STAT + 8192}
    s_mov_b32 s22, {WS_STAT + 16384}
    buffer_load_dwordx4 v[{STT}:{STT+3}], v5, s[12:15], s20 offen
    buffer_load_dwordx4 v[{STT+4}:{STT+7}], v5, s[12:15], s21 offen
    buffer_load_dwordx4 v[{STT+8}:{STT+11}], v5, s[12:15], s22 offen
    v_lshlrev_b32 v6, 2, v0            ; t*4
    s_mov_b32 s23, {WS_MOD + 4*2048}
    buffer_load_dword v8, v6, s[12:15], s23 offen
    buffer_load_dword v9, v6, s[60:63], 0 offen       ; w_r pair
    v_lshrrev_b32 v7, 1, v0            ; kr
    s_mov_b32 s24, 7168
    v_mul_lo_u32 v7, v7, s24
    v_and_b32 v10, 1, v0
    v_lshl_add_u32 v7, v10, 4, v7
    s_lshl_b32 s24, s2, 5              ; g*32
    s_add_u32 s25, s24, {256*7168}
    s_add_u32 s26, s24, {512*7168}
    s_add_u32 s27, s24, {768*7168}
    """)
    for i in range(4):
        k(f"buffer_load_dwordx4 v[{GW+4*i}:{GW+4*i+3}], v7, s[48:51], s{24+i} offen")
        k(f"buffer_load_dwordx4 v[{UW+4*i}:{UW+4*i+3}], v7, s[52:55], s{24+i} offen")
    k(f"""
    v_lshrrev_b32 v10, 7, v0           ; fq
    v_and_b32 v11, 127, v0             ; dg
    v_lshlrev_b32 v11, 4, v11
    v_lshl_add_u32 v11, v10, 13, v11
    s_lshl_b32 s28, s2, 15             ; g*32768
    s_add_u32 s29, s28, 4096
    buffer_load_dwordx4 v[{DW}:{DW+3}], v11, s[56:59], s28 offen
    buffer_load_dwordx4 v[{DW+4}:{DW+7}], v11, s[56:59], s28 offen offset:2048
    buffer_load_dwordx4 v[{DW+8}:{DW+11}], v11, s[56:59], s29 offen
    buffer_load_dwordx4 v[{DW+12}:{DW+15}], v11, s[56:59], s29 offen offset:2048
    s_mov_b32 s19, {WS_MOD + 3*2048}
    buffer_load_dwordx4 v[40:43], v4, s[12:15], s19 offen
    buffer_load_dwordx4 v[44:47], v4, s[12:15], s19 offen offset:1024
    buffer_load_dwordx4 v[48:51], v4, s[12:15], s23 offen
    buffer_load_dwordx4 v[52:55], v4, s[12:15], s23 offen offset:1024
    buffer_load_dwordx4 v[56:59], v4, s[60:63], 0 offen
    buffer_load_dwordx4 v[60:63], v4, s[60:63], 0 offen offset:1024
    s_waitcnt vmcnt(18)
    """)
    unpack_bf16(k, 8, 12)
    k("v_add_f32 v12, 1.0, v12")
    k("v_add_f32 v13, 1.0, v13")
    round_bf16_pair(k, 12, 13, 14)
    unpack_bf16(k, 9, 14)
    k("v_mul_f32 v12, v12, v14")
    k("v_fmac_f32 v12, v13, v15")
    wave_sum(k, 12, 13)
    k(f"""
    s_lshl_b32 s30, s18, 2
    v_mov_b32 v13, s30
    ds_write_b32 v13, v12 offset:0
    s_waitcnt lgkmcnt(0)
    s_barrier
    v_mov_b32 v13, 0
    ds_read_b128 v[16:19], v13 offset:0
    ds_read_b128 v[20:23], v13 offset:16
    s_waitcnt lgkmcnt(0)
    v_add_f32 v12, v16, v17
    v_add_f32 v12, v12, v18
    v_add_f32 v12, v12, v19
    v_add_f32 v12, v12, v20
    v_add_f32 v12, v12, v21
    v_add_f32 v12, v12, v22
    v_add_f32 v12, v12, v23            ; U
    v_lshlrev_b32 v24, 2, v0           ; token0 = 4t
    v_sub_u32 v24, 2047, v24           ; 2047 - token0
    v_mov_b32 v25, 0
    """)
    for i in range(4):
        S1, S2, S3 = STT + i, STT + 4 + i, STT + 8 + i
        k(f"""
        v_mul_f32 v16, 0x3a800000, v{S1}        ; mean
        v_mul_f32 v17, 0x3a800000, v{S2}
        v_fma_f32 v17, -v16, v16, v17           ; var
        v_max_f32 v17, 0, v17
        """)
        round_bf16_pair(k, 16, 17, 18)
        k("v_add_f32 v17, 0x3727c5ac, v17")
        round_bf16(k, 17)
        k("v_sqrt_f32 v17, v17")
        k("s_nop 0")
        round_bf16(k, 17)
        k(f"""
        v_rcp_f32 v17, v17
        v_fma_f32 v18, -v16, v12, v{S3}
        s_nop 0
        v_mul_f32 v18, v18, v17
        v_ashrrev_i32 v19, 31, v18
        v_or_b32 v19, 0x80000000, v19
        v_xor_b32 v18, v18, v19                 ; monotonic u32
        v_and_b32 v18, 0xfffff800, v18
        v_subrev_u32 v19, {i}, v24              ; 2047 - token
        v_or_b32 v18, v18, v19
        v_max_u32 v25, v25, v18
        """)
    wave_red_u32max(k, 25, 26)
    k(f"""
    v_mov_b32 v13, s30
    ds_write_b32 v13, v25 offset:64
    s_waitcnt lgkmcnt(0)
    s_barrier
    v_mov_b32 v13, 0
    ds_read_b128 v[16:19], v13 offset:64
    ds_read_b128 v[20:23], v13 offset:80
    s_waitcnt lgkmcnt(0)
    v_max3_u32 v25, v16, v17, v18
    v_max3_u32 v25, v25, v19, v20
    v_max3_u32 v25, v25, v21, v22
    v_max_u32 v25, v25, v23
    v_and_b32 v25, 0x7ff, v25
    v_sub_u32 v25, 2047, v25           ; sel
    s_nop 0
    v_readfirstlane_b32 s68, v25
    s_cmp_lg_u32 s18, 0
    s_cbranch_scc1 moe_wait_h2
    v_lshl_add_u32 v3, v25, 11, v4
    s_mov_b32 s31, {WS_X1}
    buffer_load_dwordx4 v[8:11], v3, s[12:15], s31 offen
    buffer_load_dwordx4 v[12:15], v3, s[12:15], s31 offen offset:1024
    s_waitcnt vmcnt(0)
    """)
    for j in range(8):
        unpack_bf16(k, 8+j, 16+2*j)
    ln_core(k, 16, 32)
    modulate(k, 16, 48, 40, 32)
    for j in range(0, 16, 2):
        round_bf16_pair(k, 16+j, 17+j, 32)
    k(f"""
    v_lshlrev_b32 v33, 5, v2
    ds_write_b128 v33, v[16:19] offset:1024
    ds_write_b128 v33, v[20:23] offset:1040
    ds_write_b128 v33, v[24:27] offset:{1024+2048}
    ds_write_b128 v33, v[28:31] offset:{1040+2048}
    s_cmp_lg_u32 s2, 0
    s_cbranch_scc1 moe_wait_h2
    """)
    for j in range(8):
        unpack_bf16(k, 56+j, 34)
        if j == 0:
            k(f"v_mul_f32 v32, v16, v34")
        else:
            k(f"v_fmac_f32 v32, v{16+2*j}, v34")
        k(f"v_fmac_f32 v32, v{17+2*j}, v35")
    wave_sum(k, 32, 33)
    round_bf16(k, 32)
    k(f"""
    v_mul_f32 v33, 0xbfb8aa3b, v32
    v_exp_f32 v33, v33
    s_nop 0
    v_add_f32 v33, 1.0, v33
    v_rcp_f32 v33, v33
    s_nop 0
    """)
    round_bf16(k, 33)
    k(f"""
    v_mov_b32 v32, s68
    v_mov_b32 v34, 0
    s_mov_b32 s31, {WS_SEL}
    buffer_store_dwordx2 v[32:33], v34, s[12:15], s31 offen
    buffer_store_dwordx4 v[8:11], v4, s[12:15], s31 offen offset:2048
    buffer_store_dwordx4 v[12:15], v4, s[12:15], s31 offen offset:3072
    """)
    for j in range(8):
        k(f"v_cvt_pk_bf16_f32 v{40+j}, v{16+2*j}, v{17+2*j}")
    k(f"""
    s_add_u32 s31, s31, 4096
    buffer_store_dwordx4 v[40:43], v4, s[12:15], s31 offen
    buffer_store_dwordx4 v[44:47], v4, s[12:15], s31 offen offset:1024
    """)
    k.label("moe_wait_h2")
    k(f"""
    s_waitcnt lgkmcnt(0)
    s_barrier
    v_lshrrev_b32 v13, 1, v0
    v_lshlrev_b32 v13, 2, v13          ; kr*4
    ds_read_b32 v8, v13 offset:1024
    ds_read_b32 v9, v13 offset:2048
    ds_read_b32 v10, v13 offset:3072
    ds_read_b32 v11, v13 offset:4096
    s_waitcnt vmcnt(0) lgkmcnt(0)
    """)
    AC = 16
    for mi, W in enumerate((GW, UW)):
        for i in range(4):
            for j in range(4):
                unpack_bf16(k, W + 4*i + j, 12)
                a = AC + 8*mi + 2*j
                if i == 0:
                    k(f"v_mul_f32 v{a}, v{8+i}, v12")
                    k(f"v_mul_f32 v{a+1}, v{8+i}, v13")
                else:
                    k(f"v_fmac_f32 v{a}, v{8+i}, v12")
                    k(f"v_fmac_f32 v{a+1}, v{8+i}, v13")
    TM = 32
    k("s_nop 1")
    for j in range(16):
        k(f"v_add_f32_dpp v{TM+j}, v{AC+j}, v{AC+j} quad_perm:[2,3,0,1] row_mask:0xf bank_mask:0xf")
    for j in range(16):
        k(f"v_add_f32_dpp v{AC+j}, v{TM+j}, v{TM+j} row_ror:4 row_mask:0xf bank_mask:0xf")
    for j in range(16):
        k(f"v_add_f32_dpp v{TM+j}, v{AC+j}, v{AC+j} row_ror:8 row_mask:0xf bank_mask:0xf")
    for j in range(16):
        k(f"v_mov_b32 v{AC+j}, v{TM+j}")
    k("s_nop 1")
    for j in range(16):
        k(f"v_permlane16_swap_b32 v{AC+j}, v{TM+j}")
    for j in range(16):
        k(f"v_add_f32 v{AC+j}, v{AC+j}, v{TM+j}")
    for j in range(16):
        k(f"v_mov_b32 v{TM+j}, v{AC+j}")
    k("s_nop 1")
    for j in range(16):
        k(f"v_permlane32_swap_b32 v{AC+j}, v{TM+j}")
    for j in range(16):
        k(f"v_add_f32 v{AC+j}, v{AC+j}, v{TM+j}")
    k(f"""
    s_lshl_b32 s30, s18, 7
    v_lshlrev_b32 v13, 5, v2
    v_add_u32 v13, s30, v13
    v_cmp_gt_u32 vcc, 2, v2
    s_and_saveexec_b64 s[32:33], vcc
    ds_write_b128 v13, v[16:19] offset:6144
    ds_write_b128 v13, v[20:23] offset:6160
    ds_write_b128 v13, v[24:27] offset:{6144+64}
    ds_write_b128 v13, v[28:31] offset:{6160+64}
    s_mov_b64 exec, s[32:33]
    s_waitcnt lgkmcnt(0)
    s_barrier
    v_and_b32 v13, 31, v2
    v_lshlrev_b32 v13, 2, v13
    """)
    for w in range(8):
        k(f"ds_read_b32 v{16+w}, v13 offset:{6144 + 128*w}")
    k("s_waitcnt lgkmcnt(0)")
    for w in range(1, 8):
        k(f"v_add_f32 v16, v16, v{16+w}")
    round_bf16(k, 16)
    k(f"""
    v_mul_f32 v17, 0xbfb8aa3b, v16
    v_exp_f32 v17, v17
    s_nop 0
    v_add_f32 v17, 1.0, v17
    v_rcp_f32 v17, v17
    s_nop 0
    v_mul_f32 v17, v16, v17
    """)
    round_bf16(k, 17)
    k(f"""
    v_mov_b32 v18, v16
    s_nop 1
    v_permlane16_swap_b32 v16, v18
    s_nop 0
    v_mul_f32 v17, v17, v18
    """)
    round_bf16(k, 17)
    k(f"""
    s_lshr_b32 s30, s18, 1
    s_lshl_b32 s30, s30, 2
    s_add_u32 s31, s30, 1
    s_add_u32 s34, s30, 2
    s_add_u32 s35, s30, 3
    s_nop 0
    v_readlane_b32 s64, v17, s30
    v_readlane_b32 s65, v17, s31
    v_readlane_b32 s66, v17, s34
    v_readlane_b32 s67, v17, s35
    s_nop 1
    """)
    for i in range(4):
        for j in range(4):
            unpack_bf16(k, DW + 4*i + j, 12)
            a = AC + 2*j
            if i == 0:
                k(f"v_mul_f32 v{a}, s{64+i}, v12")
                k(f"v_mul_f32 v{a+1}, s{64+i}, v13")
            else:
                k(f"v_fmac_f32 v{a}, s{64+i}, v12")
                k(f"v_fmac_f32 v{a+1}, s{64+i}, v13")
    k(f"""
    v_lshlrev_b32 v13, 5, v0
    ds_write_b128 v13, v[16:19] offset:8192
    ds_write_b128 v13, v[20:23] offset:8208
    s_waitcnt lgkmcnt(0)
    s_barrier
    v_lshlrev_b32 v13, 3, v0           ; t*8
    ds_read_b64 v[16:17], v13 offset:8192
    ds_read_b64 v[18:19], v13 offset:{8192+4096}
    ds_read_b64 v[20:21], v13 offset:{8192+8192}
    ds_read_b64 v[22:23], v13 offset:{8192+12288}
    s_lshl_b32 s30, s2, 12
    s_add_u32 s30, s30, {WS_Y}
    s_waitcnt lgkmcnt(0)
    v_add_f32 v16, v16, v18
    v_add_f32 v17, v17, v19
    v_add_f32 v20, v20, v22
    v_add_f32 v21, v21, v23
    v_add_f32 v16, v16, v20
    v_add_f32 v17, v17, v21
    buffer_store_dwordx2 v[16:17], v13, s[12:15], s30 offen
    s_endpgm
    """)
    k.label("moe_ln2")
    srd(k, 48, 44, 2048*1024*2)
    k(f"""
    s_sub_u32 s20, s2, {NGEMV}
    s_lshl_b32 s20, s20, 3
    s_add_u32 s20, s20, s18            ; row
    s_lshl_b32 s20, s20, 11
    s_add_u32 s21, s20, {WS_X1}
    s_mov_b32 s23, {WS_MOD + 4*2048}
    buffer_load_dwordx4 v[8:11], v4, s[12:15], s21 offen
    buffer_load_dwordx4 v[12:15], v4, s[12:15], s21 offen offset:1024
    s_mov_b32 s19, {WS_MOD + 3*2048}
    buffer_load_dwordx4 v[40:43], v4, s[12:15], s19 offen
    buffer_load_dwordx4 v[44:47], v4, s[12:15], s19 offen offset:1024
    buffer_load_dwordx4 v[48:51], v4, s[12:15], s23 offen
    buffer_load_dwordx4 v[52:55], v4, s[12:15], s23 offen offset:1024
    buffer_load_dwordx4 v[56:59], v4, s[12:15], s23 offen offset:2048
    buffer_load_dwordx4 v[60:63], v4, s[12:15], s23 offen offset:3072
    s_waitcnt vmcnt(6)
    """)
    for j in range(8):
        unpack_bf16(k, 8+j, 16+2*j)
    ln_core(k, 16, 32)
    k("s_waitcnt vmcnt(0)")
    modulate(k, 16, 48, 40, 32)
    for j in range(8):
        a, b = 16+2*j, 17+2*j
        round_bf16_pair(k, a, b, 32)
        unpack_bf16(k, 56+j, 32)
        k(f"v_mul_f32 v{a}, v{a}, v32")
        k(f"v_mul_f32 v{b}, v{b}, v33")
        round_bf16_pair(k, a, b, 32)
        unpack_bf16(k, 8+j, 32)
        k(f"v_add_f32 v{a}, v{a}, v32")
        k(f"v_add_f32 v{b}, v{b}, v33")
        k(f"v_cvt_pk_bf16_f32 v{8+j}, v{a}, v{b}")
    k(f"""
    buffer_store_dwordx4 v[8:11], v4, s[48:51], s20 offen
    buffer_store_dwordx4 v[12:15], v4, s[48:51], s20 offen offset:1024
    """)
    k.label("moe_kernel_end")
    k("s_endpgm")
    finish(k, (NGEMV + 256,1,1), (512,1,1), 8192 + 16384, 124, 72)

def gen_fin():
    k = K("fin_kernel")
    k(f"""
    s_cmp_ge_u32 s2, 32
    s_cbranch_scc1 fin_kernel_end
    s_load_dwordx2 s[6:7], s[0:1], {KA_WS}
    s_load_dwordx2 s[44:45], s[0:1], {KA_OUT}
    v_and_b32 v1, 31, v0               ; col
    v_lshrrev_b32 v2, 5, v0            ; pg
    v_lshlrev_b32 v3, 2, v1
    v_lshl_add_u32 v3, v2, 12, v3
    s_lshl_b32 s20, s2, 7
    s_add_u32 s20, s20, {WS_Y}
    s_lshl_b32 s22, s2, 6
    v_lshlrev_b32 v4, 1, v1
    v_add_u32 v4, s22, v4
    v_mov_b32 v5, 0
    s_waitcnt lgkmcnt(0)
    """)
    srd(k, 12, 6, WS_SIZE)
    srd(k, 48, 44, 2048*1024*2)
    k(f"""
    s_mov_b32 s23, {WS_SEL}
    s_mov_b32 s24, {WS_SEL + 4096}
    s_mov_b32 s25, {WS_MOD + 5*2048}
    buffer_load_dwordx2 v[6:7], v5, s[12:15], s23 offen
    buffer_load_ushort v8, v4, s[12:15], s23 offen offset:2048     ; x1
    buffer_load_ushort v9, v4, s[12:15], s24 offen                 ; h2
    buffer_load_ushort v10, v4, s[12:15], s25 offen                ; gb
    """)
    for i in range(28):
        k(f"buffer_load_dword v{16+i}, v3, s[12:15], s20 offen")
        k(f"s_add_u32 s20, s20, 32768")
    k("s_waitcnt vmcnt(0)")
    for i in range(1, 28):
        k(f"v_add_f32 v16, v16, v{16+i}")
    k(f"""
    v_lshlrev_b32 v11, 2, v0
    ds_write_b32 v11, v16
    s_waitcnt lgkmcnt(0)
    s_barrier
    v_lshlrev_b32 v11, 2, v1
    """)
    for w in range(8):
        k(f"ds_read_b32 v{16+w}, v11 offset:{128*w}")
    k("s_waitcnt lgkmcnt(0)")
    for w in range(1, 8):
        k(f"v_add_f32 v16, v16, v{16+w}")
    round_bf16(k, 16)
    k("v_mul_f32 v16, v16, v7")
    round_bf16(k, 16)
    k("v_lshlrev_b32 v9, 16, v9")
    k("v_add_f32 v16, v16, v9")
    round_bf16(k, 16)
    k("v_lshlrev_b32 v10, 16, v10")
    k("v_mul_f32 v16, v16, v10")
    round_bf16(k, 16)
    k(f"""
    v_lshlrev_b32 v8, 16, v8
    v_add_f32 v16, v16, v8
    v_cvt_pk_bf16_f32 v16, v16, v16
    v_and_b32 v6, 0x7ff, v6
    v_lshl_add_u32 v4, v6, 11, v4
    v_cmp_gt_u32 vcc, 32, v0
    s_and_saveexec_b64 s[28:29], vcc
    buffer_store_short v16, v4, s[48:51], 0 offen
    """)
    k.label("fin_kernel_end")
    k("s_endpgm")
    finish(k, (32,1,1), (256,1,1), 1024, 48, 56)

def build():
    gen_mod()
    gen_ln1()
    gen_qkv()
    gen_attn()
    gen_wo()
    gen_moe()
    gen_fin()
    hdr = open("cdna_kernels/" + NAME + ".s.ref").read().split("; Override")[0]
    out = hdr
    for (name, grid, block, lds, vgpr, sgpr, agpr, text) in kernels:
        out += f"; @launch kernel={name} grid=({grid[0]},{grid[1]},{grid[2]}) block=({block[0]},{block[1]},{block[2]}) lds={lds}\n"
    out += '.amdgcn_target "amdgcn-amd-amdhsa--gfx950"\n.text\n'
    for (name, grid, block, lds, vgpr, sgpr, agpr, text) in kernels:
        out += f".globl {name}\n.p2align 8\n.type {name},@function\n{name}:\n{text}"
    out += '.section .rodata,"a"\n'
    for (name, grid, block, lds, vgpr, sgpr, agpr, text) in kernels:
        acc = (vgpr + 3)//4*4
        out += f""".p2align 6
.amdhsa_kernel {name}
  .amdhsa_next_free_vgpr {acc + agpr if agpr else vgpr}
  .amdhsa_next_free_sgpr {sgpr}
  .amdhsa_accum_offset {acc}
  .amdhsa_group_segment_fixed_size 0
  .amdhsa_kernarg_size 104
  .amdhsa_user_sgpr_count 2
  .amdhsa_user_sgpr_kernarg_segment_ptr 1
  .amdhsa_system_sgpr_workgroup_id_x 1
  .amdhsa_float_denorm_mode_32 3
.end_amdhsa_kernel
"""
    import re
    for ln in out.split("\n"):
        l = ln.split(";")[0]
        m = re.search(r"offset:(\d+)", l)
        if m and (l.strip().startswith("buffer_") or l.strip().startswith("global_")):
            assert int(m.group(1)) <= 4095, ln
        if m and l.strip().startswith("ds_"):
            assert int(m.group(1)) <= 65535, ln
    return out

if __name__ == "__main__":
    s = build()
    p = sys.argv[1] if len(sys.argv) > 1 else "cdna_kernels/" + NAME + ".s"
    open(p, "w").write(s)
    print("wrote", p, len(s))
```

```python
import sys, math, os
FLAGS = set(os.environ.get('GENFLAGS', '').split(','))

NAME = "adaLN_cond__mha_block__moe_arch_mod__prompt"

KA_X, KA_WQKV, KA_WO, KA_BX, KA_WR, KA_WG, KA_WU, KA_WD, KA_C, KA_WMOD, KA_OUT, KA_DBG, KA_WS = [8*i for i in range(13)]

WS_MOD = 0x000000
WS_MOD1 = 0x004000
WS_STAT = 0x010000
WS_SEL = 0x018000
WS_Y   = 0x1900000
WS_H   = 0x100000
WS_Q   = 0x500000
WS_K   = 0x900000
WS_V   = 0xD00000
WS_O   = 0x1100000
WS_X1  = 0x1500000
WS_G   = 0x3000000
WS_SIZE = 0x10000000

class K:
    def __init__(self, name):
        self.name = name
        self.lines = []
        self.lab = 0
    def __call__(self, s):
        for l in s.strip("\n").split("\n"):
            self.lines.append("    " + l.strip())
    def label(self, l):
        self.lines.append(f"{l}:")
    def newlabel(self, base="L"):
        self.lab += 1
        return f"{self.name}_{base}{self.lab}"
    def text(self):
        return "\n".join(self.lines) + "\n"

def srd(k, d, b, nbytes):
    k(f"s_mov_b32 s{d}, s{b}")
    k(f"s_and_b32 s{d+1}, s{b+1}, 0xffff")
    k(f"s_mov_b32 s{d+2}, {nbytes}")
    k(f"s_mov_b32 s{d+3}, 0x00020000")

def wave_sum(k, v, t):
    k(f"""
    s_nop 1
    v_add_f32_dpp v{t}, v{v}, v{v} quad_perm:[1,0,3,2] row_mask:0xf bank_mask:0xf
    s_nop 1
    v_add_f32_dpp v{v}, v{t}, v{t} quad_perm:[2,3,0,1] row_mask:0xf bank_mask:0xf
    s_nop 1
    v_add_f32_dpp v{t}, v{v}, v{v} row_half_mirror row_mask:0xf bank_mask:0xf
    s_nop 1
    v_add_f32_dpp v{v}, v{t}, v{t} row_mirror row_mask:0xf bank_mask:0xf
    s_nop 0
    v_mov_b32 v{t}, v{v}
    s_nop 1
    v_permlane16_swap_b32 v{v}, v{t}
    s_nop 0
    v_add_f32 v{v}, v{v}, v{t}
    v_mov_b32 v{t}, v{v}
    s_nop 1
    v_permlane32_swap_b32 v{v}, v{t}
    s_nop 0
    v_add_f32 v{v}, v{v}, v{t}
    """)

def round_bf16_pair(k, a, b, t):
    k(f"v_cvt_pk_bf16_f32 v{t}, v{a}, v{b}")
    k(f"v_lshlrev_b32 v{a}, 16, v{t}")
    k(f"v_and_b32 v{b}, 0xffff0000, v{t}")

def unpack_bf16(k, src, dst):
    k(f"v_lshlrev_b32 v{dst}, 16, v{src}")
    k(f"v_and_b32 v{dst+1}, 0xffff0000, v{src}")

WS_STAMP = 0x2000000
def stamp(k, idx, sreg=80, flag='stamp'):
    if flag not in FLAGS: return
    k(f"s_memtime s[{sreg+4*idx}:{sreg+4*idx+1}]")
    k(f"s_memrealtime s[{sreg+4*idx+2}:{sreg+4*idx+3}]")
    k("s_waitcnt lgkmcnt(0)")
def stamp_store(k, n, srd_ws, wgreg, wavereg, sreg=80, vt=250, flag='stamp'):
    if flag not in FLAGS: return
    k(f"s_lshl_b32 s{sreg-1}, s{wgreg}, 3")
    k(f"s_add_u32 s{sreg-1}, s{sreg-1}, s{wavereg}")
    k(f"s_lshl_b32 s{sreg-1}, s{sreg-1}, 7")
    k(f"s_add_u32 s{sreg-1}, s{sreg-1}, {WS_STAMP}")
    k(f"v_mov_b32 v{vt}, 0")
    for i in range(n):
        for j in range(4):
            k(f"v_mov_b32 v{vt+1}, s{sreg+4*i+j}")
            k(f"buffer_store_dword v{vt+1}, v{vt}, s[{srd_ws}:{srd_ws+3}], s{sreg-1} offen offset:{16*i+4*j}")
            k("s_nop 1")

kernels = []

def finish(k, grid, block, lds, vgpr, sgpr=102, agpr=0):
    if 'scramble' in FLAGS:
        assert 's_cbranch_scc1' in k.lines[1]
        k.lines[2:2] = ["    s_lshr_b32 s3, s2, 3", "    s_and_b32 s3, s3, 7", "    s_xor_b32 s2, s2, s3"]
    kernels.append((k.name, grid, block, lds, vgpr, sgpr, agpr, k.text()))

def gen_mod():
    k = K("pre_kernel")
    k(f"""
    s_cmp_ge_u32 s2, 256
    s_cbranch_scc1 pre_kernel_end
    s_load_dwordx2 s[4:5], s[0:1], {KA_C}
    s_load_dwordx2 s[6:7], s[0:1], {KA_WMOD}
    s_load_dwordx2 s[8:9], s[0:1], {KA_WS}
    s_load_dwordx4 s[36:39], s[0:1], {KA_X}      ; x, wqkv
    s_and_b32 s20, s2, 0xfffffff0
    s_and_b32 s21, s2, 7
    s_lshl_b32 s21, s21, 1
    s_or_b32 s20, s20, s21
    s_lshr_b32 s21, s2, 3
    s_and_b32 s21, s21, 1
    s_or_b32 s20, s20, s21          ; s20 = slab
    s_lshl_b32 s21, s20, 6
    v_lshrrev_b32 v1, 6, v0         ; wave
    v_and_b32 v2, 63, v0            ; lane
    v_lshrrev_b32 v3, 2, v2         ; l>>2
    v_readfirstlane_b32 s34, v1
    v_lshl_add_u32 v3, v1, 6, v3    ; row0 = 64*w + (l>>2)
    v_and_b32 v4, 3, v2
    v_lshlrev_b32 v4, 4, v4         ; (l&3)*16
    s_mov_b32 s22, 12288
    v_mul_lo_u32 v5, v3, s22
    v_add3_u32 v5, v5, v4, s21
    v_lshlrev_b32 v6, 1, v3         ; c offset
    v_lshlrev_b32 v7, 4, v2         ; lane*16
    s_lshl_b32 s35, s2, 3
    s_add_u32 s35, s35, s34
    s_lshl_b32 s35, s35, 11
    s_waitcnt lgkmcnt(0)
    """)
    srd(k, 12, 4, 2048)
    srd(k, 16, 6, 1024*6144*2)
    srd(k, 24, 8, WS_SIZE)
    srd(k, 40, 36, 2048*1024*2)
    srd(k, 44, 38, 16 if 'nopf' in FLAGS else 1024*3072*2)
    MNT = 'nt' if 'modnt' in FLAGS else ''
    XR = 48
    k(f"""
    s_mov_b32 s28, {16*12288}
    s_mov_b32 s29, {32*12288}
    s_mov_b32 s30, {48*12288}
    s_cmp_ge_u32 s2, 192
    s_cbranch_scc1 pre_nomod1
    buffer_load_dwordx4 v[16:19], v5, s[16:19], 0 offen {MNT}
    buffer_load_dwordx4 v[20:23], v5, s[16:19], s28 offen {MNT}
    buffer_load_dwordx4 v[24:27], v5, s[16:19], s29 offen {MNT}
    buffer_load_dwordx4 v[28:31], v5, s[16:19], s30 offen {MNT}
    buffer_load_ushort v8, v6, s[12:15], 0 offen
    buffer_load_ushort v9, v6, s[12:15], 0 offen offset:32
    buffer_load_ushort v10, v6, s[12:15], 0 offen offset:64
    buffer_load_ushort v11, v6, s[12:15], 0 offen offset:96
    s_cmp_ge_u32 s34, 8
    s_cbranch_scc1 pre_pf1
    buffer_load_dwordx4 v[{XR}:{XR+3}], v7, s[40:43], s35 offen
    buffer_load_dwordx4 v[{XR+4}:{XR+7}], v7, s[40:43], s35 offen offset:1024
    s_waitcnt vmcnt(2)
    s_branch pre_mod
pre_pf1:
    s_lshl_b32 s48, s2, 3
    s_add_u32 s48, s48, s34
    s_sub_u32 s48, s48, 8
    s_lshl_b32 s48, s48, 10
    buffer_load_dwordx4 v[{XR}:{XR+3}], v7, s[44:47], s48 offen
    s_waitcnt vmcnt(1)
pre_mod:
    s_mov_b32 s31, 0xbfb8aa3b      ; -log2(e)
    """)
    for i in range(4):
        r = 8 + i
        k(f"""
        v_lshlrev_b32 v{r}, 16, v{r}
        v_mul_f32 v12, s31, v{r}
        v_exp_f32 v12, v12
        s_nop 0
        v_add_f32 v12, 1.0, v12
        v_rcp_f32 v12, v12
        s_nop 0
        v_mul_f32 v{r}, v{r}, v12
        """)
    round_bf16_pair(k, 8, 9, 12)
    round_bf16_pair(k, 10, 11, 12)
    for i in range(4):
        for j in range(4):
            src = 16 + 4*i + j
            k(f"v_lshlrev_b32 v12, 16, v{src}")
            k(f"v_and_b32 v13, 0xffff0000, v{src}")
            if i == 0:
                k(f"v_mul_f32 v{32+2*j}, v{8+i}, v12")
                k(f"v_mul_f32 v{33+2*j}, v{8+i}, v13")
            else:
                k(f"v_fmac_f32 v{32+2*j}, v{8+i}, v12")
                k(f"v_fmac_f32 v{33+2*j}, v{8+i}, v13")
    k("s_nop 1")
    for j in range(8):
        k(f"v_add_f32_dpp v{40+j}, v{32+j}, v{32+j} row_ror:4 row_mask:0xf bank_mask:0xf")
    for j in range(8):
        k(f"v_add_f32_dpp v{32+j}, v{40+j}, v{40+j} row_ror:8 row_mask:0xf bank_mask:0xf")
    for j in range(8):
        k(f"v_mov_b32 v{40+j}, v{32+j}")
    k("s_nop 1")
    for j in range(8):
        k(f"v_permlane16_swap_b32 v{32+j}, v{40+j}")
    for j in range(8):
        k(f"v_add_f32 v{32+j}, v{32+j}, v{40+j}")
    for j in range(8):
        k(f"v_mov_b32 v{40+j}, v{32+j}")
    k("s_nop 1")
    for j in range(8):
        k(f"v_permlane32_swap_b32 v{32+j}, v{40+j}")
    for j in range(8):
        k(f"v_add_f32 v{32+j}, v{32+j}, v{40+j}")
    k(f"""
    v_lshlrev_b32 v12, 7, v1
    v_lshl_add_u32 v12, v2, 5, v12
    v_cmp_gt_u32 vcc, 4, v2
    s_and_saveexec_b64 s[32:33], vcc
    ds_write_b128 v12, v[32:35]
    ds_write_b128 v12, v[36:39] offset:16
    s_mov_b64 exec, s[32:33]
    s_waitcnt lgkmcnt(0)
    s_barrier
    s_cmp_lg_u32 s34, 0
    s_cbranch_scc1 pre_ln
    v_and_b32 v12, 31, v2
    v_lshlrev_b32 v12, 2, v12
    v_lshrrev_b32 v13, 5, v2
    v_lshl_add_u32 v12, v13, 10, v12
    """)
    for j in range(8):
        k(f"ds_read_b32 v{32+j}, v12 offset:{128*j}")
    k("s_waitcnt lgkmcnt(0)")
    for j in range(1, 8):
        k(f"v_add_f32 v32, v32, v{32+j}")
    k(f"""
    v_mov_b32 v33, v32
    s_nop 1
    v_permlane32_swap_b32 v32, v33
    s_nop 0
    v_add_f32 v32, v32, v33
    v_cvt_pk_bf16_f32 v32, v32, v32
    v_lshlrev_b32 v33, 16, v32
    v_add_f32 v33, 1.0, v33
    v_cvt_pk_bf16_f32 v33, v33, v33
    v_lshlrev_b32 v12, 1, v2
    v_add_u32 v12, s21, v12
    s_mov_b32 s22, {WS_MOD1}
    v_cmp_gt_u32 vcc, 32, v2
    s_and_saveexec_b64 s[32:33], vcc
    buffer_store_short v32, v12, s[24:27], 0 offen
    buffer_store_short v33, v12, s[24:27], s22 offen
    s_mov_b64 exec, s[32:33]
    s_branch pre_ln
pre_nomod1:
    s_cmp_ge_u32 s34, 8
    s_cbranch_scc1 pre_pf2
    buffer_load_dwordx4 v[{XR}:{XR+3}], v7, s[40:43], s35 offen
    buffer_load_dwordx4 v[{XR+4}:{XR+7}], v7, s[40:43], s35 offen offset:1024
pre_pf2:
    s_sub_u32 s48, s2, 192
    s_lshl_b32 s48, s48, 4
    s_add_u32 s48, s48, s34
    s_mul_i32 s48, s48, 5120
    s_add_u32 s48, s48, {192*8*1024}
    s_add_u32 s49, s48, 4096
    buffer_load_dwordx4 v[16:19], v7, s[44:47], s48 offen
    buffer_load_dwordx4 v[20:23], v7, s[44:47], s48 offen offset:1024
    buffer_load_dwordx4 v[24:27], v7, s[44:47], s48 offen offset:2048
    buffer_load_dwordx4 v[28:31], v7, s[44:47], s48 offen offset:3072
    buffer_load_dwordx4 v[32:35], v7, s[44:47], s49 offen
    s_waitcnt vmcnt(5)
pre_ln:
    s_cmp_ge_u32 s34, 8
    s_cbranch_scc1 pre_kernel_end
    s_cmp_ge_u32 s2, 192
    s_cbranch_scc1 pre_ln2
    s_waitcnt vmcnt(0)
pre_ln2:
    """)
    for j in range(8):
        unpack_bf16(k, XR+j, 64+2*j)
    ln_core(k, 64, 80)
    for j in range(8):
        k(f"v_cvt_pk_bf16_f32 v{XR+j}, v{64+2*j}, v{65+2*j}")
    k(f"""
    s_add_u32 s21, s35, {WS_H}
    buffer_store_dwordx4 v[{XR}:{XR+3}], v7, s[24:27], s21 offen
    buffer_store_dwordx4 v[{XR+4}:{XR+7}], v7, s[24:27], s21 offen offset:1024
    s_lshr_b32 s22, s35, 9             ; row*4
    s_add_u32 s22, s22, {WS_STAT}
    v_lshlrev_b32 v5, 13, v2
    v_mov_b32 v6, 0
    v_cmp_gt_u32 vcc, 3, v2
    s_and_saveexec_b64 s[28:29], vcc
    buffer_store_dword v6, v5, s[24:27], s22 offen
    """)
    k.label("pre_kernel_end")
    k("s_endpgm")
    finish(k, (256,1,1), (1024,1,1), 2048, 88, 56)

def ln_core(k, X, T):
    S, U, M, R = T, T+1, T+2, T+3
    k(f"v_add_f32 v{S}, v{X}, v{X+1}")
    for i in range(2, 16):
        k(f"v_add_f32 v{S}, v{S}, v{X+i}")
    wave_sum(k, S, U)
    k(f"v_mul_f32 v{M}, 0x3a800000, v{S}")
    k(f"v_sub_f32 v{U}, v{X}, v{M}")
    k(f"v_mul_f32 v{S}, v{U}, v{U}")
    for i in range(1, 16):
        k(f"v_sub_f32 v{U}, v{X+i}, v{M}")
        k(f"v_fmac_f32 v{S}, v{U}, v{U}")
    wave_sum(k, S, U)
    k(f"v_mul_f32 v{S}, 0x3a800000, v{S}")
    round_bf16_pair(k, M, S, U)
    k(f"v_add_f32 v{S}, 0x3727c5ac, v{S}")
    k(f"v_cvt_pk_bf16_f32 v{S}, v{S}, v{S}")
    k(f"v_lshlrev_b32 v{S}, 16, v{S}")
    k(f"v_sqrt_f32 v{S}, v{S}")
    k("s_nop 0")
    k(f"v_cvt_pk_bf16_f32 v{S}, v{S}, v{S}")
    k(f"v_lshlrev_b32 v{S}, 16, v{S}")
    k(f"v_rcp_f32 v{R}, v{S}")
    for i in range(16):
        k(f"v_sub_f32 v{X+i}, v{X+i}, v{M}")
    for i in range(0, 16, 2):
        round_bf16_pair(k, X+i, X+i+1, U)
    for i in range(16):
        k(f"v_mul_f32 v{X+i}, v{X+i}, v{R}")
    for i in range(0, 16, 2):
        round_bf16_pair(k, X+i, X+i+1, U)

def modulate(k, X, C, Sh, T):
    for j in range(8):
        unpack_bf16(k, C+j, T)
        k(f"v_add_f32 v{T}, 1.0, v{T}")
        k(f"v_add_f32 v{T+1}, 1.0, v{T+1}")
        round_bf16_pair(k, T, T+1, T+2)
        k(f"v_mul_f32 v{X+2*j}, v{X+2*j}, v{T}")
        k(f"v_mul_f32 v{X+2*j+1}, v{X+2*j+1}, v{T+1}")
        round_bf16_pair(k, X+2*j, X+2*j+1, T+2)
        unpack_bf16(k, Sh+j, T)
        k(f"v_add_f32 v{X+2*j}, v{X+2*j}, v{T}")
        k(f"v_add_f32 v{X+2*j+1}, v{X+2*j+1}, v{T+1}")

def gen_ln1():
    k = K("ln1_kernel")
    k(f"""
    s_cmp_ge_u32 s2, 512
    s_cbranch_scc1 ln1_kernel_end
    s_load_dwordx2 s[4:5], s[0:1], {KA_X}
    s_load_dwordx2 s[8:9], s[0:1], {KA_WS}
    v_lshrrev_b32 v1, 6, v0
    v_and_b32 v2, 63, v0
    s_lshl_b32 s20, s2, 13
    v_lshlrev_b32 v3, 11, v1
    v_lshl_add_u32 v3, v2, 4, v3
    v_add_u32 v3, s20, v3
    v_lshlrev_b32 v4, 4, v2         ; lane*16
    s_waitcnt lgkmcnt(0)
    """)
    srd(k, 12, 4, 2048*1024*2)
    srd(k, 24, 8, WS_SIZE)
    k(f"""
    buffer_load_dwordx4 v[8:11], v3, s[12:15], 0 offen
    buffer_load_dwordx4 v[12:15], v3, s[12:15], 0 offen offset:1024
    buffer_load_dwordx4 v[40:43], v4, s[24:27], 0 offen offset:{WS_MOD}
    buffer_load_dwordx4 v[44:47], v4, s[24:27], 0 offen offset:{WS_MOD+1024}
    buffer_load_dwordx4 v[48:51], v4, s[24:27], 0 offen offset:{WS_MOD+2048}
    buffer_load_dwordx4 v[52:55], v4, s[24:27], 0 offen offset:{WS_MOD+3072}
    s_waitcnt vmcnt(4)
    """)
    for j in range(8):
        unpack_bf16(k, 8+j, 16+2*j)
    ln_core(k, 16, 32)
    k("s_waitcnt vmcnt(0)")
    modulate(k, 16, 48, 40, 32)
    for j in range(8):
        k(f"v_cvt_pk_bf16_f32 v{8+j}, v{16+2*j}, v{17+2*j}")
    k(f"""
    s_mov_b32 s21, {WS_H}
    buffer_store_dwordx4 v[8:11], v3, s[24:27], s21 offen
    buffer_store_dwordx4 v[12:15], v3, s[24:27], s21 offen offset:1024
    v_lshrrev_b32 v5, 9, v3
    v_and_b32 v5, 0xfffffffc, v5
    v_lshl_add_u32 v5, v2, 13, v5
    v_mov_b32 v6, 0
    s_mov_b32 s22, {WS_STAT}
    v_cmp_gt_u32 vcc, 3, v2
    s_and_saveexec_b64 s[28:29], vcc
    buffer_store_dword v6, v5, s[24:27], s22 offen
    """)
    k.label("ln1_kernel_end")
    k("s_endpgm")
    finish(k, (512,1,1), (256,1,1), 0, 56, 32)

QK_SCALE = 32 ** -0.5 * 1.4426950408889634
import struct
def f32bits(x):
    return struct.unpack("<I", struct.pack("<f", x))[0]

def gen_qkv():
    k = K("qkv_kernel")
    NST = 16
    A_SLOT = 16384
    B_BASE = 65536
    B_SLOT = 24576
    k(f"""
    s_cmp_ge_u32 s2, 256
    s_cbranch_scc1 qkv_kernel_end
    s_load_dwordx2 s[4:5], s[0:1], {KA_WQKV}
    s_load_dwordx2 s[6:7], s[0:1], {KA_WS}
    v_lshrrev_b32 v1, 6, v0
    v_and_b32 v2, 63, v0               ; lane
    s_and_b32 s20, s2, 7               ; x
    s_lshr_b32 s21, s2, 3              ; j
    v_readfirstlane_b32 s18, v1
    s_and_b32 s16, s20, 1
    s_lshl_b32 s16, s16, 3
    s_and_b32 s22, s21, 7
    s_add_u32 s16, s16, s22            ; bm
    s_lshr_b32 s17, s20, 1
    s_lshl_b32 s17, s17, 2
    s_lshr_b32 s22, s21, 3
    s_add_u32 s17, s17, s22            ; bn
    s_waitcnt lgkmcnt(0)
    """)
    srd(k, 8, 4, 1024*3072*2)
    srd(k, 12, 6, WS_SIZE)
    k(f"""
    s_cmp_ge_u32 s18, 4
    s_cbranch_scc1 qkv_producer
    """)
    k(f"""
    s_and_b32 s19, s18, 1              ; wm
    s_lshr_b32 s23, s18, 1             ; hd
    v_and_b32 v3, 31, v2               ; l&31
    v_lshrrev_b32 v4, 5, v2            ; hh
    v_lshrrev_b32 v5, 1, v3
    v_and_b32 v5, 7, v5                ; f = (t>>1)&7
    v_xor_b32 v5, v5, v4               ; hh ^ f
    v_lshlrev_b32 v5, 4, v5
    v_lshl_add_u32 v5, v3, 7, v5       ; (l&31)*128 + chunk*16
    s_lshl_b32 s24, s19, 13            ; wm*64*128
    v_add_u32 v8, s24, v5              ; vA[0]
    v_xor_b32 v9, 32, v8
    v_xor_b32 v10, 64, v8
    v_xor_b32 v11, 0x60, v8
    ; vB
    v_lshrrev_b32 v5, 2, v2
    v_and_b32 v5, 3, v5                ; r
    v_lshl_add_u32 v6, v4, 3, v5       ; 8hh + r
    v_lshlrev_b32 v6, 7, v6            ; *128
    v_lshrrev_b32 v5, 1, v5            ; r>>1
    v_xor_b32 v5, s23, v5              ; hd ^ (r>>1)
    v_lshl_add_u32 v6, v5, 6, v6
    v_lshrrev_b32 v5, 4, v2
    v_and_b32 v5, 1, v5                ; ng
    v_lshl_add_u32 v6, v5, 5, v6
    v_and_b32 v5, 3, v2                ; c
    v_lshl_add_u32 v6, v5, 3, v6
    v_add_u32 v12, {B_BASE}, v6
    v_add_u32 v13, {B_BASE + 2*B_SLOT}, v6
    """)
    ACC = 64
    SETS = [24, 44]
    for i in range(96):
        k(f"v_mov_b32 v{ACC+i}, 0")
    def reads(st, stage, ks):
        S = SETS[st]
        r = []
        slot = stage & 3; aslot = stage % 3
        r.append(f"ds_read_b128 v[{S}:{S+3}], v{8+ks} offset:{aslot*A_SLOT}")
        r.append(f"ds_read_b128 v[{S+4}:{S+7}], v{8+ks} offset:{aslot*A_SLOT+4096}")
        for seg in range(3):
            for j in range(2):
                d = S + 8 + 4*seg + 2*j
                r.append(f"ds_read_b64_tr_b16 v[{d}:{d+1}], v{12+(slot>>1)} offset:{(slot&1)*B_SLOT + seg*8192 + ks*2048 + j*512}")
        return r
    def mfmas(st):
        S = SETS[st]
        r = []
        for seg in range(3):
            for tt in range(2):
                a = ACC + 16*(2*seg + tt)
                W = f"v[{S+8+4*seg}:{S+11+4*seg}]"
                H = f"v[{S+4*tt}:{S+4*tt+3}]"
                if seg < 2:
                    r.append(f"v_mfma_f32_32x32x16_bf16 v[{a}:{a+15}], {W}, {H}, v[{a}:{a+15}]")
                else:
                    r.append(f"v_mfma_f32_32x32x16_bf16 v[{a}:{a+15}], {H}, {W}, v[{a}:{a+15}]")
        return r
    k("s_mov_b32 s25, 0")
    if 'noprio' not in FLAGS: k("s_setprio 3")
    stamp(k, 0)
    k("s_barrier")
    stamp(k, 1)
    for r in reads(0, 0, 0):
        k(r)
    cur = 0
    for stage in range(NST):
        for ks in range(4):
            m = mfmas(cur)
            if ks < 3:
                rd = reads(cur ^ 1, stage, ks + 1)
            elif stage + 1 < NST:
                rd = reads(cur ^ 1, stage + 1, 0)
            else:
                rd = [';']*8
            k("s_waitcnt lgkmcnt(0)")
            k(m[0])
            if ks == 3 and stage + 1 < NST:
                k("s_barrier")
            k(rd[2]); k(rd[3])
            k(m[1])
            k(rd[4]); k(rd[5])
            k(m[2])
            k(rd[0]); k(rd[6])
            k(m[3])
            k(rd[1]); k(rd[7])
            k(m[4])
            k(m[5])
            cur ^= 1
    stamp(k, 2)
    k(f"""
    s_lshl_b32 s26, s17, 1
    s_add_u32 s26, s26, s23            ; head
    s_lshl_b32 s26, s26, 17
    s_lshl_b32 s27, s16, 2
    s_lshl_b32 s28, s19, 1
    s_add_u32 s27, s27, s28
    s_lshl_b32 s27, s27, 11
    s_add_u32 s26, s26, s27
    s_add_u32 s28, s26, {WS_Q}
    s_add_u32 s29, s26, {WS_K}
    s_add_u32 s30, s26, {WS_V}
    s_mov_b32 s31, {f32bits(QK_SCALE)}
    v_lshlrev_b32 v3, 4, v2            ; lane*16
    s_nop 7
    """)
    for seg in range(3):
        for tt in range(2):
            a = ACC + 16*(2*seg + tt)
            if seg == 0:
                for i in range(16):
                    k(f"v_mul_f32 v{a+i}, s31, v{a+i}")
            for m in range(2):
                d = 24 + 4*((2*seg + tt)*2 + m) % 40
                d = 24 + (4*(((2*seg + tt)*2 + m) % 10))
                for i in range(4):
                    k(f"v_cvt_pk_bf16_f32 v{d+i}, v{a+8*m+2*i}, v{a+8*m+2*i+1}")
                k(f"buffer_store_dwordx4 v[{d}:{d+3}], v3, s[12:15], s{28+seg} offen offset:{tt*2048+m*1024}")
    if 'stamp' in FLAGS:
        k("s_waitcnt vmcnt(0)")
        stamp(k, 3)
        stamp_store(k, 4, 12, 2, 18, vt=160)
    k("s_endpgm")
    k.label("qkv_producer")
    k(f"""
    s_and_b32 s19, s18, 3              ; w
    v_lshrrev_b32 v3, 3, v2            ; l>>3
    s_lshl_b32 s23, s19, 3
    v_add_u32 v3, s23, v3              ; 8w + (l>>3)
    v_lshrrev_b32 v4, 4, v2            ; l>>4
    s_and_b32 s24, s19, 1
    s_lshl_b32 s24, s24, 2
    v_add_u32 v5, s24, v4              ; 4(w&1) + (l>>4)
    v_and_b32 v6, 7, v2
    v_xor_b32 v5, v5, v6
    v_lshlrev_b32 v5, 4, v5
    v_lshl_add_u32 v8, v3, 11, v5      ; vA
    s_mov_b32 s24, 6144
    v_mul_lo_u32 v9, v3, s24
    v_lshrrev_b32 v5, 2, v2
    v_xor_b32 v5, v5, v4
    v_and_b32 v5, 1, v5                ; hd
    v_lshl_add_u32 v9, v5, 6, v9
    v_and_b32 v5, 3, v2
    v_lshl_add_u32 v9, v5, 4, v9       ; vB
    s_lshl_b32 s25, s16, 18
    s_add_u32 s25, s25, {WS_H}
    s_lshl_b32 s26, s17, 7
    s_lshl_b32 s27, s19, 10            ; w*1024
    """)
    k(f"""
    v_and_b32 v10, 0x70, v8
    v_lshlrev_b32 v11, 4, v2
    v_add_u32 v11, s27, v11
    s_mov_b32 s29, {WS_MOD1 + 2048}    ; 1+ca
    s_mov_b32 s30, {WS_MOD}            ; sa
    """)
    vm = []
    def wait_tag(tag):
        idx = max(i for i, t in enumerate(vm) if t == tag)
        n = len(vm) - 1 - idx
        assert n <= 63
        k(f"s_waitcnt vmcnt({n})")
    NS_ = 4
    RS = [16 + 8*i for i in range(NS_)]
    TP = [48, 56, 64]
    TB = 72
    OUTS = [88, 96]
    TBL = 3*A_SLOT
    k(f"""
    s_lshr_b32 s33, s18, 3             ; h
    s_lshl_b32 s34, s33, 17            ; h*2*65536
    s_add_u32 s25, s25, s34
    s_lshl_b32 s34, s33, 13
    v_add_u32 v11, s34, v11
    s_mul_i32 s34, s33, {3*4096}
    s_add_u32 s35, s27, s34
    """)
    def issueA(s):
        R = RS[s % NS_]
        n = 2
        if s < 3:
            k(f"buffer_load_dwordx4 v[{TP[s]}:{TP[s]+3}], v10, s[12:15], s29 offen offset:{128*s}")
            k(f"buffer_load_dwordx4 v[{TP[s]+4}:{TP[s]+7}], v10, s[12:15], s30 offen offset:{128*s}")
            n = 4
        for i in range(2):
            k(f"s_add_u32 s28, s25, {i*65536 + s*128}")
            k(f"buffer_load_dwordx4 v[{R+4*i}:{R+4*i+3}], v8, s[12:15], s28 offen")
        vm.extend([('A', s)]*n)
    def boff(i): return (i & 1)*32*6144 + (i >> 1)*2048
    k(f"""
    s_mov_b32 s36, {boff(0)}
    s_mov_b32 s37, {boff(1)}
    s_mov_b32 s38, {boff(2)}
    s_cmp_eq_u32 s33, 0
    s_cselect_b32 s36, s36, {boff(3)}
    s_cselect_b32 s37, s37, {boff(4)}
    s_cselect_b32 s38, s38, {boff(5)}
    s_add_u32 s36, s36, s26
    s_add_u32 s37, s37, s26
    s_add_u32 s38, s38, s26
    """)
    def issueB(s):
        slot = s & 3
        for i in range(3):
            k(f"s_add_u32 m0, s35, {B_BASE + slot*B_SLOT + i*4096}")
            k(f"s_add_u32 s28, s{36+i}, {s*393216}")
            k(f"buffer_load_dwordx4 v9, s[8:11], s28 offen lds")
        vm.extend([('B', s)]*3)
    def TR(s):
        R = RS[s % NS_]
        T = TP[s] if s < 3 else TP[0]
        OUT = OUTS[s & 1]
        wait_tag(('A', s))
        if s >= 3: k("s_waitcnt lgkmcnt(0)")
        for j in range(4):
            unpack_bf16(k, T+j, TB+2*j)
            unpack_bf16(k, T+4+j, TB+8+2*j)
        if 3 <= s + 1 < NST:
            k(f"ds_read_b128 v[{TP[0]}:{TP[0]+3}], v10 offset:{TBL + 128*(s+1)}")
            k(f"ds_read_b128 v[{TP[0]+4}:{TP[0]+7}], v10 offset:{TBL + 2048 + 128*(s+1)}")
        for i in range(2):
            for j in range(4):
                x = R + 4*i + j; o = OUT + 4*i + j
                k(f"v_lshlrev_b32 v{o}, 16, v{x}")
                k(f"v_and_b32 v{x}, 0xffff0000, v{x}")
                k(f"v_fma_f32 v{o}, v{o}, v{TB+2*j}, v{TB+8+2*j}")
                k(f"v_fma_f32 v{x}, v{x}, v{TB+2*j+1}, v{TB+8+2*j+1}")
                k(f"v_cvt_pk_bf16_f32 v{o}, v{o}, v{x}")
    def WR(s):
        OUT = OUTS[s & 1]; aslot = s % 3
        for i in range(2):
            k(f"ds_write_b128 v11, v[{OUT+4*i}:{OUT+4*i+3}] offset:{aslot*A_SLOT + i*4096}")
    k(f"""
    s_cmp_lg_u32 s33, 0
    s_cbranch_scc1 qkv_notbl
    v_lshlrev_b32 v12, 4, v2
    s_and_b32 s31, s19, 1
    s_lshl_b32 s31, s31, 10
    s_cmp_ge_u32 s19, 2
    s_cselect_b32 s32, s30, s29
    s_add_u32 s31, s31, s32
    s_add_u32 m0, s27, {TBL}
    s_nop 0
    buffer_load_dwordx4 v12, s[12:15], s31 offen lds
qkv_notbl:
    """)
    for s_ in range(4):
        issueA(s_); issueB(s_)
    TR(0); WR(0); issueA(4)
    TR(1); WR(1); issueA(5)
    for b in range(NST):
        wait_tag(('B', b))
        k("s_waitcnt lgkmcnt(0)")
        if b == 9: stamp(k, 2, flag='pstamp')
        k("s_barrier")
        if b == 8: stamp(k, 0, flag='pstamp')
        if b == 9: stamp(k, 3, flag='pstamp')
        if b == 0:
            TR(2); WR(2); issueA(6)
        elif b + 2 < NST:
            WR(b + 2)
        if b >= 1 and b + 3 < NST:
            issueB(b + 3)
        if b == 8: stamp(k, 1, flag='pstamp')
        if b + 3 < NST:
            TR(b + 3)
            if b + 3 + NS_ < NST:
                issueA(b + 3 + NS_)
    if 'pstamp' in FLAGS:
        k("s_cmp_lt_u32 s18, 8")
        k("s_cbranch_scc1 qkv_kernel_end")
        k("s_sub_u32 s18, s18, 4")
        stamp_store(k, 4, 12, 2, 18, vt=150, flag='pstamp')
    k.label("qkv_kernel_end")
    k("s_endpgm")
    finish(k, (256,1,1), (768,1,1), 163840, 168 if 'stamp' in FLAGS else 160, 102 if 'stamp' in FLAGS else 40)

def gen_attn():
    k = K("attn_kernel")
    Q, NEGM, SA, SB, P, O, Lr, ONES = 8, 16, 32, 48, 64, 72, 88, 92
    KB = [96, 104]; VB = [112, 120]
    S = [SA, SB]
    SLOT = 32768
    k(f"""
    s_cmp_ge_u32 s2, 256
    s_cbranch_scc1 attn_kernel_end
    s_load_dwordx2 s[6:7], s[0:1], {KA_WS}
    s_load_dwordx4 s[36:39], s[0:1], {KA_WG}
    s_load_dwordx2 s[52:53], s[0:1], {KA_WD}
    s_load_dwordx2 s[54:55], s[0:1], {KA_WO}
    v_lshrrev_b32 v1, 6, v0
    v_and_b32 v6, 63, v0               ; lane
    s_and_b32 s20, s2, 7               ; x
    s_lshr_b32 s21, s2, 3              ; j
    v_readfirstlane_b32 s18, v1
    s_lshr_b32 s22, s21, 3
    s_lshl_b32 s22, s22, 3
    s_add_u32 s16, s20, s22            ; head
    s_and_b32 s17, s21, 7              ; qblock
    v_lshlrev_b32 v5, 4, v6            ; lane*16
    s_lshl_b32 s23, s16, 17            ; head*64*2048
    s_lshl_b32 s24, s17, 3
    s_add_u32 s24, s24, s18
    s_lshl_b32 s25, s24, 11
    s_add_u32 s25, s25, s23
    s_add_u32 s25, s25, {WS_Q}         ; Q soffset
    s_lshl_b32 s26, s18, 11            ; wave*2048
    s_add_u32 s26, s26, s23
    s_add_u32 s27, s26, {WS_V}
    s_add_u32 s26, s26, {WS_K}
    s_lshl_b32 s28, s18, 12
    s_waitcnt lgkmcnt(0)
    """)
    srd(k, 12, 6, WS_SIZE)
    PF = 128
    k(f"""
    s_lshl_b32 s56, s21, 3
    s_add_u32 s56, s56, s18
    s_and_b32 s57, s56, 127            ; kq8
    s_cmp_ge_u32 s56, 128
    s_cselect_b32 s36, s38, s36
    s_cselect_b32 s37, s39, s37
    s_cselect_b32 s58, 0x800000, 0
    """)
    srd(k, 40, 36, 1024*3584*2)
    srd(k, 44, 52, 3584*1024*2)
    srd(k, 48, 54, 1024*1024*2)
    k(f"""
    s_mul_i32 s59, s57, {8*7168}
    s_mul_i32 s60, s20, {7*128}
    s_add_u32 s59, s59, s60
    s_mul_i32 s60, s20, {7*4*32768}
    s_add_u32 s60, s60, s58
    s_lshl_b32 s57, s57, 8
    s_add_u32 s60, s60, s57
    s_add_u32 s60, s60, {WS_G}
    s_mul_i32 s61, s20, {28*32768}
    s_mul_i32 s62, s56, 3584
    s_add_u32 s61, s61, s62
    s_and_b32 s62, s20, 1
    s_lshl_b32 s62, s62, 10
    s_lshl_b32 s63, s56, 13
    s_add_u32 s62, s62, s63
    v_lshrrev_b32 v1, 3, v6            ; l>>3
    v_and_b32 v7, 7, v6
    s_mov_b32 s63, 7168
    v_mul_lo_u32 v{PF}, v1, s63
    v_lshl_add_u32 v{PF}, v7, 4, v{PF}
    v_lshrrev_b32 v{PF+1}, 1, v7
    v_lshlrev_b32 v{PF+1}, 15, v{PF+1}
    v_lshl_add_u32 v{PF+1}, v1, 5, v{PF+1}
    v_and_b32 v7, 1, v6
    v_lshl_add_u32 v{PF+1}, v7, 4, v{PF+1}
    v_lshlrev_b32 v{PF+2}, 3, v6                ; lane*8
    """)
    def side():
        l1, l2, l3 = k.newlabel("sj"), k.newlabel("sj"), k.newlabel("sj")
        k(f"""
        s_cmp_eq_u32 s33, 0
        s_cbranch_scc1 {l1}
        buffer_store_dwordx4 v[{PF+4}:{PF+7}], v{PF+1}, s[12:15], s60 offen {os.environ.get('SJST','sc1')}
        s_add_u32 s60, s60, {4*32768}
        """)
        k.label(l1)
        k(f"""
        s_cmp_eq_u32 s33, 7
        s_cbranch_scc1 {l3}
        buffer_load_dwordx4 v[{PF+4}:{PF+7}], v{PF}, s[40:43], s59 offen
        buffer_load_dwordx2 v[{PF+8}:{PF+9}], v{PF+2}, s[44:47], s61 offen
        s_add_u32 s59, s59, 128
        s_add_u32 s61, s61, 512
        s_cmp_ge_u32 s33, 4
        s_cbranch_scc1 {l3}
        buffer_load_dwordx4 v[{PF+12}:{PF+15}], v5, s[48:51], s62 offen
        s_add_u32 s62, s62, 2048
        """)
        k.label(l3)
    def dma(slot_sreg_or_imm):
        if isinstance(slot_sreg_or_imm, int):
            k(f"s_add_u32 m0, s28, {slot_sreg_or_imm}")
        else:
            k(f"s_add_u32 m0, s28, {slot_sreg_or_imm}")
        k("s_nop 0")
        k("buffer_load_dwordx4 v5, s[12:15], s26 offen lds")
        k("buffer_load_dwordx4 v5, s[12:15], s26 offen offset:1024 lds")
        k("s_add_u32 m0, m0, 2048")
        k("s_add_u32 s26, s26, 16384")
        k("buffer_load_dwordx4 v5, s[12:15], s27 offen lds")
        k("buffer_load_dwordx4 v5, s[12:15], s27 offen offset:1024 lds")
        k("s_add_u32 s27, s27, 16384")
    k(f"""
    buffer_load_dwordx4 v[{Q}:{Q+3}], v5, s[12:15], s25 offen
    buffer_load_dwordx4 v[{Q+4}:{Q+7}], v5, s[12:15], s25 offen offset:1024
    """)
    dma(0)
    dma(SLOT)
    k(f"""
    v_lshrrev_b32 v1, 2, v6
    v_xor_b32 v1, v1, v6
    v_and_b32 v1, 4, v1
    v_cmp_eq_u32 vcc, 0, v1
    v_mov_b32 v7, 0x3f803f80
    s_nop 1
    v_cndmask_b32 v{ONES}, 0, v7, vcc
    v_cndmask_b32 v{ONES+1}, 0, v7, vcc
    v_cndmask_b32 v{ONES+2}, 0, v7, vcc
    v_cndmask_b32 v{ONES+3}, 0, v7, vcc
    v_mov_b32 v2, v5
    v_add_u32 v3, {SLOT}, v5
    s_mov_b32 s30, 0
    s_mov_b32 s31, {SLOT}
    s_mov_b32 s32, {2*SLOT}
    s_mov_b32 s33, 0                   ; stage
    """)
    for i in range(16):
        k(f"v_mov_b32 v{O+i}, 0")
    for i in range(4):
        k(f"v_mov_b32 v{Lr+i}, 0")
    stamp(k, 0, flag='astamp')
    k(f"""
    s_waitcnt vmcnt(4)
    s_barrier
    """)
    stamp(k, 1, flag='astamp')
    k(f"""
    ds_read_b128 v[{KB[0]}:{KB[0]+3}], v2 offset:0
    ds_read_b128 v[{KB[0]+4}:{KB[0]+7}], v2 offset:1024
    ds_read_b128 v[{KB[1]}:{KB[1]+3}], v2 offset:4096
    ds_read_b128 v[{KB[1]+4}:{KB[1]+7}], v2 offset:{4096+1024}
    ds_read_b128 v[{VB[0]}:{VB[0]+3}], v2 offset:2048
    ds_read_b128 v[{VB[0]+4}:{VB[0]+7}], v2 offset:3072
    s_waitcnt lgkmcnt(4)
    v_mfma_f32_32x32x16_bf16 v[{SA}:{SA+15}], v[{KB[0]}:{KB[0]+3}], v[{Q}:{Q+3}], 0
    v_mfma_f32_32x32x16_bf16 v[{SA}:{SA+15}], v[{KB[0]+4}:{KB[0]+7}], v[{Q+4}:{Q+7}], v[{SA}:{SA+15}]
    s_nop 15
    s_nop 3
    """)
    def tile_max(src, d, t):
        k(f"v_max3_f32 v{d}, v{src}, v{src+1}, v{src+2}")
        for i in range(3, 15, 2):
            k(f"v_max3_f32 v{d}, v{d}, v{src+i}, v{src+i+1}")
        k(f"v_max_f32 v{d}, v{d}, v{src+15}")
        k(f"v_mov_b32 v{t}, v{d}")
        k("s_nop 1")
        k(f"v_permlane32_swap_b32 v{d}, v{t}")
        k("s_nop 0")
        k(f"v_max_f32 v{d}, v{d}, v{t}")
    tile_max(SA, 1, 7)
    for i in range(16):
        k(f"v_sub_f32 v{NEGM+i}, 0, v1")
    k(f"""
    s_nop 1
    v_mfma_f32_32x32x16_bf16 v[{SA}:{SA+15}], v[{KB[0]}:{KB[0]+3}], v[{Q}:{Q+3}], v[{NEGM}:{NEGM+15}]
    v_mfma_f32_32x32x16_bf16 v[{SA}:{SA+15}], v[{KB[0]+4}:{KB[0]+7}], v[{Q+4}:{Q+7}], v[{SA}:{SA+15}]
    s_nop 11
    """)
    k.label("attn_loop")
    for i in range(8):
        c = i & 1; n = c ^ 1
        Sc, Sn = S[c], S[n]
        Kn, Kc = KB[n], KB[c]
        Vc, Vn = VB[c], VB[n]
        k2 = ("v2", (i+2)*4096) if i + 2 < 8 else ("v3", (i+2-8)*4096)
        v1_ = ("v2", (i+1)*4096) if i + 1 < 8 else ("v3", (i+1-8)*4096)
        if i == 6:
            lab = k.newlabel("nodma")
            k(f"""
            s_waitcnt vmcnt(0)
            s_barrier
            s_cmp_ge_u32 s33, 6
            s_cbranch_scc1 {lab}
            """)
            dma("s32")
            k.label(lab)
            if 'noside' not in FLAGS: side()
        k(f"""
        s_waitcnt lgkmcnt(2)
        v_mfma_f32_32x32x16_bf16 v[{Sn}:{Sn+15}], v[{Kn}:{Kn+3}], v[{Q}:{Q+3}], v[{NEGM}:{NEGM+15}]
        """)
        for e in range(0, 4):
            k(f"v_exp_f32 v{Sc+e}, v{Sc+e}")
        k(f"v_mfma_f32_32x32x16_bf16 v[{Sn}:{Sn+15}], v[{Kn+4}:{Kn+7}], v[{Q+4}:{Q+7}], v[{Sn}:{Sn+15}]")
        k(f"ds_read_b128 v[{Kc}:{Kc+3}], {k2[0]} offset:{k2[1]}")
        k(f"ds_read_b128 v[{Kc+4}:{Kc+7}], {k2[0]} offset:{k2[1]+1024}")
        for e in range(4, 8):
            k(f"v_exp_f32 v{Sc+e}, v{Sc+e}")
        k(f"ds_read_b128 v[{Vn}:{Vn+3}], {v1_[0]} offset:{v1_[1]+2048}")
        k(f"ds_read_b128 v[{Vn+4}:{Vn+7}], {v1_[0]} offset:{v1_[1]+3072}")
        for e in range(4):
            k(f"v_cvt_pk_bf16_f32 v{P+e}, v{Sc+2*e}, v{Sc+2*e+1}")
        for e in range(8, 12):
            k(f"v_exp_f32 v{Sc+e}, v{Sc+e}")
        k("s_waitcnt lgkmcnt(4)")
        k(f"v_mfma_f32_32x32x16_bf16 v[{O}:{O+15}], v[{Vc}:{Vc+3}], v[{P}:{P+3}], v[{O}:{O+15}]")
        for e in range(12, 16):
            k(f"v_exp_f32 v{Sc+e}, v{Sc+e}")
        k(f"v_mfma_f32_16x16x32_bf16 v[{Lr}:{Lr+3}], v[{ONES}:{ONES+3}], v[{P}:{P+3}], v[{Lr}:{Lr+3}]")
        for e in range(4, 8):
            k(f"v_cvt_pk_bf16_f32 v{P+e}, v{Sc+2*e}, v{Sc+2*e+1}")
        k("s_nop 1")
        k(f"v_mfma_f32_32x32x16_bf16 v[{O}:{O+15}], v[{Vc+4}:{Vc+7}], v[{P+4}:{P+7}], v[{O}:{O+15}]")
        k(f"v_mfma_f32_16x16x32_bf16 v[{Lr}:{Lr+3}], v[{ONES}:{ONES+3}], v[{P+4}:{P+7}], v[{Lr}:{Lr+3}]")
    k(f"""
    s_mov_b32 s34, s30
    s_mov_b32 s30, s31
    s_mov_b32 s31, s32
    s_mov_b32 s32, s34
    v_mov_b32 v2, v3
    v_add_u32 v3, s31, v5
    s_add_u32 s33, s33, 1
    s_cmp_lt_u32 s33, 8
    s_cbranch_scc1 attn_loop
    s_waitcnt lgkmcnt(0)
    s_nop 15
    """)
    stamp(k, 2, flag='astamp')
    k(f"v_mul_f32 v1, 0, v{O}")
    for i in range(1, 16):
        k(f"v_fmac_f32 v1, 0, v{O+i}")
    k(f"""
    v_add_f32 v1, v1, v{Lr}
    s_mov_b32 s34, {0 if 'forcesafe' in FLAGS else 0x4e800000}          ; 2^30
    v_cmp_nlt_f32 vcc, v1, s34
    s_nop 1
    s_cmp_lg_u64 vcc, 0
    s_cbranch_scc1 attn_safe
    """)
    k.label("attn_fin")
    k(f"""
    v_rcp_f32 v1, v{Lr}
    s_lshl_b32 s25, s24, 5
    s_add_u32 s25, s25, s16
    s_lshl_b32 s25, s25, 11
    s_add_u32 s25, s25, {WS_O}
    """)
    for i in range(16):
        k(f"v_mul_f32 v{O+i}, v{O+i}, v1")
    for e in range(8):
        k(f"v_cvt_pk_bf16_f32 v{P+e}, v{O+2*e}, v{O+2*e+1}")
    k(f"""
    buffer_store_dwordx4 v[{P}:{P+3}], v5, s[12:15], s25 offen
    buffer_store_dwordx4 v[{P+4}:{P+7}], v5, s[12:15], s25 offen offset:1024
    """)
    if 'astamp' in FLAGS:
        k("s_waitcnt vmcnt(0)")
        stamp(k, 3, flag='astamp')
        stamp_store(k, 4, 12, 2, 18, flag='astamp')
    k("s_endpgm")
    k.label("attn_safe")
    M = 2; AL = 3
    k(f"""
    s_add_u32 s26, s23, {WS_K}
    s_add_u32 s27, s23, {WS_V}
    s_mov_b32 s33, 0
    v_mov_b32 v{M}, 0xff7fffff
    """)
    for i in range(16):
        k(f"v_mov_b32 v{O+i}, 0")
    for i in range(4):
        k(f"v_mov_b32 v{Lr+i}, 0")
    k.label("attn_safe_loop")
    k(f"""
    buffer_load_dwordx4 v[{KB[0]}:{KB[0]+3}], v5, s[12:15], s26 offen
    buffer_load_dwordx4 v[{KB[0]+4}:{KB[0]+7}], v5, s[12:15], s26 offen offset:1024
    buffer_load_dwordx4 v[{VB[0]}:{VB[0]+3}], v5, s[12:15], s27 offen
    buffer_load_dwordx4 v[{VB[0]+4}:{VB[0]+7}], v5, s[12:15], s27 offen offset:1024
    s_add_u32 s26, s26, 2048
    s_add_u32 s27, s27, 2048
    s_waitcnt vmcnt(0)
    v_mfma_f32_32x32x16_bf16 v[{SA}:{SA+15}], v[{KB[0]}:{KB[0]+3}], v[{Q}:{Q+3}], 0
    v_mfma_f32_32x32x16_bf16 v[{SA}:{SA+15}], v[{KB[0]+4}:{KB[0]+7}], v[{Q+4}:{Q+7}], v[{SA}:{SA+15}]
    s_nop 15
    s_nop 3
    """)
    tile_max(SA, 1, 7)
    k(f"""
    v_max_f32 v1, v1, v{M}
    v_sub_f32 v{AL}, v{M}, v1
    v_exp_f32 v{AL}, v{AL}
    v_mov_b32 v{M}, v1
    """)
    for i in range(16):
        k(f"v_sub_f32 v{SA+i}, v{SA+i}, v1")
    for i in range(16):
        k(f"v_exp_f32 v{SA+i}, v{SA+i}")
    for i in range(16):
        k(f"v_mul_f32 v{O+i}, v{O+i}, v{AL}")
    for i in range(4):
        k(f"v_mul_f32 v{Lr+i}, v{Lr+i}, v{AL}")
    for e in range(8):
        k(f"v_cvt_pk_bf16_f32 v{P+e}, v{SA+2*e}, v{SA+2*e+1}")
    k(f"""
    s_nop 1
    v_mfma_f32_32x32x16_bf16 v[{O}:{O+15}], v[{VB[0]}:{VB[0]+3}], v[{P}:{P+3}], v[{O}:{O+15}]
    v_mfma_f32_16x16x32_bf16 v[{Lr}:{Lr+3}], v[{ONES}:{ONES+3}], v[{P}:{P+3}], v[{Lr}:{Lr+3}]
    v_mfma_f32_32x32x16_bf16 v[{O}:{O+15}], v[{VB[0]+4}:{VB[0]+7}], v[{P+4}:{P+7}], v[{O}:{O+15}]
    v_mfma_f32_16x16x32_bf16 v[{Lr}:{Lr+3}], v[{ONES}:{ONES+3}], v[{P+4}:{P+7}], v[{Lr}:{Lr+3}]
    s_nop 15
    s_nop 3
    s_add_u32 s33, s33, 1
    s_cmp_lt_u32 s33, 64
    s_cbranch_scc1 attn_safe_loop
    s_branch attn_fin
    """)
    k.label("attn_kernel_end")
    k("s_endpgm")
    finish(k, (256,1,1), (512,1,1), 3*SLOT, 256 if 'astamp' in FLAGS else 144, 102 if 'astamp' in FLAGS else 72)

def gen_wo():
    k = K("wo_kernel")
    NST, R = 16, 6
    SLOT = 24576
    WOFF = 8192
    k(f"""
    s_cmp_ge_u32 s2, 256
    s_cbranch_scc1 wo_kernel_end
    s_load_dwordx2 s[4:5], s[0:1], {KA_WO}
    s_load_dwordx2 s[6:7], s[0:1], {KA_WS}
    s_load_dwordx2 s[36:37], s[0:1], {KA_X}
    s_load_dwordx2 s[38:39], s[0:1], {KA_WR}
    v_lshrrev_b32 v1, 6, v0
    v_and_b32 v2, 63, v0               ; lane
    s_and_b32 s20, s2, 7               ; x
    s_lshr_b32 s21, s2, 3              ; j
    v_readfirstlane_b32 s18, v1
    s_lshr_b32 s16, s20, 1
    s_lshl_b32 s16, s16, 3
    s_and_b32 s22, s21, 7
    s_add_u32 s16, s16, s22            ; bm (0..31)
    s_and_b32 s17, s20, 1
    s_lshl_b32 s17, s17, 2
    s_lshr_b32 s22, s21, 3
    s_add_u32 s17, s17, s22            ; bn (0..7)
    s_waitcnt lgkmcnt(0)
    """)
    srd(k, 8, 4, 1024*1024*2)
    srd(k, 12, 6, WS_SIZE)
    k(f"""
    s_cmp_ge_u32 s18, 4
    s_cbranch_scc1 wo_producer
    """)
    srd(k, 40, 36, 2048*1024*2)
    srd(k, 44, 38, 2048)
    XR, GA, CB, WR = 128, 144, 152, 160
    k(f"""
    v_and_b32 v3, 31, v2               ; tok
    v_lshrrev_b32 v4, 5, v2            ; hh
    v_lshlrev_b32 v5, 11, v3
    v_lshl_add_u32 v5, v4, 3, v5
    s_lshl_b32 s24, s16, 17            ; bm*64*2048
    s_lshl_b32 s25, s17, 8             ; bn*256
    s_lshl_b32 s26, s18, 6             ; w*64
    s_add_u32 s25, s25, s26
    s_add_u32 s26, s24, s25
    s_add_u32 s27, s26, 65536          ; tt=1
    v_lshlrev_b32 v6, 3, v4            ; hh*8
    s_add_u32 s28, s25, {WS_MOD + 2*2048}   ; ga
    s_add_u32 s29, s25, {WS_MOD + 4*2048}   ; cb
    """)
    for tt in range(2):
        for q in range(4):
            r = XR + 8*tt + 2*q
            k(f"buffer_load_dwordx2 v[{r}:{r+1}], v5, s[40:43], s{26+tt} offen offset:{16*q}")
    for q in range(4):
        k(f"buffer_load_dwordx2 v[{GA+2*q}:{GA+2*q+1}], v6, s[12:15], s28 offen offset:{16*q}")
        k(f"buffer_load_dwordx2 v[{CB+2*q}:{CB+2*q+1}], v6, s[12:15], s29 offen offset:{16*q}")
        k(f"buffer_load_dwordx2 v[{WR+2*q}:{WR+2*q+1}], v6, s[44:47], s25 offen offset:{16*q}")
    k(f"""
    v_lshlrev_b32 v8, 4, v2
    v_add_u32 v9, {2*SLOT}, v8
    v_add_u32 v10, {4*SLOT}, v8
    v_lshrrev_b32 v7, 2, v2
    v_and_b32 v7, 3, v7                ; r
    v_lshl_add_u32 v11, v4, 2, v7      ; 4hh + r
    v_lshlrev_b32 v11, 8, v11          ; *256
    v_xor_b32 v7, s18, v7              ; w ^ r
    v_lshl_add_u32 v11, v7, 6, v11
    v_lshrrev_b32 v7, 4, v2
    v_and_b32 v7, 1, v7                ; ng
    v_lshl_add_u32 v11, v7, 5, v11
    v_and_b32 v7, 3, v2
    v_lshl_add_u32 v11, v7, 3, v11
    v_add_u32 v11, {WOFF}, v11
    v_add_u32 v12, {2*SLOT}, v11
    v_add_u32 v13, {4*SLOT}, v11
    """)
    ACC = 16
    SETS = [48, 96 - 0]
    SETS = [48, 176]
    for i in range(32):
        k(f"v_mov_b32 v{ACC+i}, 0")
    def reads(st, s):
        S = SETS[st]; slot = s % R
        r = []
        for ks in range(4):
            b = S + 12*ks
            base = (slot & 1)*SLOT
            r.append(f"ds_read_b64_tr_b16 v[{b+8}:{b+9}], v{11+(slot>>1)} offset:{base + ks*4096}")
            r.append(f"ds_read_b64_tr_b16 v[{b+10}:{b+11}], v{11+(slot>>1)} offset:{base + ks*4096 + 2048}")
            r.append(f"ds_read_b128 v[{b}:{b+3}], v{8+(slot>>1)} offset:{base + ks*1024}")
            r.append(f"ds_read_b128 v[{b+4}:{b+7}], v{8+(slot>>1)} offset:{base + 4096 + ks*1024}")
        return r
    def mfmas(st):
        S = SETS[st]; r = []
        for ks in range(4):
            b = S + 12*ks
            for tt in range(2):
                a = ACC + 16*tt
                r.append(f"v_mfma_f32_32x32x16_bf16 v[{a}:{a+15}], v[{b+8}:{b+11}], v[{b+4*tt}:{b+4*tt+3}], v[{a}:{a+15}]")
        return r
    k("s_barrier")
    for r in reads(0, 0):
        k(r)
    for s in range(NST):
        m = mfmas(s & 1)
        k("s_waitcnt lgkmcnt(0)")
        k(m[0])
        if s + 1 < NST:
            k("s_barrier")
            rd = reads((s + 1) & 1, s + 1)
        else:
            rd = []
        for i in range(1, 8):
            for r in rd[(i-1)*3:(i-1)*3+3]:
                k(r)
            k(m[i])
    U = 48; G = 64; T = 80; ST = 84
    k("s_waitcnt vmcnt(0)")
    for j in range(8):
        unpack_bf16(k, GA+j, G+2*j)
        unpack_bf16(k, CB+j, U+2*j)
        k(f"v_add_f32 v{U+2*j}, 1.0, v{U+2*j}")
        k(f"v_add_f32 v{U+2*j+1}, 1.0, v{U+2*j+1}")
        round_bf16_pair(k, U+2*j, U+2*j+1, T)
        unpack_bf16(k, WR+j, T)
        k(f"v_mul_f32 v{U+2*j}, v{U+2*j}, v{T}")
        k(f"v_mul_f32 v{U+2*j+1}, v{U+2*j+1}, v{T+1}")
    k(f"""
    v_lshlrev_b32 v5, 11, v3
    v_lshl_add_u32 v5, v4, 4, v5
    s_add_u32 s26, s26, {WS_X1}
    s_add_u32 s27, s27, {WS_X1}
    """)
    for tt in range(2):
        a = ACC + 16*tt
        s1, s2_, s3 = ST + 3*tt, ST + 3*tt + 1, ST + 3*tt + 2
        for j in range(8):
            x0, x1 = a + 2*j, a + 2*j + 1
            round_bf16_pair(k, x0, x1, T)
            k(f"v_mul_f32 v{x0}, v{x0}, v{G+2*j}")
            k(f"v_mul_f32 v{x1}, v{x1}, v{G+2*j+1}")
            round_bf16_pair(k, x0, x1, T)
            unpack_bf16(k, XR + 8*tt + j, T)
            k(f"v_add_f32 v{x0}, v{x0}, v{T}")
            k(f"v_add_f32 v{x1}, v{x1}, v{T+1}")
            d = XR + 8*tt + j
            k(f"v_cvt_pk_bf16_f32 v{d}, v{x0}, v{x1}")
            k(f"v_lshlrev_b32 v{x0}, 16, v{d}")
            k(f"v_and_b32 v{x1}, 0xffff0000, v{d}")
            if j == 0:
                k(f"v_add_f32 v{s1}, v{x0}, v{x1}")
                k(f"v_mul_f32 v{s2_}, v{x0}, v{x0}")
                k(f"v_mul_f32 v{s3}, v{x0}, v{U+2*j}")
            else:
                k(f"v_add_f32 v{s1}, v{s1}, v{x0}")
                k(f"v_add_f32 v{s1}, v{s1}, v{x1}")
                k(f"v_fmac_f32 v{s2_}, v{x0}, v{x0}")
                k(f"v_fmac_f32 v{s3}, v{x0}, v{U+2*j}")
            k(f"v_fmac_f32 v{s2_}, v{x1}, v{x1}")
            k(f"v_fmac_f32 v{s3}, v{x1}, v{U+2*j+1}")
        for q in (0, 2):
            d = XR + 8*tt + 2*q
            k("s_nop 1")
            k(f"v_permlane32_swap_b32 v{d}, v{d+2}")
            k(f"v_permlane32_swap_b32 v{d+1}, v{d+3}")
            k(f"buffer_store_dwordx4 v[{d}:{d+3}], v5, s[12:15], s{26+tt} offen offset:{16*q}")
    k(f"""
    v_lshlrev_b32 v5, 2, v2            ; lane*4
    s_lshl_b32 s26, s16, 8
    s_add_u32 s26, s26, {WS_STAT}
    s_add_u32 s27, s26, 8192
    s_add_u32 s28, s26, 16384
    s_nop 1
    """)
    for i in range(3):
        k(f"v_permlane32_swap_b32 v{ST+i}, v{ST+3+i}")
    k("s_nop 0")
    for i in range(3):
        k(f"v_add_f32 v{ST+i}, v{ST+i}, v{ST+3+i}")
    for i in range(3):
        k(f"buffer_atomic_add_f32 v{ST+i}, v5, s[12:15], s{26+i} offen")
    k("s_endpgm")
    k.label("wo_producer")
    k(f"""
    s_sub_u32 s19, s18, 4              ; w
    v_lshlrev_b32 v8, 4, v2            ; o: lane*16
    v_lshrrev_b32 v3, 4, v2
    s_lshl_b32 s23, s19, 2
    v_add_u32 v4, s23, v3              ; 4w + row
    v_lshlrev_b32 v9, 11, v4
    v_lshrrev_b32 v5, 2, v2
    v_xor_b32 v5, v5, v3
    v_and_b32 v5, 3, v5
    v_lshl_add_u32 v9, v5, 6, v9
    v_and_b32 v5, 3, v2
    v_lshl_add_u32 v9, v5, 4, v9       ; vW
    s_lshl_b32 s25, s16, 1
    s_lshr_b32 s24, s19, 1
    s_add_u32 s25, s25, s24            ; T = 2bm + (w>>1)
    s_lshl_b32 s25, s25, 16
    s_and_b32 s24, s19, 1
    s_lshl_b32 s24, s24, 11
    s_add_u32 s25, s25, s24
    s_add_u32 s25, s25, {WS_O}
    s_lshl_b32 s26, s17, 8
    s_lshl_b32 s27, s19, 11
    s_lshl_b32 s29, s19, 10
    """)
    def issue(s):
        slot = s % R
        k(f"s_add_u32 m0, s27, {slot*SLOT}")
        k(f"s_add_u32 s28, s25, {s*4096}")
        k(f"buffer_load_dwordx4 v8, s[12:15], s28 offen lds")
        k(f"buffer_load_dwordx4 v8, s[12:15], s28 offen offset:1024 lds")
        for i in range(4):
            k(f"s_add_u32 m0, s29, {slot*SLOT + WOFF + i*4096}")
            k(f"s_add_u32 s28, s26, {(s*64 + i*16)*2048}")
            k(f"buffer_load_dwordx4 v9, s[8:11], s28 offen lds")
    for s in range(R):
        issue(s)
    issued = R
    for b in range(NST):
        k(f"s_waitcnt vmcnt({6*(issued - b - 1)})")
        k("s_barrier")
        if b >= 1 and b - 1 + R < NST:
            issue(b - 1 + R)
            issued += 1
    k.label("wo_kernel_end")
    k("s_endpgm")
    finish(k, (256,1,1), (512,1,1), R*SLOT, 224, 48)

def wave_red_u32max(k, v, t):
    k(f"""
    s_nop 1
    v_max_u32_dpp v{t}, v{v}, v{v} quad_perm:[1,0,3,2] row_mask:0xf bank_mask:0xf
    s_nop 1
    v_max_u32_dpp v{v}, v{t}, v{t} quad_perm:[2,3,0,1] row_mask:0xf bank_mask:0xf
    s_nop 1
    v_max_u32_dpp v{t}, v{v}, v{v} row_half_mirror row_mask:0xf bank_mask:0xf
    s_nop 1
    v_max_u32_dpp v{v}, v{t}, v{t} row_mirror row_mask:0xf bank_mask:0xf
    s_nop 0
    v_mov_b32 v{t}, v{v}
    s_nop 1
    v_permlane16_swap_b32 v{v}, v{t}
    s_nop 0
    v_max_u32 v{v}, v{v}, v{t}
    v_mov_b32 v{t}, v{v}
    s_nop 1
    v_permlane32_swap_b32 v{v}, v{t}
    s_nop 0
    v_max_u32 v{v}, v{v}, v{t}
    """)

def round_bf16(k, a):
    k(f"v_cvt_pk_bf16_f32 v{a}, v{a}, v{a}")
    k(f"v_lshlrev_b32 v{a}, 16, v{a}")

NGEMV = 224
def gen_moe():
    k = K("moe_kernel")
    k(f"""
    s_cmp_ge_u32 s2, {NGEMV + 256}
    s_cbranch_scc1 moe_kernel_end
    s_load_dwordx2 s[6:7], s[0:1], {KA_WS}
    s_load_dwordx2 s[36:37], s[0:1], {KA_WG}
    s_load_dwordx2 s[38:39], s[0:1], {KA_WU}
    s_load_dwordx2 s[40:41], s[0:1], {KA_WD}
    s_load_dwordx2 s[42:43], s[0:1], {KA_WR}
    s_load_dwordx2 s[44:45], s[0:1], {KA_OUT}
    v_lshrrev_b32 v1, 6, v0
    v_and_b32 v2, 63, v0               ; lane
    s_nop 0
    v_readfirstlane_b32 s18, v1
    v_lshlrev_b32 v4, 4, v2            ; lane*16
    s_waitcnt lgkmcnt(0)
    """)
    srd(k, 12, 6, WS_SIZE)
    k(f"""
    s_cmp_ge_u32 s2, {NGEMV}
    s_cbranch_scc1 {'moe_kernel_end' if 'noln2' in FLAGS else 'moe_ln2'}
    """)
    if 'nogemv' in FLAGS: k("s_endpgm")
    stamp(k, 0, 72, 'mstamp')
    srd(k, 48, 36, 1024*3584*2)
    srd(k, 52, 38, 1024*3584*2)
    srd(k, 56, 40, 3584*1024*2)
    srd(k, 60, 42, 2048)
    GW, UW, DW, STT = 64, 80, 96, 112
    k(f"""
    s_and_b32 s69, s2, 7
    s_mul_i32 s69, s69, 28
    s_lshr_b32 s24, s2, 3
    s_add_u32 s69, s69, s24
    v_lshlrev_b32 v5, 4, v0            ; t*16
    s_mov_b32 s20, {WS_STAT}
    s_mov_b32 s21, {WS_STAT + 8192}
    s_mov_b32 s22, {WS_STAT + 16384}
    buffer_load_dwordx4 v[{STT}:{STT+3}], v5, s[12:15], s20 offen
    buffer_load_dwordx4 v[{STT+4}:{STT+7}], v5, s[12:15], s21 offen
    buffer_load_dwordx4 v[{STT+8}:{STT+11}], v5, s[12:15], s22 offen
    v_lshlrev_b32 v6, 2, v0            ; t*4
    s_mov_b32 s23, {WS_MOD + 4*2048}
    buffer_load_dword v8, v6, s[12:15], s23 offen
    buffer_load_dword v9, v6, s[60:63], 0 offen       ; w_r pair
    v_lshlrev_b32 v7, 4, v0
    s_lshl_b32 s24, s69, 15            ; cg*32768
    s_add_u32 s24, s24, {WS_G}
    s_add_u32 s25, s24, 0x800000
    s_add_u32 s26, s24, 16384
    s_add_u32 s27, s25, 16384
    """)
    for i in range(4):
        k(f"buffer_load_dwordx4 v[{GW+4*i}:{GW+4*i+3}], v7, s[12:15], s{24+2*(i>>1)} offen{' offset:%d' % 0 if False else ''}" if not (i & 1) else f"buffer_load_dwordx4 v[{GW+4*i}:{GW+4*i+3}], v10, s[12:15], s{24+2*(i>>1)} offen")
        k(f"buffer_load_dwordx4 v[{UW+4*i}:{UW+4*i+3}], v7, s[12:15], s{25+2*(i>>1)} offen" if not (i & 1) else f"buffer_load_dwordx4 v[{UW+4*i}:{UW+4*i+3}], v10, s[12:15], s{25+2*(i>>1)} offen")
        if i == 0: k("v_add_u32 v10, 8192, v7")
    k(f"""
    v_lshrrev_b32 v10, 7, v0           ; fq
    v_and_b32 v11, 127, v0             ; dg
    v_lshlrev_b32 v11, 4, v11
    v_lshl_add_u32 v124, v10, 13, v11
    s_lshl_b32 s28, s69, 15            ; cg*32768
    s_add_u32 s29, s28, 4096
    s_mov_b32 s19, {WS_MOD + 3*2048}
    buffer_load_dwordx4 v[40:43], v4, s[12:15], s19 offen
    buffer_load_dwordx4 v[44:47], v4, s[12:15], s19 offen offset:1024
    buffer_load_dwordx4 v[48:51], v4, s[12:15], s23 offen
    buffer_load_dwordx4 v[52:55], v4, s[12:15], s23 offen offset:1024
    buffer_load_dwordx4 v[56:59], v4, s[60:63], 0 offen
    buffer_load_dwordx4 v[60:63], v4, s[60:63], 0 offen offset:1024
    s_waitcnt vmcnt(14)
    """)
    stamp(k, 1, 72, 'mstamp')
    unpack_bf16(k, 8, 12)
    k("v_add_f32 v12, 1.0, v12")
    k("v_add_f32 v13, 1.0, v13")
    round_bf16_pair(k, 12, 13, 14)
    unpack_bf16(k, 9, 14)
    k("v_mul_f32 v12, v12, v14")
    k("v_fmac_f32 v12, v13, v15")
    wave_sum(k, 12, 13)
    k(f"""
    s_lshl_b32 s30, s18, 2
    v_mov_b32 v13, s30
    ds_write_b32 v13, v12 offset:0
    s_waitcnt lgkmcnt(0)
    s_barrier
    v_mov_b32 v13, 0
    ds_read_b128 v[16:19], v13 offset:0
    ds_read_b128 v[20:23], v13 offset:16
    s_waitcnt lgkmcnt(0)
    v_add_f32 v12, v16, v17
    v_add_f32 v12, v12, v18
    v_add_f32 v12, v12, v19
    v_add_f32 v12, v12, v20
    v_add_f32 v12, v12, v21
    v_add_f32 v12, v12, v22
    v_add_f32 v12, v12, v23            ; U
    v_lshlrev_b32 v24, 2, v0           ; token0 = 4t
    v_sub_u32 v24, 2047, v24           ; 2047 - token0
    v_mov_b32 v25, 0
    """)
    for i in range(4):
        S1, S2, S3 = STT + i, STT + 4 + i, STT + 8 + i
        k(f"""
        v_mul_f32 v16, 0x3a800000, v{S1}        ; mean
        v_mul_f32 v17, 0x3a800000, v{S2}
        v_fma_f32 v17, -v16, v16, v17           ; var
        v_max_f32 v17, 0, v17
        """)
        round_bf16_pair(k, 16, 17, 18)
        k("v_add_f32 v17, 0x3727c5ac, v17")
        round_bf16(k, 17)
        k("v_sqrt_f32 v17, v17")
        k("s_nop 0")
        round_bf16(k, 17)
        k(f"""
        v_rcp_f32 v17, v17
        v_fma_f32 v18, -v16, v12, v{S3}
        s_nop 0
        v_mul_f32 v18, v18, v17
        v_ashrrev_i32 v19, 31, v18
        v_or_b32 v19, 0x80000000, v19
        v_xor_b32 v18, v18, v19                 ; monotonic u32
        v_and_b32 v18, 0xfffff800, v18
        v_subrev_u32 v19, {i}, v24              ; 2047 - token
        v_or_b32 v18, v18, v19
        v_max_u32 v25, v25, v18
        """)
    wave_red_u32max(k, 25, 26)
    k(f"""
    v_mov_b32 v13, s30
    ds_write_b32 v13, v25 offset:64
    s_waitcnt lgkmcnt(0)
    s_barrier
    v_mov_b32 v13, 0
    ds_read_b128 v[16:19], v13 offset:64
    ds_read_b128 v[20:23], v13 offset:80
    s_waitcnt lgkmcnt(0)
    v_max3_u32 v25, v16, v17, v18
    v_max3_u32 v25, v25, v19, v20
    v_max3_u32 v25, v25, v21, v22
    v_max_u32 v25, v25, v23
    v_and_b32 v25, 0x7ff, v25
    v_sub_u32 v25, 2047, v25           ; sel
    s_nop 0
    v_readfirstlane_b32 s68, v25
    v_lshl_add_u32 v3, v25, 11, v4
    s_mov_b32 s31, {WS_X1}
    s_cmp_lg_u32 s18, 0
    s_cbranch_scc1 moe_norow
    buffer_load_dwordx4 v[8:11], v3, s[12:15], s31 offen
    buffer_load_dwordx4 v[12:15], v3, s[12:15], s31 offen offset:1024
moe_norow:
    buffer_load_dwordx4 v[{DW}:{DW+3}], v124, s[56:59], s28 offen
    buffer_load_dwordx4 v[{DW+4}:{DW+7}], v124, s[56:59], s28 offen offset:2048
    buffer_load_dwordx4 v[{DW+8}:{DW+11}], v124, s[56:59], s29 offen
    buffer_load_dwordx4 v[{DW+12}:{DW+15}], v124, s[56:59], s29 offen offset:2048
    s_cbranch_scc1 moe_wait_h2
    s_waitcnt vmcnt(4)
    """)
    for j in range(8):
        unpack_bf16(k, 8+j, 16+2*j)
    ln_core(k, 16, 32)
    modulate(k, 16, 48, 40, 32)
    for j in range(0, 16, 2):
        round_bf16_pair(k, 16+j, 17+j, 32)
    k(f"""
    v_lshlrev_b32 v33, 5, v2
    ds_write_b128 v33, v[16:19] offset:1024
    ds_write_b128 v33, v[20:23] offset:1040
    ds_write_b128 v33, v[24:27] offset:{1024+2048}
    ds_write_b128 v33, v[28:31] offset:{1040+2048}
    s_cmp_lg_u32 s2, 0
    s_cbranch_scc1 moe_wait_h2
    """)
    for j in range(8):
        unpack_bf16(k, 56+j, 34)
        if j == 0:
            k(f"v_mul_f32 v32, v16, v34")
        else:
            k(f"v_fmac_f32 v32, v{16+2*j}, v34")
        k(f"v_fmac_f32 v32, v{17+2*j}, v35")
    wave_sum(k, 32, 33)
    round_bf16(k, 32)
    k(f"""
    v_mul_f32 v33, 0xbfb8aa3b, v32
    v_exp_f32 v33, v33
    s_nop 0
    v_add_f32 v33, 1.0, v33
    v_rcp_f32 v33, v33
    s_nop 0
    """)
    round_bf16(k, 33)
    k(f"""
    v_mov_b32 v32, s68
    v_mov_b32 v34, 0
    s_mov_b32 s31, {WS_SEL}
    buffer_store_dwordx2 v[32:33], v34, s[12:15], s31 offen
    buffer_store_dwordx4 v[8:11], v4, s[12:15], s31 offen offset:2048
    buffer_store_dwordx4 v[12:15], v4, s[12:15], s31 offen offset:3072
    """)
    for j in range(8):
        k(f"v_cvt_pk_bf16_f32 v{40+j}, v{16+2*j}, v{17+2*j}")
    k(f"""
    s_add_u32 s31, s31, 4096
    buffer_store_dwordx4 v[40:43], v4, s[12:15], s31 offen
    buffer_store_dwordx4 v[44:47], v4, s[12:15], s31 offen offset:1024
    """)
    k.label("moe_wait_h2")
    stamp(k, 2, 72, 'mstamp')
    k(f"""
    s_waitcnt lgkmcnt(0)
    s_barrier
    """)
    stamp(k, 3, 72, 'mstamp')
    k(f"""
    v_lshrrev_b32 v13, 1, v0
    v_lshlrev_b32 v13, 2, v13          ; kr*4
    ds_read_b32 v8, v13 offset:1024
    ds_read_b32 v9, v13 offset:2048
    ds_read_b32 v10, v13 offset:3072
    ds_read_b32 v11, v13 offset:4096
    s_waitcnt vmcnt(4) lgkmcnt(0)
    """)
    stamp(k, 4, 72, 'mstamp')
    AC = 16
    for mi, W in enumerate((GW, UW)):
        for i in range(4):
            for j in range(4):
                unpack_bf16(k, W + 4*i + j, 12)
                a = AC + 8*mi + 2*j
                if i == 0:
                    k(f"v_mul_f32 v{a}, v{8+i}, v12")
                    k(f"v_mul_f32 v{a+1}, v{8+i}, v13")
                else:
                    k(f"v_fmac_f32 v{a}, v{8+i}, v12")
                    k(f"v_fmac_f32 v{a+1}, v{8+i}, v13")
    TM = 32
    k("s_nop 1")
    for j in range(16):
        k(f"v_add_f32_dpp v{TM+j}, v{AC+j}, v{AC+j} quad_perm:[2,3,0,1] row_mask:0xf bank_mask:0xf")
    for j in range(16):
        k(f"v_add_f32_dpp v{AC+j}, v{TM+j}, v{TM+j} row_ror:4 row_mask:0xf bank_mask:0xf")
    for j in range(16):
        k(f"v_add_f32_dpp v{TM+j}, v{AC+j}, v{AC+j} row_ror:8 row_mask:0xf bank_mask:0xf")
    for j in range(16):
        k(f"v_mov_b32 v{AC+j}, v{TM+j}")
    k("s_nop 1")
    for j in range(16):
        k(f"v_permlane16_swap_b32 v{AC+j}, v{TM+j}")
    for j in range(16):
        k(f"v_add_f32 v{AC+j}, v{AC+j}, v{TM+j}")
    for j in range(16):
        k(f"v_mov_b32 v{TM+j}, v{AC+j}")
    k("s_nop 1")
    for j in range(16):
        k(f"v_permlane32_swap_b32 v{AC+j}, v{TM+j}")
    for j in range(16):
        k(f"v_add_f32 v{AC+j}, v{AC+j}, v{TM+j}")
    k(f"""
    s_lshl_b32 s30, s18, 7
    v_lshlrev_b32 v13, 5, v2
    v_add_u32 v13, s30, v13
    v_cmp_gt_u32 vcc, 2, v2
    s_and_saveexec_b64 s[32:33], vcc
    ds_write_b128 v13, v[16:19] offset:6144
    ds_write_b128 v13, v[20:23] offset:6160
    ds_write_b128 v13, v[24:27] offset:{6144+64}
    ds_write_b128 v13, v[28:31] offset:{6160+64}
    s_mov_b64 exec, s[32:33]
    s_waitcnt lgkmcnt(0)
    s_barrier
    v_and_b32 v13, 31, v2
    v_lshlrev_b32 v13, 2, v13
    """)
    for w in range(8):
        k(f"ds_read_b32 v{16+w}, v13 offset:{6144 + 128*w}")
    k("s_waitcnt lgkmcnt(0)")
    for w in range(1, 8):
        k(f"v_add_f32 v16, v16, v{16+w}")
    round_bf16(k, 16)
    k(f"""
    v_mul_f32 v17, 0xbfb8aa3b, v16
    v_exp_f32 v17, v17
    s_nop 0
    v_add_f32 v17, 1.0, v17
    v_rcp_f32 v17, v17
    s_nop 0
    v_mul_f32 v17, v16, v17
    """)
    round_bf16(k, 17)
    k(f"""
    v_mov_b32 v18, v16
    s_nop 1
    v_permlane16_swap_b32 v16, v18
    s_nop 0
    v_mul_f32 v17, v17, v18
    """)
    round_bf16(k, 17)
    k(f"""
    s_lshr_b32 s30, s18, 1
    s_lshl_b32 s30, s30, 2
    s_add_u32 s31, s30, 1
    s_add_u32 s34, s30, 2
    s_add_u32 s35, s30, 3
    s_nop 0
    v_readlane_b32 s64, v17, s30
    v_readlane_b32 s65, v17, s31
    v_readlane_b32 s66, v17, s34
    v_readlane_b32 s67, v17, s35
    s_waitcnt vmcnt(0)
    """)
    for i in range(4):
        for j in range(4):
            unpack_bf16(k, DW + 4*i + j, 12)
            a = AC + 2*j
            if i == 0:
                k(f"v_mul_f32 v{a}, s{64+i}, v12")
                k(f"v_mul_f32 v{a+1}, s{64+i}, v13")
            else:
                k(f"v_fmac_f32 v{a}, s{64+i}, v12")
                k(f"v_fmac_f32 v{a+1}, s{64+i}, v13")
    k(f"""
    v_lshlrev_b32 v13, 5, v0
    ds_write_b128 v13, v[16:19] offset:8192
    ds_write_b128 v13, v[20:23] offset:8208
    s_waitcnt lgkmcnt(0)
    s_barrier
    v_lshlrev_b32 v13, 3, v0           ; t*8
    ds_read_b64 v[16:17], v13 offset:8192
    ds_read_b64 v[18:19], v13 offset:{8192+4096}
    ds_read_b64 v[20:21], v13 offset:{8192+8192}
    ds_read_b64 v[22:23], v13 offset:{8192+12288}
    s_lshl_b32 s30, s2, 12
    s_add_u32 s30, s30, {WS_Y}
    s_waitcnt lgkmcnt(0)
    v_add_f32 v16, v16, v18
    v_add_f32 v17, v17, v19
    v_add_f32 v20, v20, v22
    v_add_f32 v21, v21, v23
    v_add_f32 v16, v16, v20
    v_add_f32 v17, v17, v21
    buffer_store_dwordx2 v[16:17], v13, s[12:15], s30 offen
    """)
    stamp(k, 5, 72, 'mstamp')
    if 'mstamp' in FLAGS:
        k("s_waitcnt vmcnt(0)")
        stamp(k, 6, 72, 'mstamp')
        stamp_store(k, 7, 12, 2, 18, 72, 120, 'mstamp')
    k("s_endpgm")
    k.label("moe_ln2")
    srd(k, 48, 44, 2048*1024*2)
    k(f"""
    s_sub_u32 s20, s2, {NGEMV}
    s_lshl_b32 s20, s20, 3
    s_add_u32 s20, s20, s18            ; row
    s_lshl_b32 s20, s20, 11
    s_add_u32 s21, s20, {WS_X1}
    s_mov_b32 s23, {WS_MOD + 4*2048}
    buffer_load_dwordx4 v[8:11], v4, s[12:15], s21 offen
    buffer_load_dwordx4 v[12:15], v4, s[12:15], s21 offen offset:1024
    s_mov_b32 s19, {WS_MOD + 3*2048}
    buffer_load_dwordx4 v[40:43], v4, s[12:15], s19 offen
    buffer_load_dwordx4 v[44:47], v4, s[12:15], s19 offen offset:1024
    buffer_load_dwordx4 v[48:51], v4, s[12:15], s23 offen
    buffer_load_dwordx4 v[52:55], v4, s[12:15], s23 offen offset:1024
    buffer_load_dwordx4 v[56:59], v4, s[12:15], s23 offen offset:2048
    buffer_load_dwordx4 v[60:63], v4, s[12:15], s23 offen offset:3072
    s_waitcnt vmcnt(6)
    """)
    for j in range(8):
        unpack_bf16(k, 8+j, 16+2*j)
    ln_core(k, 16, 32)
    k("s_waitcnt vmcnt(0)")
    modulate(k, 16, 48, 40, 32)
    for j in range(8):
        a, b = 16+2*j, 17+2*j
        round_bf16_pair(k, a, b, 32)
        unpack_bf16(k, 56+j, 32)
        k(f"v_mul_f32 v{a}, v{a}, v32")
        k(f"v_mul_f32 v{b}, v{b}, v33")
        round_bf16_pair(k, a, b, 32)
        unpack_bf16(k, 8+j, 32)
        k(f"v_add_f32 v{a}, v{a}, v32")
        k(f"v_add_f32 v{b}, v{b}, v33")
        k(f"v_cvt_pk_bf16_f32 v{8+j}, v{a}, v{b}")
    k(f"""
    buffer_store_dwordx4 v[8:11], v4, s[48:51], s20 offen
    buffer_store_dwordx4 v[12:15], v4, s[48:51], s20 offen offset:1024
    """)
    k.label("moe_kernel_end")
    k("s_endpgm")
    finish(k, (NGEMV + 256,1,1), (512,1,1), 8192 + 16384, 128, 102 if 'mstamp' in FLAGS else 72)

def gen_fin():
    k = K("fin_kernel")
    k(f"""
    s_cmp_ge_u32 s2, 32
    s_cbranch_scc1 fin_kernel_end
    s_load_dwordx2 s[6:7], s[0:1], {KA_WS}
    s_load_dwordx2 s[44:45], s[0:1], {KA_OUT}
    v_and_b32 v1, 31, v0               ; col
    v_lshrrev_b32 v2, 5, v0            ; pg
    v_lshlrev_b32 v3, 2, v1
    v_lshl_add_u32 v3, v2, 12, v3
    s_lshl_b32 s20, s2, 7
    s_add_u32 s20, s20, {WS_Y}
    s_lshl_b32 s22, s2, 6
    v_lshlrev_b32 v4, 1, v1
    v_add_u32 v4, s22, v4
    v_mov_b32 v5, 0
    s_waitcnt lgkmcnt(0)
    """)
    srd(k, 12, 6, WS_SIZE)
    srd(k, 48, 44, 2048*1024*2)
    k(f"""
    s_mov_b32 s23, {WS_SEL}
    s_mov_b32 s24, {WS_SEL + 4096}
    s_mov_b32 s25, {WS_MOD + 5*2048}
    buffer_load_dwordx2 v[6:7], v5, s[12:15], s23 offen
    buffer_load_ushort v8, v4, s[12:15], s23 offen offset:2048     ; x1
    buffer_load_ushort v9, v4, s[12:15], s24 offen                 ; h2
    buffer_load_ushort v10, v4, s[12:15], s25 offen                ; gb
    """)
    for i in range(28):
        k(f"buffer_load_dword v{16+i}, v3, s[12:15], s20 offen")
        k(f"s_add_u32 s20, s20, 32768")
    k("s_waitcnt vmcnt(0)")
    for i in range(1, 28):
        k(f"v_add_f32 v16, v16, v{16+i}")
    k(f"""
    v_lshlrev_b32 v11, 2, v0
    ds_write_b32 v11, v16
    s_waitcnt lgkmcnt(0)
    s_barrier
    v_lshlrev_b32 v11, 2, v1
    """)
    for w in range(8):
        k(f"ds_read_b32 v{16+w}, v11 offset:{128*w}")
    k("s_waitcnt lgkmcnt(0)")
    for w in range(1, 8):
        k(f"v_add_f32 v16, v16, v{16+w}")
    round_bf16(k, 16)
    k("v_mul_f32 v16, v16, v7")
    round_bf16(k, 16)
    k("v_lshlrev_b32 v9, 16, v9")
    k("v_add_f32 v16, v16, v9")
    round_bf16(k, 16)
    k("v_lshlrev_b32 v10, 16, v10")
    k("v_mul_f32 v16, v16, v10")
    round_bf16(k, 16)
    k(f"""
    v_lshlrev_b32 v8, 16, v8
    v_add_f32 v16, v16, v8
    v_cvt_pk_bf16_f32 v16, v16, v16
    v_and_b32 v6, 0x7ff, v6
    v_lshl_add_u32 v4, v6, 11, v4
    v_cmp_gt_u32 vcc, 32, v0
    s_and_saveexec_b64 s[28:29], vcc
    buffer_store_short v16, v4, s[48:51], 0 offen
    """)
    k.label("fin_kernel_end")
    k("s_endpgm")
    finish(k, (32,1,1), (256,1,1), 1024, 48, 56)

def build():
    gen_mod()
    gen_qkv()
    gen_attn()
    gen_wo()
    gen_moe()
    gen_fin()
    hdr = open("cdna_kernels/" + NAME + ".s.ref").read().split("; Override")[0]
    out = hdr
    for (name, grid, block, lds, vgpr, sgpr, agpr, text) in kernels:
        out += f"; @launch kernel={name} grid=({grid[0]},{grid[1]},{grid[2]}) block=({block[0]},{block[1]},{block[2]}) lds={lds}\n"
    out += '.amdgcn_target "amdgcn-amd-amdhsa--gfx950"\n.text\n'
    for (name, grid, block, lds, vgpr, sgpr, agpr, text) in kernels:
        out += f".globl {name}\n.p2align 8\n.type {name},@function\n{name}:\n{text}"
    out += '.section .rodata,"a"\n'
    for (name, grid, block, lds, vgpr, sgpr, agpr, text) in kernels:
        acc = (vgpr + 3)//4*4
        out += f""".p2align 6
.amdhsa_kernel {name}
  .amdhsa_next_free_vgpr {acc + agpr if agpr else vgpr}
  .amdhsa_next_free_sgpr {sgpr}
  .amdhsa_accum_offset {acc}
  .amdhsa_group_segment_fixed_size 0
  .amdhsa_kernarg_size 104
  .amdhsa_user_sgpr_count 2
  .amdhsa_user_sgpr_kernarg_segment_ptr 1
  .amdhsa_system_sgpr_workgroup_id_x 1
  .amdhsa_float_denorm_mode_32 3
.end_amdhsa_kernel
"""
    import re
    for ln in out.split("\n"):
        l = ln.split(";")[0]
        m = re.search(r"offset:(\d+)", l)
        if m and (l.strip().startswith("buffer_") or l.strip().startswith("global_")):
            assert int(m.group(1)) <= 4095, ln
        if m and l.strip().startswith("ds_"):
            assert int(m.group(1)) <= 65535, ln
    return out

if __name__ == "__main__":
    s = build()
    p = sys.argv[1] if len(sys.argv) > 1 else "cdna_kernels/" + NAME + ".s"
    open(p, "w").write(s)
    print("wrote", p, len(s))
```

```python
import sys, math, os
FLAGS = set(os.environ.get('GENFLAGS', '').split(','))

NAME = "adaLN_cond__mha_block__moe_arch_mod__prompt"

KA_X, KA_WQKV, KA_WO, KA_BX, KA_WR, KA_WG, KA_WU, KA_WD, KA_C, KA_WMOD, KA_OUT, KA_DBG, KA_WS = [8*i for i in range(13)]

WS_MOD = 0x000000
WS_MOD1 = 0x004000
WS_MODF = 0x020000
WS_MOD1F = 0x028000
WS_STAT = 0x010000
WS_SEL = 0x018000
WS_Y   = 0x1900000
WS_H   = 0x100000
WS_Q   = 0x500000
WS_K   = 0x900000
WS_V   = 0xD00000
WS_O   = 0x1100000
WS_X1  = 0x1500000
WS_G   = 0x3000000
WS_SIZE = 0x10000000

class K:
    def __init__(self, name):
        self.name = name
        self.lines = []
        self.lab = 0
    def __call__(self, s):
        for l in s.strip("\n").split("\n"):
            self.lines.append("    " + l.strip())
    def label(self, l):
        self.lines.append(f"{l}:")
    def newlabel(self, base="L"):
        self.lab += 1
        return f"{self.name}_{base}{self.lab}"
    def text(self):
        return "\n".join(self.lines) + "\n"

def srd(k, d, b, nbytes):
    k(f"s_mov_b32 s{d}, s{b}")
    k(f"s_and_b32 s{d+1}, s{b+1}, 0xffff")
    k(f"s_mov_b32 s{d+2}, {nbytes}")
    k(f"s_mov_b32 s{d+3}, 0x00020000")

def wave_sum(k, v, t):
    k(f"""
    s_nop 1
    v_add_f32_dpp v{t}, v{v}, v{v} quad_perm:[1,0,3,2] row_mask:0xf bank_mask:0xf
    s_nop 1
    v_add_f32_dpp v{v}, v{t}, v{t} quad_perm:[2,3,0,1] row_mask:0xf bank_mask:0xf
    s_nop 1
    v_add_f32_dpp v{t}, v{v}, v{v} row_half_mirror row_mask:0xf bank_mask:0xf
    s_nop 1
    v_add_f32_dpp v{v}, v{t}, v{t} row_mirror row_mask:0xf bank_mask:0xf
    s_nop 0
    v_mov_b32 v{t}, v{v}
    s_nop 1
    v_permlane16_swap_b32 v{v}, v{t}
    s_nop 0
    v_add_f32 v{v}, v{v}, v{t}
    v_mov_b32 v{t}, v{v}
    s_nop 1
    v_permlane32_swap_b32 v{v}, v{t}
    s_nop 0
    v_add_f32 v{v}, v{v}, v{t}
    """)

def round_bf16_pair(k, a, b, t):
    k(f"v_cvt_pk_bf16_f32 v{t}, v{a}, v{b}")
    k(f"v_lshlrev_b32 v{a}, 16, v{t}")
    k(f"v_and_b32 v{b}, 0xffff0000, v{t}")

def unpack_bf16(k, src, dst):
    k(f"v_lshlrev_b32 v{dst}, 16, v{src}")
    k(f"v_and_b32 v{dst+1}, 0xffff0000, v{src}")

WS_STAMP = 0x2000000
def stamp(k, idx, sreg=80, flag='stamp'):
    if flag not in FLAGS: return
    k(f"s_memtime s[{sreg+4*idx}:{sreg+4*idx+1}]")
    k(f"s_memrealtime s[{sreg+4*idx+2}:{sreg+4*idx+3}]")
    k("s_waitcnt lgkmcnt(0)")
def stamp_store(k, n, srd_ws, wgreg, wavereg, sreg=80, vt=250, flag='stamp'):
    if flag not in FLAGS: return
    k(f"s_lshl_b32 s{sreg-1}, s{wgreg}, 3")
    k(f"s_add_u32 s{sreg-1}, s{sreg-1}, s{wavereg}")
    k(f"s_lshl_b32 s{sreg-1}, s{sreg-1}, 7")
    k(f"s_add_u32 s{sreg-1}, s{sreg-1}, {WS_STAMP}")
    k(f"v_mov_b32 v{vt}, 0")
    for i in range(n):
        for j in range(4):
            k(f"v_mov_b32 v{vt+1}, s{sreg+4*i+j}")
            k(f"buffer_store_dword v{vt+1}, v{vt}, s[{srd_ws}:{srd_ws+3}], s{sreg-1} offen offset:{16*i+4*j}")
            k("s_nop 1")

kernels = []

def finish(k, grid, block, lds, vgpr, sgpr=102, agpr=0):
    if 'scramble' in FLAGS:
        assert 's_cbranch_scc1' in k.lines[1]
        k.lines[2:2] = ["    s_lshr_b32 s3, s2, 3", "    s_and_b32 s3, s3, 7", "    s_xor_b32 s2, s2, s3"]
    kernels.append((k.name, grid, block, lds, vgpr, sgpr, agpr, k.text()))

def gen_mod():
    k = K("pre_kernel")
    k(f"""
    s_cmp_ge_u32 s2, 256
    s_cbranch_scc1 pre_kernel_end
    s_load_dwordx2 s[4:5], s[0:1], {KA_C}
    s_load_dwordx2 s[6:7], s[0:1], {KA_WMOD}
    s_load_dwordx2 s[8:9], s[0:1], {KA_WS}
    s_load_dwordx4 s[36:39], s[0:1], {KA_X}      ; x, wqkv
    s_and_b32 s20, s2, 0xfffffff0
    s_and_b32 s21, s2, 7
    s_lshl_b32 s21, s21, 1
    s_or_b32 s20, s20, s21
    s_lshr_b32 s21, s2, 3
    s_and_b32 s21, s21, 1
    s_or_b32 s20, s20, s21          ; s20 = slab
    s_lshl_b32 s21, s20, 6
    v_lshrrev_b32 v1, 6, v0         ; wave
    v_and_b32 v2, 63, v0            ; lane
    v_lshrrev_b32 v3, 2, v2         ; l>>2
    v_readfirstlane_b32 s34, v1
    v_lshl_add_u32 v3, v1, 6, v3    ; row0 = 64*w + (l>>2)
    v_and_b32 v4, 3, v2
    v_lshlrev_b32 v4, 4, v4         ; (l&3)*16
    s_mov_b32 s22, 12288
    v_mul_lo_u32 v5, v3, s22
    v_add3_u32 v5, v5, v4, s21
    v_lshlrev_b32 v6, 1, v3         ; c offset
    v_lshlrev_b32 v7, 4, v2         ; lane*16
    s_lshl_b32 s35, s2, 3
    s_add_u32 s35, s35, s34
    s_lshl_b32 s35, s35, 11
    s_waitcnt lgkmcnt(0)
    """)
    srd(k, 12, 4, 2048)
    srd(k, 16, 6, 1024*6144*2)
    srd(k, 24, 8, WS_SIZE)
    srd(k, 40, 36, 2048*1024*2)
    srd(k, 44, 38, 16 if 'nopf' in FLAGS else 1024*3072*2)
    MNT = 'nt' if 'modnt' in FLAGS else ''
    XR = 48
    k(f"""
    s_mov_b32 s28, {16*12288}
    s_mov_b32 s29, {32*12288}
    s_mov_b32 s30, {48*12288}
    s_cmp_ge_u32 s2, 192
    s_cbranch_scc1 pre_nomod1
    buffer_load_dwordx4 v[16:19], v5, s[16:19], 0 offen {MNT}
    buffer_load_dwordx4 v[20:23], v5, s[16:19], s28 offen {MNT}
    buffer_load_dwordx4 v[24:27], v5, s[16:19], s29 offen {MNT}
    buffer_load_dwordx4 v[28:31], v5, s[16:19], s30 offen {MNT}
    buffer_load_ushort v8, v6, s[12:15], 0 offen
    buffer_load_ushort v9, v6, s[12:15], 0 offen offset:32
    buffer_load_ushort v10, v6, s[12:15], 0 offen offset:64
    buffer_load_ushort v11, v6, s[12:15], 0 offen offset:96
    s_cmp_ge_u32 s34, 8
    s_cbranch_scc1 pre_pf1
    buffer_load_dwordx4 v[{XR}:{XR+3}], v7, s[40:43], s35 offen
    buffer_load_dwordx4 v[{XR+4}:{XR+7}], v7, s[40:43], s35 offen offset:1024
    s_waitcnt vmcnt(2)
    s_branch pre_mod
pre_pf1:
    s_lshl_b32 s48, s2, 3
    s_add_u32 s48, s48, s34
    s_sub_u32 s48, s48, 8
    s_lshl_b32 s48, s48, 10
    buffer_load_dwordx4 v[{XR}:{XR+3}], v7, s[44:47], s48 offen
    s_waitcnt vmcnt(1)
pre_mod:
    s_mov_b32 s31, 0xbfb8aa3b      ; -log2(e)
    """)
    for i in range(4):
        r = 8 + i
        k(f"""
        v_lshlrev_b32 v{r}, 16, v{r}
        v_mul_f32 v12, s31, v{r}
        v_exp_f32 v12, v12
        s_nop 0
        v_add_f32 v12, 1.0, v12
        v_rcp_f32 v12, v12
        s_nop 0
        v_mul_f32 v{r}, v{r}, v12
        """)
    round_bf16_pair(k, 8, 9, 12)
    round_bf16_pair(k, 10, 11, 12)
    for i in range(4):
        for j in range(4):
            src = 16 + 4*i + j
            k(f"v_lshlrev_b32 v12, 16, v{src}")
            k(f"v_and_b32 v13, 0xffff0000, v{src}")
            if i == 0:
                k(f"v_mul_f32 v{32+2*j}, v{8+i}, v12")
                k(f"v_mul_f32 v{33+2*j}, v{8+i}, v13")
            else:
                k(f"v_fmac_f32 v{32+2*j}, v{8+i}, v12")
                k(f"v_fmac_f32 v{33+2*j}, v{8+i}, v13")
    k("s_nop 1")
    for j in range(8):
        k(f"v_add_f32_dpp v{40+j}, v{32+j}, v{32+j} row_ror:4 row_mask:0xf bank_mask:0xf")
    for j in range(8):
        k(f"v_add_f32_dpp v{32+j}, v{40+j}, v{40+j} row_ror:8 row_mask:0xf bank_mask:0xf")
    for j in range(8):
        k(f"v_mov_b32 v{40+j}, v{32+j}")
    k("s_nop 1")
    for j in range(8):
        k(f"v_permlane16_swap_b32 v{32+j}, v{40+j}")
    for j in range(8):
        k(f"v_add_f32 v{32+j}, v{32+j}, v{40+j}")
    for j in range(8):
        k(f"v_mov_b32 v{40+j}, v{32+j}")
    k("s_nop 1")
    for j in range(8):
        k(f"v_permlane32_swap_b32 v{32+j}, v{40+j}")
    for j in range(8):
        k(f"v_add_f32 v{32+j}, v{32+j}, v{40+j}")
    k(f"""
    v_lshlrev_b32 v12, 7, v1
    v_lshl_add_u32 v12, v2, 5, v12
    v_cmp_gt_u32 vcc, 4, v2
    s_and_saveexec_b64 s[32:33], vcc
    ds_write_b128 v12, v[32:35]
    ds_write_b128 v12, v[36:39] offset:16
    s_mov_b64 exec, s[32:33]
    s_waitcnt lgkmcnt(0)
    s_barrier
    s_cmp_lg_u32 s34, 0
    s_cbranch_scc1 pre_ln
    v_and_b32 v12, 31, v2
    v_lshlrev_b32 v12, 2, v12
    v_lshrrev_b32 v13, 5, v2
    v_lshl_add_u32 v12, v13, 10, v12
    """)
    for j in range(8):
        k(f"ds_read_b32 v{32+j}, v12 offset:{128*j}")
    k("s_waitcnt lgkmcnt(0)")
    for j in range(1, 8):
        k(f"v_add_f32 v32, v32, v{32+j}")
    k(f"""
    v_mov_b32 v33, v32
    s_nop 1
    v_permlane32_swap_b32 v32, v33
    s_nop 0
    v_add_f32 v32, v32, v33
    v_cvt_pk_bf16_f32 v32, v32, v32
    v_lshlrev_b32 v34, 16, v32
    v_add_f32 v33, 1.0, v34
    v_cvt_pk_bf16_f32 v33, v33, v33
    v_lshlrev_b32 v35, 16, v33
    v_lshlrev_b32 v12, 1, v2
    v_add_u32 v12, s21, v12
    v_lshlrev_b32 v13, 1, v12
    s_mov_b32 s22, {WS_MOD1}
    s_mov_b32 s23, {WS_MODF}
    s_mov_b32 s28, {WS_MOD1F}
    v_cmp_gt_u32 vcc, 32, v2
    s_and_saveexec_b64 s[32:33], vcc
    buffer_store_dword v34, v13, s[24:27], s23 offen
    buffer_store_dword v35, v13, s[24:27], s28 offen
    buffer_store_short v32, v12, s[24:27], 0 offen
    buffer_store_short v33, v12, s[24:27], s22 offen
    s_mov_b64 exec, s[32:33]
    s_branch pre_ln
pre_nomod1:
    s_cmp_ge_u32 s34, 8
    s_cbranch_scc1 pre_pf2
    buffer_load_dwordx4 v[{XR}:{XR+3}], v7, s[40:43], s35 offen
    buffer_load_dwordx4 v[{XR+4}:{XR+7}], v7, s[40:43], s35 offen offset:1024
pre_pf2:
    s_sub_u32 s48, s2, 192
    s_lshl_b32 s48, s48, 4
    s_add_u32 s48, s48, s34
    s_mul_i32 s48, s48, 5120
    s_add_u32 s48, s48, {192*8*1024}
    s_add_u32 s49, s48, 4096
    buffer_load_dwordx4 v[16:19], v7, s[44:47], s48 offen
    buffer_load_dwordx4 v[20:23], v7, s[44:47], s48 offen offset:1024
    buffer_load_dwordx4 v[24:27], v7, s[44:47], s48 offen offset:2048
    buffer_load_dwordx4 v[28:31], v7, s[44:47], s48 offen offset:3072
    buffer_load_dwordx4 v[32:35], v7, s[44:47], s49 offen
    s_waitcnt vmcnt(5)
pre_ln:
    s_cmp_ge_u32 s34, 8
    s_cbranch_scc1 pre_kernel_end
    s_cmp_ge_u32 s2, 192
    s_cbranch_scc1 pre_ln2
    s_waitcnt vmcnt(0)
pre_ln2:
    """)
    for j in range(8):
        unpack_bf16(k, XR+j, 64+2*j)
    ln_core(k, 64, 80)
    for j in range(8):
        k(f"v_cvt_pkrtz_f16_f32 v{XR+j}, v{64+2*j}, v{65+2*j}")
    k(f"""
    s_add_u32 s21, s35, {WS_H}
    buffer_store_dwordx4 v[{XR}:{XR+3}], v7, s[24:27], s21 offen
    buffer_store_dwordx4 v[{XR+4}:{XR+7}], v7, s[24:27], s21 offen offset:1024
    s_lshr_b32 s22, s35, 9             ; row*4
    s_add_u32 s22, s22, {WS_STAT}
    v_lshlrev_b32 v5, 13, v2
    v_mov_b32 v6, 0
    v_cmp_gt_u32 vcc, 3, v2
    s_and_saveexec_b64 s[28:29], vcc
    buffer_store_dword v6, v5, s[24:27], s22 offen
    """)
    k.label("pre_kernel_end")
    k("s_endpgm")
    finish(k, (256,1,1), (1024,1,1), 2048, 88, 56)

def ln_core(k, X, T):
    S, U, M, R = T, T+1, T+2, T+3
    k(f"v_add_f32 v{S}, v{X}, v{X+1}")
    for i in range(2, 16):
        k(f"v_add_f32 v{S}, v{S}, v{X+i}")
    wave_sum(k, S, U)
    k(f"v_mul_f32 v{M}, 0x3a800000, v{S}")
    k(f"v_sub_f32 v{U}, v{X}, v{M}")
    k(f"v_mul_f32 v{S}, v{U}, v{U}")
    for i in range(1, 16):
        k(f"v_sub_f32 v{U}, v{X+i}, v{M}")
        k(f"v_fmac_f32 v{S}, v{U}, v{U}")
    wave_sum(k, S, U)
    k(f"v_mul_f32 v{S}, 0x3a800000, v{S}")
    round_bf16_pair(k, M, S, U)
    k(f"v_add_f32 v{S}, 0x3727c5ac, v{S}")
    k(f"v_cvt_pk_bf16_f32 v{S}, v{S}, v{S}")
    k(f"v_lshlrev_b32 v{S}, 16, v{S}")
    k(f"v_sqrt_f32 v{S}, v{S}")
    k("s_nop 0")
    k(f"v_cvt_pk_bf16_f32 v{S}, v{S}, v{S}")
    k(f"v_lshlrev_b32 v{S}, 16, v{S}")
    k(f"v_rcp_f32 v{R}, v{S}")
    for i in range(16):
        k(f"v_sub_f32 v{X+i}, v{X+i}, v{M}")
    for i in range(0, 16, 2):
        round_bf16_pair(k, X+i, X+i+1, U)
    for i in range(16):
        k(f"v_mul_f32 v{X+i}, v{X+i}, v{R}")
    for i in range(0, 16, 2):
        round_bf16_pair(k, X+i, X+i+1, U)

def modulate(k, X, C, Sh, T):
    for j in range(8):
        unpack_bf16(k, C+j, T)
        k(f"v_add_f32 v{T}, 1.0, v{T}")
        k(f"v_add_f32 v{T+1}, 1.0, v{T+1}")
        round_bf16_pair(k, T, T+1, T+2)
        k(f"v_mul_f32 v{X+2*j}, v{X+2*j}, v{T}")
        k(f"v_mul_f32 v{X+2*j+1}, v{X+2*j+1}, v{T+1}")
        round_bf16_pair(k, X+2*j, X+2*j+1, T+2)
        unpack_bf16(k, Sh+j, T)
        k(f"v_add_f32 v{X+2*j}, v{X+2*j}, v{T}")
        k(f"v_add_f32 v{X+2*j+1}, v{X+2*j+1}, v{T+1}")

def gen_ln1():
    k = K("ln1_kernel")
    k(f"""
    s_cmp_ge_u32 s2, 512
    s_cbranch_scc1 ln1_kernel_end
    s_load_dwordx2 s[4:5], s[0:1], {KA_X}
    s_load_dwordx2 s[8:9], s[0:1], {KA_WS}
    v_lshrrev_b32 v1, 6, v0
    v_and_b32 v2, 63, v0
    s_lshl_b32 s20, s2, 13
    v_lshlrev_b32 v3, 11, v1
    v_lshl_add_u32 v3, v2, 4, v3
    v_add_u32 v3, s20, v3
    v_lshlrev_b32 v4, 4, v2         ; lane*16
    s_waitcnt lgkmcnt(0)
    """)
    srd(k, 12, 4, 2048*1024*2)
    srd(k, 24, 8, WS_SIZE)
    k(f"""
    buffer_load_dwordx4 v[8:11], v3, s[12:15], 0 offen
    buffer_load_dwordx4 v[12:15], v3, s[12:15], 0 offen offset:1024
    buffer_load_dwordx4 v[40:43], v4, s[24:27], 0 offen offset:{WS_MOD}
    buffer_load_dwordx4 v[44:47], v4, s[24:27], 0 offen offset:{WS_MOD+1024}
    buffer_load_dwordx4 v[48:51], v4, s[24:27], 0 offen offset:{WS_MOD+2048}
    buffer_load_dwordx4 v[52:55], v4, s[24:27], 0 offen offset:{WS_MOD+3072}
    s_waitcnt vmcnt(4)
    """)
    for j in range(8):
        unpack_bf16(k, 8+j, 16+2*j)
    ln_core(k, 16, 32)
    k("s_waitcnt vmcnt(0)")
    modulate(k, 16, 48, 40, 32)
    for j in range(8):
        k(f"v_cvt_pk_bf16_f32 v{8+j}, v{16+2*j}, v{17+2*j}")
    k(f"""
    s_mov_b32 s21, {WS_H}
    buffer_store_dwordx4 v[8:11], v3, s[24:27], s21 offen
    buffer_store_dwordx4 v[12:15], v3, s[24:27], s21 offen offset:1024
    v_lshrrev_b32 v5, 9, v3
    v_and_b32 v5, 0xfffffffc, v5
    v_lshl_add_u32 v5, v2, 13, v5
    v_mov_b32 v6, 0
    s_mov_b32 s22, {WS_STAT}
    v_cmp_gt_u32 vcc, 3, v2
    s_and_saveexec_b64 s[28:29], vcc
    buffer_store_dword v6, v5, s[24:27], s22 offen
    """)
    k.label("ln1_kernel_end")
    k("s_endpgm")
    finish(k, (512,1,1), (256,1,1), 0, 56, 32)

QK_SCALE = 32 ** -0.5 * 1.4426950408889634
import struct
def f32bits(x):
    return struct.unpack("<I", struct.pack("<f", x))[0]

def gen_qkv():
    k = K("qkv_kernel")
    NST = 16
    A_SLOT = 16384
    B_BASE = 65536
    B_SLOT = 24576
    k(f"""
    s_cmp_ge_u32 s2, 256
    s_cbranch_scc1 qkv_kernel_end
    s_load_dwordx2 s[4:5], s[0:1], {KA_WQKV}
    s_load_dwordx2 s[6:7], s[0:1], {KA_WS}
    v_lshrrev_b32 v1, 6, v0
    v_and_b32 v2, 63, v0               ; lane
    s_and_b32 s20, s2, 7               ; x
    s_lshr_b32 s21, s2, 3              ; j
    v_readfirstlane_b32 s18, v1
    s_and_b32 s16, s20, 1
    s_lshl_b32 s16, s16, 3
    s_and_b32 s22, s21, 7
    s_add_u32 s16, s16, s22            ; bm
    s_lshr_b32 s17, s20, 1
    s_lshl_b32 s17, s17, 2
    s_lshr_b32 s22, s21, 3
    s_add_u32 s17, s17, s22            ; bn
    s_waitcnt lgkmcnt(0)
    """)
    srd(k, 8, 4, 1024*3072*2)
    srd(k, 12, 6, WS_SIZE)
    k(f"""
    s_cmp_ge_u32 s18, 4
    s_cbranch_scc1 qkv_producer
    """)
    k(f"""
    s_and_b32 s19, s18, 1              ; wm
    s_lshr_b32 s23, s18, 1             ; hd
    v_and_b32 v3, 31, v2               ; l&31
    v_lshrrev_b32 v4, 5, v2            ; hh
    v_lshrrev_b32 v5, 1, v3
    v_and_b32 v5, 7, v5                ; f = (t>>1)&7
    v_xor_b32 v5, v5, v4               ; hh ^ f
    v_lshlrev_b32 v5, 4, v5
    v_lshl_add_u32 v5, v3, 7, v5       ; (l&31)*128 + chunk*16
    s_lshl_b32 s24, s19, 13            ; wm*64*128
    v_add_u32 v8, s24, v5              ; vA[0]
    v_xor_b32 v9, 32, v8
    v_xor_b32 v10, 64, v8
    v_xor_b32 v11, 0x60, v8
    ; vB
    v_lshrrev_b32 v5, 2, v2
    v_and_b32 v5, 3, v5                ; r
    v_lshl_add_u32 v6, v4, 3, v5       ; 8hh + r
    v_lshlrev_b32 v6, 7, v6            ; *128
    v_lshrrev_b32 v5, 1, v5            ; r>>1
    v_xor_b32 v5, s23, v5              ; hd ^ (r>>1)
    v_lshl_add_u32 v6, v5, 6, v6
    v_lshrrev_b32 v5, 4, v2
    v_and_b32 v5, 1, v5                ; ng
    v_lshl_add_u32 v6, v5, 5, v6
    v_and_b32 v5, 3, v2                ; c
    v_lshl_add_u32 v6, v5, 3, v6
    v_add_u32 v12, {B_BASE}, v6
    v_add_u32 v13, {B_BASE + 2*B_SLOT}, v6
    """)
    ACC = 64
    SETS = [24, 44]
    for i in range(96):
        k(f"v_mov_b32 v{ACC+i}, 0")
    def reads(st, stage, ks):
        S = SETS[st]
        r = []
        slot = stage % 3; aslot = stage & 3
        r.append(f"ds_read_b128 v[{S}:{S+3}], v{8+ks} offset:{aslot*A_SLOT}")
        r.append(f"ds_read_b128 v[{S+4}:{S+7}], v{8+ks} offset:{aslot*A_SLOT+4096}")
        for seg in range(3):
            for j in range(2):
                d = S + 8 + 4*seg + 2*j
                r.append(f"ds_read_b64_tr_b16 v[{d}:{d+1}], v{12+(slot>>1)} offset:{(slot&1)*B_SLOT + seg*8192 + ks*2048 + j*512}")
        return r
    def mfmas(st):
        S = SETS[st]
        r = []
        for seg in range(3):
            for tt in range(2):
                a = ACC + 16*(2*seg + tt)
                W = f"v[{S+8+4*seg}:{S+11+4*seg}]"
                H = f"v[{S+4*tt}:{S+4*tt+3}]"
                if seg < 2:
                    r.append(f"v_mfma_f32_32x32x16_bf16 v[{a}:{a+15}], {W}, {H}, v[{a}:{a+15}]")
                else:
                    r.append(f"v_mfma_f32_32x32x16_bf16 v[{a}:{a+15}], {H}, {W}, v[{a}:{a+15}]")
        return r
    k("s_mov_b32 s25, 0")
    if 'noprio' not in FLAGS: k("s_setprio 3")
    stamp(k, 0)
    k("s_barrier")
    k("s_barrier")
    stamp(k, 1)
    rd0 = reads(0, 0, 0)
    for r in [rd0[0], rd0[2], rd0[3], rd0[1], rd0[4], rd0[5], rd0[6], rd0[7]]:
        k(r)
    cur = 0
    for stage in range(NST):
        for ks in range(4):
            m = mfmas(cur)
            if ks < 3:
                rd = reads(cur ^ 1, stage, ks + 1)
            elif stage + 1 < NST:
                rd = reads(cur ^ 1, stage + 1, 0)
            else:
                rd = [';']*8
            if 'q_old' in FLAGS:
                k("s_waitcnt lgkmcnt(0)")
                k(m[0])
                if ks == 3 and stage + 1 < NST:
                    k("s_barrier")
                k(rd[2]); k(rd[3])
                k(m[1])
                k(rd[4]); k(rd[5])
                k(m[2])
                k(rd[0]); k(rd[6])
                k(m[3])
                k(rd[1]); k(rd[7])
                k(m[4])
                k(m[5])
            else:
                r = [rd[0], rd[2], rd[3], rd[1], rd[4], rd[5], rd[6], rd[7]]
                last = (stage + 1 == NST and ks == 3)
                if ks < 3:
                    k("s_waitcnt lgkmcnt(5)"); k(m[0]); k(r[0]); k(r[1])
                    k("s_waitcnt lgkmcnt(6)"); k(m[1]); k(r[2]); k(r[3])
                    k("s_waitcnt lgkmcnt(6)"); k(m[2]); k(r[4]); k(r[5])
                    k(m[3]); k(r[6]); k(r[7])
                    k("s_waitcnt lgkmcnt(8)"); k(m[4]); k(m[5])
                else:
                    k("s_waitcnt lgkmcnt(5)"); k(m[0])
                    k("s_waitcnt lgkmcnt(4)"); k(m[1])
                    k("s_waitcnt lgkmcnt(0)")
                    if not last: k("s_barrier")
                    k(r[0]); k(r[1]); k(r[2])
                    k(m[2]); k(r[3]); k(r[4]); k(r[5])
                    k(m[3]); k(r[6]); k(r[7])
                    k(m[4]); k(m[5])
            cur ^= 1
    stamp(k, 2)
    k(f"""
    s_lshl_b32 s26, s17, 1
    s_add_u32 s26, s26, s23            ; head
    s_lshl_b32 s26, s26, 17
    s_lshl_b32 s27, s16, 2
    s_lshl_b32 s28, s19, 1
    s_add_u32 s27, s27, s28
    s_lshl_b32 s27, s27, 11
    s_add_u32 s26, s26, s27
    s_add_u32 s28, s26, {WS_Q}
    s_add_u32 s29, s26, {WS_K}
    s_add_u32 s30, s26, {WS_V}
    s_mov_b32 s31, {f32bits(QK_SCALE)}
    v_lshlrev_b32 v3, 4, v2            ; lane*16
    s_nop 7
    """)
    for seg in range(3):
        for tt in range(2):
            a = ACC + 16*(2*seg + tt)
            if seg == 0:
                for i in range(16):
                    k(f"v_mul_f32 v{a+i}, s31, v{a+i}")
            for m in range(2):
                d = 24 + 4*((2*seg + tt)*2 + m) % 40
                d = 24 + (4*(((2*seg + tt)*2 + m) % 10))
                for i in range(4):
                    k(f"v_cvt_pk_bf16_f32 v{d+i}, v{a+8*m+2*i}, v{a+8*m+2*i+1}")
                k(f"buffer_store_dwordx4 v[{d}:{d+3}], v3, s[12:15], s{28+seg} offen offset:{tt*2048+m*1024}")
    if 'stamp' in FLAGS:
        k("s_waitcnt vmcnt(0)")
        stamp(k, 3)
        stamp_store(k, 4, 12, 2, 18, vt=160)
    k("s_endpgm")
    k.label("qkv_producer")
    k(f"""
    s_and_b32 s19, s18, 3              ; w
    v_lshrrev_b32 v3, 3, v2            ; l>>3
    s_lshl_b32 s23, s19, 3
    v_add_u32 v3, s23, v3              ; 8w + (l>>3)
    v_lshrrev_b32 v4, 4, v2            ; l>>4
    s_and_b32 s24, s19, 1
    s_lshl_b32 s24, s24, 2
    v_add_u32 v5, s24, v4              ; 4(w&1) + (l>>4)
    v_and_b32 v6, 7, v2
    v_xor_b32 v5, v5, v6
    v_lshlrev_b32 v5, 4, v5
    v_lshl_add_u32 v8, v3, 11, v5      ; vA
    s_mov_b32 s24, 6144
    v_mul_lo_u32 v9, v3, s24
    v_lshrrev_b32 v5, 2, v2
    v_xor_b32 v5, v5, v4
    v_and_b32 v5, 1, v5                ; hd
    v_lshl_add_u32 v9, v5, 6, v9
    v_and_b32 v5, 3, v2
    v_lshl_add_u32 v9, v5, 4, v9       ; vB
    s_lshl_b32 s25, s16, 18
    s_add_u32 s25, s25, {WS_H}
    s_lshl_b32 s26, s17, 7
    s_lshl_b32 s27, s19, 10            ; w*1024
    """)
    TBL = B_BASE + 3*B_SLOT
    k(f"""
    s_cmp_ge_u32 s18, 8
    s_cbranch_scc1 qkv_xform
    v_lshlrev_b32 v12, 4, v2
    s_add_u32 s31, s27, {WS_MOD1F + 4096}
    s_add_u32 m0, s27, {TBL}
    s_add_u32 s32, s27, {WS_MODF}
    buffer_load_dwordx4 v12, s[12:15], s31 offen lds
    s_add_u32 m0, s27, {TBL + 4096}
    s_nop 0
    buffer_load_dwordx4 v12, s[12:15], s32 offen lds
    """)
    vm = [('T', 0), ('T', 0)]
    def wait_tags(tags):
        idx = max(i for i, t in enumerate(vm) if t in tags)
        n = len(vm) - 1 - idx
        assert n <= 63
        k(f"s_waitcnt vmcnt({n})")
    def issueA(s):
        for p in range(4):
            k(f"s_add_u32 m0, s27, {(s & 3)*A_SLOT + p*4096}")
            k(f"s_add_u32 s28, s25, {p*65536 + s*128}")
            k(f"buffer_load_dwordx4 v8, s[12:15], s28 offen lds")
        vm.extend([('A', s)]*4)
    def boff(i): return (i & 1)*32*6144 + (i >> 1)*2048
    def issueB(s):
        for i in range(6):
            k(f"s_add_u32 m0, s27, {B_BASE + (s % 3)*B_SLOT + i*4096}")
            k(f"s_add_u32 s28, s26, {s*393216 + boff(i)}")
            k(f"buffer_load_dwordx4 v9, s[8:11], s28 offen lds")
        vm.extend([('B', s)]*6)
    issueA(0); issueB(0); issueA(1); issueB(1); issueA(2)
    wait_tags([('A', 0)])
    k("s_barrier")
    for b in range(NST):
        wait_tags([('B', b)] + ([('A', b + 1)] if b + 1 < NST else []))
        if b == 9: stamp(k, 2, flag='pstamp')
        k("s_barrier")
        if b == 8: stamp(k, 0, flag='pstamp')
        if b == 9: stamp(k, 3, flag='pstamp')
        if b + 2 < NST: issueB(b + 2)
        if b + 3 < NST: issueA(b + 3)
        if b == 8: stamp(k, 1, flag='pstamp')
    if 'pstamp' in FLAGS:
        stamp_store(k, 4, 12, 2, 18, vt=150, flag='pstamp')
    k("s_endpgm")
    k.label("qkv_xform")
    TP = [48, 64]
    XR_ = 16
    OUT = 32
    k(f"""
    v_and_b32 v10, 0x70, v8
    v_lshlrev_b32 v10, 1, v10
    v_add_u32 v10, {TBL}, v10
    v_lshlrev_b32 v11, 4, v2
    v_add_u32 v11, s27, v11            ; w*1024 + lane*16
    s_barrier
    """)
    def tabs(s):
        T = TP[s & 1]
        k(f"ds_read_b128 v[{T}:{T+3}], v10 offset:{256*s}")
        k(f"ds_read_b128 v[{T+4}:{T+7}], v10 offset:{256*s + 16}")
        k(f"ds_read_b128 v[{T+8}:{T+11}], v10 offset:{4096 + 256*s}")
        k(f"ds_read_b128 v[{T+12}:{T+15}], v10 offset:{4096 + 256*s + 16}")
    tabs(0)
    for s_ in range(NST):
        T = TP[s_ & 1]
        base = (s_ & 3)*A_SLOT
        for p in range(4):
            k(f"ds_read_b128 v[{XR_+4*p}:{XR_+4*p+3}], v11 offset:{base + p*4096}")
        nt = 0
        if s_ + 1 < NST:
            tabs(s_ + 1); nt = 4
        for p in range(4):
            k(f"s_waitcnt lgkmcnt({3 - p + nt + p})")
            for j in range(4):
                x = XR_ + 4*p + j; o = OUT + 4*p + j
                k(f"v_fma_mix_f32 v{o}, v{x}, v{T+2*j}, v{T+8+2*j} op_sel:[0,0,0] op_sel_hi:[1,0,0]")
                k(f"v_fma_mix_f32 v{x}, v{x}, v{T+2*j+1}, v{T+8+2*j+1} op_sel:[1,0,0] op_sel_hi:[1,0,0]")
                k(f"v_cvt_pk_bf16_f32 v{o}, v{o}, v{x}")
            k(f"ds_write_b128 v11, v[{OUT+4*p}:{OUT+4*p+3}] offset:{base + p*4096}")
        k("s_waitcnt lgkmcnt(0)")
        k("s_barrier")
    k.label("qkv_kernel_end")
    k("s_endpgm")
    def qkeep(l):
        if 'q_nomfma' in FLAGS and 'v_mfma' in l: return False
        if 'q_nords' in FLAGS and ('ds_read_b64_tr' in l or ('ds_read_b128' in l and 'v10' not in l)): return False
        if 'q_noB' in FLAGS and 'v9, s[8:11]' in l: return False
        if 'q_noA' in FLAGS and 'buffer_load_dwordx4' in l and ', v8, s[12:15]' in l: return False
        if 'q_nowr' in FLAGS and 'ds_write_b128' in l: return False
        if 'q_notr' in FLAGS and ('v_fma_mix' in l): return False
        if 'q_noxr' in FLAGS and 'ds_read_b128' in l and (' v10 ' in l or ' v11 ' in l): return False
        return True
    k.lines = [l for l in k.lines if qkeep(l)]
    finish(k, (256,1,1), (768,1,1), B_BASE + 3*B_SLOT + 8192, 168 if 'stamp' in FLAGS else 160, 102 if 'stamp' in FLAGS else 40)

def gen_qkv2():
    k = K("qkv_kernel")
    NST = 16
    A_SLOT = 16384
    B_BASE = 65536
    B_SLOT = 24576
    TBL = B_BASE + 3*B_SLOT
    k(f"""
    s_cmp_ge_u32 s2, 256
    s_cbranch_scc1 qkv_kernel_end
    s_load_dwordx2 s[4:5], s[0:1], {KA_WQKV}
    s_load_dwordx2 s[6:7], s[0:1], {KA_WS}
    v_lshrrev_b32 v1, 6, v0
    v_and_b32 v2, 63, v0               ; lane
    s_and_b32 s20, s2, 7               ; x
    s_lshr_b32 s21, s2, 3              ; j
    v_readfirstlane_b32 s18, v1
    s_and_b32 s16, s20, 1
    s_lshl_b32 s16, s16, 3
    s_and_b32 s22, s21, 7
    s_add_u32 s16, s16, s22            ; bm
    s_lshr_b32 s17, s20, 1
    s_lshl_b32 s17, s17, 2
    s_lshr_b32 s22, s21, 3
    s_add_u32 s17, s17, s22            ; bn
    s_cmp_ge_u32 s18, 4
    s_cbranch_scc1 qkv_producer
    """)
    k(f"""
    v_and_b32 v3, 31, v2               ; l&31
    v_lshrrev_b32 v4, 5, v2            ; hh
    v_lshrrev_b32 v5, 1, v3
    v_and_b32 v5, 7, v5                ; f = (t>>1)&7
    v_xor_b32 v5, v5, v4               ; hh ^ f
    v_lshlrev_b32 v5, 4, v5
    v_lshl_add_u32 v5, v3, 7, v5       ; (l&31)*128 + chunk*16
    s_lshl_b32 s24, s18, 12            ; w*32*128
    v_add_u32 v8, s24, v5              ; vA[0]
    v_xor_b32 v9, 32, v8
    v_xor_b32 v10, 64, v8
    v_xor_b32 v11, 0x60, v8
    ; vB
    v_lshrrev_b32 v5, 2, v2
    v_and_b32 v5, 3, v5                ; r
    v_lshl_add_u32 v6, v4, 3, v5       ; 8hh + r
    v_lshlrev_b32 v6, 7, v6            ; *128
    v_lshrrev_b32 v5, 1, v5            ; r>>1
    v_lshl_add_u32 v6, v5, 6, v6
    v_lshrrev_b32 v5, 4, v2
    v_and_b32 v5, 1, v5                ; ng
    v_lshl_add_u32 v6, v5, 5, v6
    v_and_b32 v5, 3, v2                ; c
    v_lshl_add_u32 v6, v5, 3, v6
    v_add_u32 v12, {B_BASE}, v6
    v_xor_b32 v13, 64, v12                      ; hd1
    v_add_u32 v14, {B_BASE + 2*B_SLOT}, v6
    v_xor_b32 v15, 64, v14
    v_lshlrev_b32 v16, 5, v4
    v_add_u32 v16, {TBL}, v16
    """)
    RAW = [20, 24]; HO = [28, 32]; TS = [36, 52]; WS_ = [68, 92]; ACC = 116
    for i in range(96):
        k(f"v_mov_b32 v{ACC+i}, 0")
    lg = []; done = [-1]
    def ds(tag, txt):
        lg.append(tag); k(txt)
    def need(tags):
        idx = max(i for i, t in enumerate(lg) if t in tags)
        if idx <= done[0]: return
        n = min(15, len(lg) - 1 - idx)
        done[0] = len(lg) - 1 - n
        k(f"s_waitcnt lgkmcnt({n})")
    NSTEP = 4*NST
    def rdA(n):
        st, ks = divmod(n, 4)
        R = RAW[n & 1]; T = TS[n & 1]
        o = 256*st + 64*ks
        return [(('A', n), f"ds_read_b128 v[{R}:{R+3}], v{8+ks} offset:{(st & 3)*A_SLOT}"),
                (('A', n), f"ds_read_b128 v[{T}:{T+3}], v16 offset:{o}"),
                (('A', n), f"ds_read_b128 v[{T+4}:{T+7}], v16 offset:{o+16}"),
                (('A', n), f"ds_read_b128 v[{T+8}:{T+11}], v16 offset:{o+4096}"),
                (('A', n), f"ds_read_b128 v[{T+12}:{T+15}], v16 offset:{o+4096+16}")]
    def rdB(n):
        st, ks = divmod(n, 4)
        slot = st % 3
        r = []
        for seg in range(3):
            for hd in range(2):
                for j in range(2):
                    d = WS_[n & 1] + 4*(2*seg + hd) + 2*j
                    r.append((('B', n, 2*seg + hd), f"ds_read_b64_tr_b16 v[{d}:{d+1}], v{12+2*(slot>>1)+hd} offset:{(slot&1)*B_SLOT + seg*8192 + ks*2048 + j*512}"))
        return r
    def xf(n):
        R = RAW[n & 1]; T = TS[n & 1]; O = HO[n & 1]
        r = []
        for j in range(4):
            r.append(f"v_fma_mix_f32 v{O+j}, v{R+j}, v{T+2*j}, v{T+8+2*j} op_sel:[0,0,0] op_sel_hi:[1,0,0]")
            r.append(f"v_fma_mix_f32 v{R+j}, v{R+j}, v{T+2*j+1}, v{T+8+2*j+1} op_sel:[1,0,0] op_sel_hi:[1,0,0]")
            r.append(f"v_cvt_pk_bf16_f32 v{O+j}, v{O+j}, v{R+j}")
        return r
    def mf(n, i):
        seg = i >> 1
        a = ACC + 16*i
        W = f"v[{WS_[n & 1]+4*i}:{WS_[n & 1]+4*i+3}]"
        H = f"v[{HO[n & 1]}:{HO[n & 1]+3}]"
        if seg < 2:
            return f"v_mfma_f32_32x32x16_bf16 v[{a}:{a+15}], {W}, {H}, v[{a}:{a+15}]"
        return f"v_mfma_f32_32x32x16_bf16 v[{a}:{a+15}], {H}, {W}, v[{a}:{a+15}]"
    k("s_waitcnt lgkmcnt(0)")
    srd(k, 12, 6, WS_SIZE)
    if 'noprio' not in FLAGS: k("s_setprio 3")
    stamp(k, 0)
    k("s_barrier")
    for t, x in rdA(0): ds(t, x)
    for t, x in rdA(1): ds(t, x)
    need([('A', 0)])
    for x in xf(0): k(x)
    k("s_barrier")
    stamp(k, 1)
    for t, x in rdB(0): ds(t, x)
    for n in range(NSTEP):
        st, ks = divmod(n, 4)
        B = rdB(n + 1) if n + 1 < NSTEP else []
        A = rdA(n + 2) if n + 2 < NSTEP else []
        V = xf(n + 1) if n + 1 < NSTEP else []
        bnd = (ks == 3 and n + 1 < NSTEP)
        if not bnd:
            dsq = B + A
            plan = [4, 4, 3, 2, 2, 2]
        else:
            dsq = A + B
            plan = [len(A), 3, 3, 2, 2, 2]
        vplan = [0, 0, 3, 3, 3, 3]
        for i in range(6):
            need([('B', n, i)])
            k(mf(n, i))
            if bnd and i == 1:
                need([('B', n, 5)])
                k("s_barrier")
            for _ in range(plan[i]):
                if dsq:
                    t, x = dsq.pop(0); ds(t, x)
            if vplan[i] and V:
                need([('A', n + 1)])
                for _ in range(vplan[i]): k(V.pop(0))
        assert not dsq and not V
    stamp(k, 2)
    k(f"""
    s_lshl_b32 s26, s17, 18            ; 2bn * 131072
    s_lshl_b32 s27, s16, 2
    s_add_u32 s27, s27, s18            ; T = 4bm + w
    s_lshl_b32 s27, s27, 11
    s_add_u32 s26, s26, s27
    s_add_u32 s28, s26, {WS_Q}
    s_add_u32 s29, s26, {WS_Q + 131072}
    s_add_u32 s30, s26, {WS_K}
    s_add_u32 s31, s26, {WS_K + 131072}
    s_add_u32 s32, s26, {WS_V}
    s_add_u32 s33, s26, {WS_V + 131072}
    s_mov_b32 s34, {f32bits(QK_SCALE)}
    v_lshlrev_b32 v3, 4, v2            ; lane*16
    s_nop 7
    """)
    for i in range(6):
        a = ACC + 16*i
        if i < 2:
            for e in range(16):
                k(f"v_mul_f32 v{a+e}, s34, v{a+e}")
        for m in range(2):
            d = 20 + 4*(2*i + m)
            for e in range(4):
                k(f"v_cvt_pk_bf16_f32 v{d+e}, v{a+8*m+2*e}, v{a+8*m+2*e+1}")
            k(f"buffer_store_dwordx4 v[{d}:{d+3}], v3, s[12:15], s{28+i} offen offset:{m*1024}")
    if 'stamp' in FLAGS:
        k("s_waitcnt vmcnt(0)")
        stamp(k, 3)
        stamp_store(k, 4, 12, 2, 18, vt=216)
    k("s_endpgm")
    k.label("qkv_producer")
    k(f"""
    s_and_b32 s19, s18, 3              ; w
    v_lshrrev_b32 v3, 3, v2            ; l>>3
    s_lshl_b32 s23, s19, 3
    v_add_u32 v3, s23, v3              ; 8w + (l>>3)
    v_lshrrev_b32 v4, 4, v2            ; l>>4
    s_and_b32 s24, s19, 1
    s_lshl_b32 s24, s24, 2
    v_add_u32 v5, s24, v4              ; 4(w&1) + (l>>4)
    v_and_b32 v6, 7, v2
    v_xor_b32 v5, v5, v6
    v_lshlrev_b32 v5, 4, v5
    v_lshl_add_u32 v8, v3, 11, v5      ; vA
    s_mov_b32 s24, 6144
    v_mul_lo_u32 v9, v3, s24
    v_lshrrev_b32 v5, 2, v2
    v_xor_b32 v5, v5, v4
    v_and_b32 v5, 1, v5                ; hd
    v_lshl_add_u32 v9, v5, 6, v9
    v_and_b32 v5, 3, v2
    v_lshl_add_u32 v9, v5, 4, v9       ; vB
    s_lshl_b32 s25, s16, 18
    s_add_u32 s25, s25, {WS_H}
    s_lshl_b32 s26, s17, 7
    s_lshl_b32 s27, s19, 10            ; w*1024
    v_lshlrev_b32 v12, 4, v2
    s_add_u32 s31, s27, {WS_MOD1F + 4096}
    s_add_u32 s32, s27, {WS_MODF}
    s_waitcnt lgkmcnt(0)
    """)
    srd(k, 8, 4, 1024*3072*2)
    srd(k, 12, 6, WS_SIZE)
    k(f"""
    s_add_u32 m0, s27, {TBL}
    s_nop 0
    buffer_load_dwordx4 v12, s[12:15], s31 offen lds
    s_add_u32 m0, s27, {TBL + 4096}
    s_nop 0
    buffer_load_dwordx4 v12, s[12:15], s32 offen lds
    """)
    vm = [('T', 0), ('T', 0)]
    def wait_tags(tags):
        idx = max(i for i, t in enumerate(vm) if t in tags)
        n = len(vm) - 1 - idx
        assert n <= 63
        k(f"s_waitcnt vmcnt({n})")
    def issueA(s):
        for p in range(4):
            k(f"s_add_u32 m0, s27, {(s & 3)*A_SLOT + p*4096}")
            k(f"s_add_u32 s28, s25, {p*65536 + s*128}")
            k(f"buffer_load_dwordx4 v8, s[12:15], s28 offen lds")
        vm.extend([('A', s)]*4)
    def boff(i): return (i & 1)*32*6144 + (i >> 1)*2048
    def issueB(s):
        for i in range(6):
            k(f"s_add_u32 m0, s27, {B_BASE + (s % 3)*B_SLOT + i*4096}")
            k(f"s_add_u32 s28, s26, {s*393216 + boff(i)}")
            k(f"buffer_load_dwordx4 v9, s[8:11], s28 offen lds")
        vm.extend([('B', s)]*6)
    issueA(0); issueB(0); issueA(1); issueB(1); issueA(2)
    wait_tags([('A', 0)])
    k("s_barrier")
    for b in range(NST):
        wait_tags([('B', b)] + ([('A', b + 1)] if b + 1 < NST else []))
        if b == 9: stamp(k, 2, flag='pstamp')
        k("s_barrier")
        if b == 8: stamp(k, 0, flag='pstamp')
        if b == 9: stamp(k, 3, flag='pstamp')
        if b + 2 < NST: issueB(b + 2)
        if b + 3 < NST: issueA(b + 3)
        if b == 8: stamp(k, 1, flag='pstamp')
    if 'pstamp' in FLAGS:
        stamp_store(k, 4, 12, 2, 18, vt=150, flag='pstamp')
    k.label("qkv_kernel_end")
    k("s_endpgm")
    finish(k, (256,1,1), (512,1,1), TBL + 8192, 224 if 'stamp' in FLAGS else 216, 102 if 'stamp' in FLAGS else 40)

def gen_attn():
    k = K("attn_kernel")
    Q, NEGM, SA, SB, P, O, Lr, ONES = 8, 16, 32, 48, 64, 72, 88, 92
    KB = [96, 104]; VB = [112, 120]
    S = [SA, SB]
    SLOT = 32768
    k(f"""
    s_cmp_ge_u32 s2, 256
    s_cbranch_scc1 attn_kernel_end
    s_load_dwordx2 s[6:7], s[0:1], {KA_WS}
    s_load_dwordx4 s[36:39], s[0:1], {KA_WG}
    s_load_dwordx2 s[52:53], s[0:1], {KA_WD}
    s_load_dwordx2 s[54:55], s[0:1], {KA_WO}
    v_lshrrev_b32 v1, 6, v0
    v_and_b32 v6, 63, v0               ; lane
    s_and_b32 s20, s2, 7               ; x
    s_lshr_b32 s21, s2, 3              ; j
    v_readfirstlane_b32 s18, v1
    s_lshr_b32 s22, s21, 3
    s_lshl_b32 s22, s22, 3
    s_add_u32 s16, s20, s22            ; head
    s_and_b32 s17, s21, 7              ; qblock
    v_lshlrev_b32 v5, 4, v6            ; lane*16
    s_lshl_b32 s23, s16, 17            ; head*64*2048
    s_lshl_b32 s24, s17, 3
    s_add_u32 s24, s24, s18
    s_lshl_b32 s25, s24, 11
    s_add_u32 s25, s25, s23
    s_add_u32 s25, s25, {WS_Q}         ; Q soffset
    s_lshl_b32 s26, s18, 11            ; wave*2048
    s_add_u32 s26, s26, s23
    s_add_u32 s27, s26, {WS_V}
    s_add_u32 s26, s26, {WS_K}
    s_lshl_b32 s28, s18, 12
    s_waitcnt lgkmcnt(0)
    """)
    srd(k, 12, 6, WS_SIZE)
    PF = 128
    k(f"""
    s_lshl_b32 s56, s21, 3
    s_add_u32 s56, s56, s18
    s_and_b32 s57, s56, 127            ; kq8
    s_cmp_ge_u32 s56, 128
    s_cselect_b32 s36, s38, s36
    s_cselect_b32 s37, s39, s37
    s_cselect_b32 s58, 0x800000, 0
    """)
    srd(k, 40, 36, 1024*3584*2)
    srd(k, 44, 52, 3584*1024*2)
    srd(k, 48, 54, 1024*1024*2)
    k(f"""
    s_mul_i32 s59, s57, {8*7168}
    s_mul_i32 s60, s20, {7*128}
    s_add_u32 s59, s59, s60
    s_mul_i32 s60, s20, {7*4*32768}
    s_add_u32 s60, s60, s58
    s_lshl_b32 s57, s57, 8
    s_add_u32 s60, s60, s57
    s_add_u32 s60, s60, {WS_G}
    s_mul_i32 s61, s20, {28*32768}
    s_mul_i32 s62, s56, 3584
    s_add_u32 s61, s61, s62
    s_and_b32 s62, s20, 1
    s_lshl_b32 s62, s62, 10
    s_lshl_b32 s63, s56, 13
    s_add_u32 s62, s62, s63
    v_lshrrev_b32 v1, 3, v6            ; l>>3
    v_and_b32 v7, 7, v6
    s_mov_b32 s63, 7168
    v_mul_lo_u32 v{PF}, v1, s63
    v_lshl_add_u32 v{PF}, v7, 4, v{PF}
    v_lshrrev_b32 v{PF+1}, 1, v7
    v_lshlrev_b32 v{PF+1}, 15, v{PF+1}
    v_lshl_add_u32 v{PF+1}, v1, 5, v{PF+1}
    v_and_b32 v7, 1, v6
    v_lshl_add_u32 v{PF+1}, v7, 4, v{PF+1}
    v_lshlrev_b32 v{PF+2}, 3, v6                ; lane*8
    """)
    def side():
        l1, l2, l3 = k.newlabel("sj"), k.newlabel("sj"), k.newlabel("sj")
        k(f"""
        s_cmp_eq_u32 s33, 0
        s_cbranch_scc1 {l1}
        buffer_store_dwordx4 v[{PF+4}:{PF+7}], v{PF+1}, s[12:15], s60 offen {os.environ.get('SJST','sc1')}
        s_add_u32 s60, s60, {4*32768}
        """)
        k.label(l1)
        k(f"""
        s_cmp_eq_u32 s33, 7
        s_cbranch_scc1 {l3}
        buffer_load_dwordx4 v[{PF+4}:{PF+7}], v{PF}, s[40:43], s59 offen
        buffer_load_dwordx2 v[{PF+8}:{PF+9}], v{PF+2}, s[44:47], s61 offen
        s_add_u32 s59, s59, 128
        s_add_u32 s61, s61, 512
        s_cmp_ge_u32 s33, 4
        s_cbranch_scc1 {l3}
        buffer_load_dwordx4 v[{PF+12}:{PF+15}], v5, s[48:51], s62 offen
        s_add_u32 s62, s62, 2048
        """)
        k.label(l3)
    def dma(slot_sreg_or_imm):
        if isinstance(slot_sreg_or_imm, int):
            k(f"s_add_u32 m0, s28, {slot_sreg_or_imm}")
        else:
            k(f"s_add_u32 m0, s28, {slot_sreg_or_imm}")
        k("s_nop 0")
        k("buffer_load_dwordx4 v5, s[12:15], s26 offen lds")
        k("buffer_load_dwordx4 v5, s[12:15], s26 offen offset:1024 lds")
        k("s_add_u32 m0, m0, 2048")
        k("s_add_u32 s26, s26, 16384")
        k("buffer_load_dwordx4 v5, s[12:15], s27 offen lds")
        k("buffer_load_dwordx4 v5, s[12:15], s27 offen offset:1024 lds")
        k("s_add_u32 s27, s27, 16384")
    k(f"""
    buffer_load_dwordx4 v[{Q}:{Q+3}], v5, s[12:15], s25 offen
    buffer_load_dwordx4 v[{Q+4}:{Q+7}], v5, s[12:15], s25 offen offset:1024
    """)
    dma(0)
    dma(SLOT)
    k(f"""
    v_lshrrev_b32 v1, 2, v6
    v_xor_b32 v1, v1, v6
    v_and_b32 v1, 4, v1
    v_cmp_eq_u32 vcc, 0, v1
    v_mov_b32 v7, 0x3f803f80
    s_nop 1
    v_cndmask_b32 v{ONES}, 0, v7, vcc
    v_cndmask_b32 v{ONES+1}, 0, v7, vcc
    v_cndmask_b32 v{ONES+2}, 0, v7, vcc
    v_cndmask_b32 v{ONES+3}, 0, v7, vcc
    v_mov_b32 v2, v5
    v_add_u32 v3, {SLOT}, v5
    s_mov_b32 s30, 0
    s_mov_b32 s31, {SLOT}
    s_mov_b32 s32, {2*SLOT}
    s_mov_b32 s33, 0                   ; stage
    """)
    for i in range(16):
        k(f"v_mov_b32 v{O+i}, 0")
    for i in range(4):
        k(f"v_mov_b32 v{Lr+i}, 0")
    stamp(k, 0, flag='astamp')
    k(f"""
    s_waitcnt vmcnt(4)
    s_barrier
    """)
    stamp(k, 1, flag='astamp')
    k(f"""
    ds_read_b128 v[{KB[0]}:{KB[0]+3}], v2 offset:0
    ds_read_b128 v[{KB[0]+4}:{KB[0]+7}], v2 offset:1024
    ds_read_b128 v[{KB[1]}:{KB[1]+3}], v2 offset:4096
    ds_read_b128 v[{KB[1]+4}:{KB[1]+7}], v2 offset:{4096+1024}
    ds_read_b128 v[{VB[0]}:{VB[0]+3}], v2 offset:2048
    ds_read_b128 v[{VB[0]+4}:{VB[0]+7}], v2 offset:3072
    s_waitcnt lgkmcnt(4)
    v_mfma_f32_32x32x16_bf16 v[{SA}:{SA+15}], v[{KB[0]}:{KB[0]+3}], v[{Q}:{Q+3}], 0
    v_mfma_f32_32x32x16_bf16 v[{SA}:{SA+15}], v[{KB[0]+4}:{KB[0]+7}], v[{Q+4}:{Q+7}], v[{SA}:{SA+15}]
    s_nop 15
    s_nop 3
    """)
    def tile_max(src, d, t):
        k(f"v_max3_f32 v{d}, v{src}, v{src+1}, v{src+2}")
        for i in range(3, 15, 2):
            k(f"v_max3_f32 v{d}, v{d}, v{src+i}, v{src+i+1}")
        k(f"v_max_f32 v{d}, v{d}, v{src+15}")
        k(f"v_mov_b32 v{t}, v{d}")
        k("s_nop 1")
        k(f"v_permlane32_swap_b32 v{d}, v{t}")
        k("s_nop 0")
        k(f"v_max_f32 v{d}, v{d}, v{t}")
    tile_max(SA, 1, 7)
    for i in range(16):
        k(f"v_sub_f32 v{NEGM+i}, 0, v1")
    k(f"""
    s_nop 1
    v_mfma_f32_32x32x16_bf16 v[{SA}:{SA+15}], v[{KB[0]}:{KB[0]+3}], v[{Q}:{Q+3}], v[{NEGM}:{NEGM+15}]
    v_mfma_f32_32x32x16_bf16 v[{SA}:{SA+15}], v[{KB[0]+4}:{KB[0]+7}], v[{Q+4}:{Q+7}], v[{SA}:{SA+15}]
    s_nop 11
    """)
    if 'a_old' not in FLAGS:
        k("s_nop 7")
        k(f"v_exp_f32 v{SA}, v{SA}")
        k(f"v_exp_f32 v{SA+1}, v{SA+1}")
        if 'a_prio' in FLAGS:
            k("s_cmp_lt_u32 s18, 4")
            k("s_cbranch_scc1 attn_noprio")
            k("s_setprio 1")
            k.label("attn_noprio")
        k(".p2align 3")
        if 'a_mis' in FLAGS: k("s_nop 0")
    k.label("attn_loop")
    for i in range(8):
        c = i & 1; n = c ^ 1
        Sc, Sn = S[c], S[n]
        Kn, Kc = KB[n], KB[c]
        Vc, Vn = VB[c], VB[n]
        k2 = ("v2", (i+2)*4096) if i + 2 < 8 else ("v3", (i+2-8)*4096)
        v1_ = ("v2", (i+1)*4096) if i + 1 < 8 else ("v3", (i+1-8)*4096)
        if i == 6:
            lab = k.newlabel("nodma")
            k(f"""
            s_waitcnt vmcnt(0)
            s_barrier
            s_cmp_ge_u32 s33, 6
            s_cbranch_scc1 {lab}
            """)
            dma("s32")
            k.label(lab)
            if 'noside' not in FLAGS: side()
        if 'a_old' in FLAGS:
            k(f"""
            s_waitcnt lgkmcnt(2)
            v_mfma_f32_32x32x16_bf16 v[{Sn}:{Sn+15}], v[{Kn}:{Kn+3}], v[{Q}:{Q+3}], v[{NEGM}:{NEGM+15}]
            """)
            for e in range(0, 4):
                k(f"v_exp_f32 v{Sc+e}, v{Sc+e}")
            k(f"v_mfma_f32_32x32x16_bf16 v[{Sn}:{Sn+15}], v[{Kn+4}:{Kn+7}], v[{Q+4}:{Q+7}], v[{Sn}:{Sn+15}]")
            k(f"ds_read_b128 v[{Kc}:{Kc+3}], {k2[0]} offset:{k2[1]}")
            k(f"ds_read_b128 v[{Kc+4}:{Kc+7}], {k2[0]} offset:{k2[1]+1024}")
            for e in range(4, 8):
                k(f"v_exp_f32 v{Sc+e}, v{Sc+e}")
            k(f"ds_read_b128 v[{Vn}:{Vn+3}], {v1_[0]} offset:{v1_[1]+2048}")
            k(f"ds_read_b128 v[{Vn+4}:{Vn+7}], {v1_[0]} offset:{v1_[1]+3072}")
            for e in range(4):
                k(f"v_cvt_pk_bf16_f32 v{P+e}, v{Sc+2*e}, v{Sc+2*e+1}")
            for e in range(8, 12):
                k(f"v_exp_f32 v{Sc+e}, v{Sc+e}")
            k("s_waitcnt lgkmcnt(4)")
            k(f"v_mfma_f32_32x32x16_bf16 v[{O}:{O+15}], v[{Vc}:{Vc+3}], v[{P}:{P+3}], v[{O}:{O+15}]")
            for e in range(12, 16):
                k(f"v_exp_f32 v{Sc+e}, v{Sc+e}")
            k(f"v_mfma_f32_16x16x32_bf16 v[{Lr}:{Lr+3}], v[{ONES}:{ONES+3}], v[{P}:{P+3}], v[{Lr}:{Lr+3}]")
            for e in range(4, 8):
                k(f"v_cvt_pk_bf16_f32 v{P+e}, v{Sc+2*e}, v{Sc+2*e+1}")
            k("s_nop 1")
            k(f"v_mfma_f32_32x32x16_bf16 v[{O}:{O+15}], v[{Vc+4}:{Vc+7}], v[{P+4}:{P+7}], v[{O}:{O+15}]")
            k(f"v_mfma_f32_16x16x32_bf16 v[{Lr}:{Lr+3}], v[{ONES}:{ONES+3}], v[{P+4}:{P+7}], v[{Lr}:{Lr+3}]")
            continue
        if i == 6: k(".p2align 3")
        def ex(regs):
            for r in regs: k(f"v_exp_f32 v{r}, v{r}")
        k("s_waitcnt lgkmcnt(2)")
        ex([Sc+2])
        k(f"v_mfma_f32_32x32x16_bf16 v[{Sn}:{Sn+15}], v[{Kn}:{Kn+3}], v[{Q}:{Q+3}], v[{NEGM}:{NEGM+15}]")
        ex([Sc+3, Sc+4, Sc+5, Sc+6])
        k(f"v_mfma_f32_32x32x16_bf16 v[{Sn}:{Sn+15}], v[{Kn+4}:{Kn+7}], v[{Q+4}:{Q+7}], v[{Sn}:{Sn+15}]")
        k(f"ds_read_b128 v[{Kc}:{Kc+3}], {k2[0]} offset:{k2[1]}")
        k(f"ds_read_b128 v[{Kc+4}:{Kc+7}], {k2[0]} offset:{k2[1]+1024}")
        ex([Sc+7, Sc+8])
        k(f"ds_read_b128 v[{Vn}:{Vn+3}], {v1_[0]} offset:{v1_[1]+2048}")
        k(f"ds_read_b128 v[{Vn+4}:{Vn+7}], {v1_[0]} offset:{v1_[1]+3072}")
        for e in range(4):
            k(f"v_cvt_pk_bf16_f32 v{P+e}, v{Sc+2*e}, v{Sc+2*e+1}")
        ex([Sc+9, Sc+10, Sc+11])
        k("s_waitcnt lgkmcnt(4)")
        k(f"v_mfma_f32_32x32x16_bf16 v[{O}:{O+15}], v[{Vc}:{Vc+3}], v[{P}:{P+3}], v[{O}:{O+15}]")
        ex([Sc+12, Sc+13, Sc+14, Sc+15])
        k(f"v_mfma_f32_16x16x32_bf16 v[{Lr}:{Lr+3}], v[{ONES}:{ONES+3}], v[{P}:{P+3}], v[{Lr}:{Lr+3}]")
        for e in range(4, 8):
            k(f"v_cvt_pk_bf16_f32 v{P+e}, v{Sc+2*e}, v{Sc+2*e+1}")
        ex([Sn, Sn+1])
        k(f"v_mfma_f32_32x32x16_bf16 v[{O}:{O+15}], v[{Vc+4}:{Vc+7}], v[{P+4}:{P+7}], v[{O}:{O+15}]")
        k(f"v_mfma_f32_16x16x32_bf16 v[{Lr}:{Lr+3}], v[{ONES}:{ONES+3}], v[{P+4}:{P+7}], v[{Lr}:{Lr+3}]")
    if FLAGS & {'a_nomfma','a_noexp','a_nods','a_nosum','a_nocvt','a_nopv'}:
        i0 = k.lines.index("attn_loop:")
        body = k.lines[i0:]
        def keep(l):
            if 'a_nomfma' in FLAGS and 'v_mfma' in l: return False
            if 'a_noexp' in FLAGS and 'v_exp' in l: return False
            if 'a_nods' in FLAGS and 'ds_read' in l: return False
            if 'a_nosum' in FLAGS and '16x16x32' in l: return False
            if 'a_nocvt' in FLAGS and 'v_cvt_pk' in l: return False
            if 'a_nopv' in FLAGS and 'v_mfma_f32_32x32x16_bf16 v[72:' in l: return False
            return True
        k.lines[i0:] = [l for l in body if keep(l)]
    k(f"""
    s_mov_b32 s34, s30
    s_mov_b32 s30, s31
    s_mov_b32 s31, s32
    s_mov_b32 s32, s34
    v_mov_b32 v2, v3
    v_add_u32 v3, s31, v5
    s_add_u32 s33, s33, 1
    s_cmp_lt_u32 s33, 8
    s_cbranch_scc1 attn_loop
    s_waitcnt lgkmcnt(0)
    s_nop 15
    """)
    stamp(k, 2, flag='astamp')
    k(f"v_mul_f32 v1, 0, v{O}")
    for i in range(1, 16):
        k(f"v_fmac_f32 v1, 0, v{O+i}")
    k(f"""
    v_add_f32 v1, v1, v{Lr}
    s_mov_b32 s34, {0 if 'forcesafe' in FLAGS else 0x4e800000}          ; 2^30
    v_cmp_nlt_f32 vcc, v1, s34
    s_nop 1
    s_cmp_lg_u64 vcc, 0
    {';' if 'a_nosafe' in FLAGS else ''}s_cbranch_scc1 attn_safe
    """)
    k.label("attn_fin")
    k(f"""
    v_rcp_f32 v1, v{Lr}
    s_lshl_b32 s25, s24, 5
    s_add_u32 s25, s25, s16
    s_lshl_b32 s25, s25, 11
    s_add_u32 s25, s25, {WS_O}
    """)
    for i in range(16):
        k(f"v_mul_f32 v{O+i}, v{O+i}, v1")
    for e in range(8):
        k(f"v_cvt_pk_bf16_f32 v{P+e}, v{O+2*e}, v{O+2*e+1}")
    k(f"""
    buffer_store_dwordx4 v[{P}:{P+3}], v5, s[12:15], s25 offen
    buffer_store_dwordx4 v[{P+4}:{P+7}], v5, s[12:15], s25 offen offset:1024
    """)
    if 'astamp' in FLAGS:
        k("s_waitcnt vmcnt(0)")
        stamp(k, 3, flag='astamp')
        stamp_store(k, 4, 12, 2, 18, flag='astamp')
    k("s_endpgm")
    k.label("attn_safe")
    M = 2; AL = 3
    k(f"""
    s_add_u32 s26, s23, {WS_K}
    s_add_u32 s27, s23, {WS_V}
    s_mov_b32 s33, 0
    v_mov_b32 v{M}, 0xff7fffff
    """)
    for i in range(16):
        k(f"v_mov_b32 v{O+i}, 0")
    for i in range(4):
        k(f"v_mov_b32 v{Lr+i}, 0")
    k.label("attn_safe_loop")
    k(f"""
    buffer_load_dwordx4 v[{KB[0]}:{KB[0]+3}], v5, s[12:15], s26 offen
    buffer_load_dwordx4 v[{KB[0]+4}:{KB[0]+7}], v5, s[12:15], s26 offen offset:1024
    buffer_load_dwordx4 v[{VB[0]}:{VB[0]+3}], v5, s[12:15], s27 offen
    buffer_load_dwordx4 v[{VB[0]+4}:{VB[0]+7}], v5, s[12:15], s27 offen offset:1024
    s_add_u32 s26, s26, 2048
    s_add_u32 s27, s27, 2048
    s_waitcnt vmcnt(0)
    v_mfma_f32_32x32x16_bf16 v[{SA}:{SA+15}], v[{KB[0]}:{KB[0]+3}], v[{Q}:{Q+3}], 0
    v_mfma_f32_32x32x16_bf16 v[{SA}:{SA+15}], v[{KB[0]+4}:{KB[0]+7}], v[{Q+4}:{Q+7}], v[{SA}:{SA+15}]
    s_nop 15
    s_nop 3
    """)
    tile_max(SA, 1, 7)
    k(f"""
    v_max_f32 v1, v1, v{M}
    v_sub_f32 v{AL}, v{M}, v1
    v_exp_f32 v{AL}, v{AL}
    v_mov_b32 v{M}, v1
    """)
    for i in range(16):
        k(f"v_sub_f32 v{SA+i}, v{SA+i}, v1")
    for i in range(16):
        k(f"v_exp_f32 v{SA+i}, v{SA+i}")
    for i in range(16):
        k(f"v_mul_f32 v{O+i}, v{O+i}, v{AL}")
    for i in range(4):
        k(f"v_mul_f32 v{Lr+i}, v{Lr+i}, v{AL}")
    for e in range(8):
        k(f"v_cvt_pk_bf16_f32 v{P+e}, v{SA+2*e}, v{SA+2*e+1}")
    k(f"""
    s_nop 1
    v_mfma_f32_32x32x16_bf16 v[{O}:{O+15}], v[{VB[0]}:{VB[0]+3}], v[{P}:{P+3}], v[{O}:{O+15}]
    v_mfma_f32_16x16x32_bf16 v[{Lr}:{Lr+3}], v[{ONES}:{ONES+3}], v[{P}:{P+3}], v[{Lr}:{Lr+3}]
    v_mfma_f32_32x32x16_bf16 v[{O}:{O+15}], v[{VB[0]+4}:{VB[0]+7}], v[{P+4}:{P+7}], v[{O}:{O+15}]
    v_mfma_f32_16x16x32_bf16 v[{Lr}:{Lr+3}], v[{ONES}:{ONES+3}], v[{P+4}:{P+7}], v[{Lr}:{Lr+3}]
    s_nop 15
    s_nop 3
    s_add_u32 s33, s33, 1
    s_cmp_lt_u32 s33, 64
    s_cbranch_scc1 attn_safe_loop
    s_branch attn_fin
    """)
    k.label("attn_kernel_end")
    k("s_endpgm")
    finish(k, (256,1,1), (512,1,1), 3*SLOT, 256 if 'astamp' in FLAGS else 144, 102 if 'astamp' in FLAGS else 72)

def gen_wo():
    k = K("wo_kernel")
    NST, R = 16, 6
    SLOT = 24576
    WOFF = 8192
    k(f"""
    s_cmp_ge_u32 s2, 256
    s_cbranch_scc1 wo_kernel_end
    s_load_dwordx2 s[4:5], s[0:1], {KA_WO}
    s_load_dwordx2 s[6:7], s[0:1], {KA_WS}
    s_load_dwordx2 s[36:37], s[0:1], {KA_X}
    s_load_dwordx2 s[38:39], s[0:1], {KA_WR}
    v_lshrrev_b32 v1, 6, v0
    v_and_b32 v2, 63, v0               ; lane
    s_and_b32 s20, s2, 7               ; x
    s_lshr_b32 s21, s2, 3              ; j
    v_readfirstlane_b32 s18, v1
    s_lshr_b32 s16, s20, 1
    s_lshl_b32 s16, s16, 3
    s_and_b32 s22, s21, 7
    s_add_u32 s16, s16, s22            ; bm (0..31)
    s_and_b32 s17, s20, 1
    s_lshl_b32 s17, s17, 2
    s_lshr_b32 s22, s21, 3
    s_add_u32 s17, s17, s22            ; bn (0..7)
    s_waitcnt lgkmcnt(0)
    """)
    srd(k, 8, 4, 1024*1024*2)
    srd(k, 12, 6, WS_SIZE)
    k(f"""
    s_cmp_ge_u32 s18, 4
    s_cbranch_scc1 wo_producer
    """)
    srd(k, 40, 36, 2048*1024*2)
    srd(k, 44, 38, 2048)
    XR, GA, CB, WR = 128, 144, 152, 160
    k(f"""
    v_and_b32 v3, 31, v2               ; tok
    v_lshrrev_b32 v4, 5, v2            ; hh
    v_lshlrev_b32 v5, 11, v3
    v_lshl_add_u32 v5, v4, 3, v5
    s_lshl_b32 s24, s16, 17            ; bm*64*2048
    s_lshl_b32 s25, s17, 8             ; bn*256
    s_lshl_b32 s26, s18, 6             ; w*64
    s_add_u32 s25, s25, s26
    s_add_u32 s26, s24, s25
    s_add_u32 s27, s26, 65536          ; tt=1
    v_lshlrev_b32 v6, 3, v4            ; hh*8
    s_add_u32 s28, s25, {WS_MOD + 2*2048}   ; ga
    s_add_u32 s29, s25, {WS_MOD + 4*2048}   ; cb
    """)
    for tt in range(2):
        for q in range(4):
            r = XR + 8*tt + 2*q
            k(f"buffer_load_dwordx2 v[{r}:{r+1}], v5, s[40:43], s{26+tt} offen offset:{16*q}")
    for q in range(4):
        k(f"buffer_load_dwordx2 v[{GA+2*q}:{GA+2*q+1}], v6, s[12:15], s28 offen offset:{16*q}")
        k(f"buffer_load_dwordx2 v[{CB+2*q}:{CB+2*q+1}], v6, s[12:15], s29 offen offset:{16*q}")
        k(f"buffer_load_dwordx2 v[{WR+2*q}:{WR+2*q+1}], v6, s[44:47], s25 offen offset:{16*q}")
    k(f"""
    v_lshlrev_b32 v8, 4, v2
    v_add_u32 v9, {2*SLOT}, v8
    v_add_u32 v10, {4*SLOT}, v8
    v_lshrrev_b32 v7, 2, v2
    v_and_b32 v7, 3, v7                ; r
    v_lshl_add_u32 v11, v4, 2, v7      ; 4hh + r
    v_lshlrev_b32 v11, 8, v11          ; *256
    v_xor_b32 v7, s18, v7              ; w ^ r
    v_lshl_add_u32 v11, v7, 6, v11
    v_lshrrev_b32 v7, 4, v2
    v_and_b32 v7, 1, v7                ; ng
    v_lshl_add_u32 v11, v7, 5, v11
    v_and_b32 v7, 3, v2
    v_lshl_add_u32 v11, v7, 3, v11
    v_add_u32 v11, {WOFF}, v11
    v_add_u32 v12, {2*SLOT}, v11
    v_add_u32 v13, {4*SLOT}, v11
    """)
    ACC = 16
    SETS = [48, 96 - 0]
    SETS = [48, 176]
    for i in range(32):
        k(f"v_mov_b32 v{ACC+i}, 0")
    def reads(st, s):
        S = SETS[st]; slot = s % R
        r = []
        for ks in range(4):
            b = S + 12*ks
            base = (slot & 1)*SLOT
            r.append(f"ds_read_b64_tr_b16 v[{b+8}:{b+9}], v{11+(slot>>1)} offset:{base + ks*4096}")
            r.append(f"ds_read_b64_tr_b16 v[{b+10}:{b+11}], v{11+(slot>>1)} offset:{base + ks*4096 + 2048}")
            r.append(f"ds_read_b128 v[{b}:{b+3}], v{8+(slot>>1)} offset:{base + ks*1024}")
            r.append(f"ds_read_b128 v[{b+4}:{b+7}], v{8+(slot>>1)} offset:{base + 4096 + ks*1024}")
        return r
    def mfmas(st):
        S = SETS[st]; r = []
        for ks in range(4):
            b = S + 12*ks
            for tt in range(2):
                a = ACC + 16*tt
                r.append(f"v_mfma_f32_32x32x16_bf16 v[{a}:{a+15}], v[{b+8}:{b+11}], v[{b+4*tt}:{b+4*tt+3}], v[{a}:{a+15}]")
        return r
    k("s_barrier")
    for r in reads(0, 0):
        k(r)
    for s in range(NST):
        m = mfmas(s & 1)
        k("s_waitcnt lgkmcnt(0)")
        k(m[0])
        if s + 1 < NST:
            k("s_barrier")
            rd = reads((s + 1) & 1, s + 1)
        else:
            rd = []
        for i in range(1, 8):
            for r in rd[(i-1)*3:(i-1)*3+3]:
                k(r)
            k(m[i])
    U = 48; G = 64; T = 80; ST = 84
    k("s_waitcnt vmcnt(0)")
    for j in range(8):
        unpack_bf16(k, GA+j, G+2*j)
        unpack_bf16(k, CB+j, U+2*j)
        k(f"v_add_f32 v{U+2*j}, 1.0, v{U+2*j}")
        k(f"v_add_f32 v{U+2*j+1}, 1.0, v{U+2*j+1}")
        round_bf16_pair(k, U+2*j, U+2*j+1, T)
        unpack_bf16(k, WR+j, T)
        k(f"v_mul_f32 v{U+2*j}, v{U+2*j}, v{T}")
        k(f"v_mul_f32 v{U+2*j+1}, v{U+2*j+1}, v{T+1}")
    k(f"""
    v_lshlrev_b32 v5, 11, v3
    v_lshl_add_u32 v5, v4, 4, v5
    s_add_u32 s26, s26, {WS_X1}
    s_add_u32 s27, s27, {WS_X1}
    """)
    for tt in range(2):
        a = ACC + 16*tt
        s1, s2_, s3 = ST + 3*tt, ST + 3*tt + 1, ST + 3*tt + 2
        for j in range(8):
            x0, x1 = a + 2*j, a + 2*j + 1
            round_bf16_pair(k, x0, x1, T)
            k(f"v_mul_f32 v{x0}, v{x0}, v{G+2*j}")
            k(f"v_mul_f32 v{x1}, v{x1}, v{G+2*j+1}")
            round_bf16_pair(k, x0, x1, T)
            unpack_bf16(k, XR + 8*tt + j, T)
            k(f"v_add_f32 v{x0}, v{x0}, v{T}")
            k(f"v_add_f32 v{x1}, v{x1}, v{T+1}")
            d = XR + 8*tt + j
            k(f"v_cvt_pk_bf16_f32 v{d}, v{x0}, v{x1}")
            k(f"v_lshlrev_b32 v{x0}, 16, v{d}")
            k(f"v_and_b32 v{x1}, 0xffff0000, v{d}")
            if j == 0:
                k(f"v_add_f32 v{s1}, v{x0}, v{x1}")
                k(f"v_mul_f32 v{s2_}, v{x0}, v{x0}")
                k(f"v_mul_f32 v{s3}, v{x0}, v{U+2*j}")
            else:
                k(f"v_add_f32 v{s1}, v{s1}, v{x0}")
                k(f"v_add_f32 v{s1}, v{s1}, v{x1}")
                k(f"v_fmac_f32 v{s2_}, v{x0}, v{x0}")
                k(f"v_fmac_f32 v{s3}, v{x0}, v{U+2*j}")
            k(f"v_fmac_f32 v{s2_}, v{x1}, v{x1}")
            k(f"v_fmac_f32 v{s3}, v{x1}, v{U+2*j+1}")
        for q in (0, 2):
            d = XR + 8*tt + 2*q
            k("s_nop 1")
            k(f"v_permlane32_swap_b32 v{d}, v{d+2}")
            k(f"v_permlane32_swap_b32 v{d+1}, v{d+3}")
            k(f"buffer_store_dwordx4 v[{d}:{d+3}], v5, s[12:15], s{26+tt} offen offset:{16*q}")
    k(f"""
    v_lshlrev_b32 v5, 2, v2            ; lane*4
    s_lshl_b32 s26, s16, 8
    s_add_u32 s26, s26, {WS_STAT}
    s_add_u32 s27, s26, 8192
    s_add_u32 s28, s26, 16384
    s_nop 1
    """)
    for i in range(3):
        k(f"v_permlane32_swap_b32 v{ST+i}, v{ST+3+i}")
    k("s_nop 0")
    for i in range(3):
        k(f"v_add_f32 v{ST+i}, v{ST+i}, v{ST+3+i}")
    for i in range(3):
        k(f"buffer_atomic_add_f32 v{ST+i}, v5, s[12:15], s{26+i} offen")
    k("s_endpgm")
    k.label("wo_producer")
    k(f"""
    s_sub_u32 s19, s18, 4              ; w
    v_lshlrev_b32 v8, 4, v2            ; o: lane*16
    v_lshrrev_b32 v3, 4, v2
    s_lshl_b32 s23, s19, 2
    v_add_u32 v4, s23, v3              ; 4w + row
    v_lshlrev_b32 v9, 11, v4
    v_lshrrev_b32 v5, 2, v2
    v_xor_b32 v5, v5, v3
    v_and_b32 v5, 3, v5
    v_lshl_add_u32 v9, v5, 6, v9
    v_and_b32 v5, 3, v2
    v_lshl_add_u32 v9, v5, 4, v9       ; vW
    s_lshl_b32 s25, s16, 1
    s_lshr_b32 s24, s19, 1
    s_add_u32 s25, s25, s24            ; T = 2bm + (w>>1)
    s_lshl_b32 s25, s25, 16
    s_and_b32 s24, s19, 1
    s_lshl_b32 s24, s24, 11
    s_add_u32 s25, s25, s24
    s_add_u32 s25, s25, {WS_O}
    s_lshl_b32 s26, s17, 8
    s_lshl_b32 s27, s19, 11
    s_lshl_b32 s29, s19, 10
    """)
    def issue(s):
        slot = s % R
        k(f"s_add_u32 m0, s27, {slot*SLOT}")
        k(f"s_add_u32 s28, s25, {s*4096}")
        k(f"buffer_load_dwordx4 v8, s[12:15], s28 offen lds")
        k(f"buffer_load_dwordx4 v8, s[12:15], s28 offen offset:1024 lds")
        for i in range(4):
            k(f"s_add_u32 m0, s29, {slot*SLOT + WOFF + i*4096}")
            k(f"s_add_u32 s28, s26, {(s*64 + i*16)*2048}")
            k(f"buffer_load_dwordx4 v9, s[8:11], s28 offen lds")
    for s in range(R):
        issue(s)
    issued = R
    for b in range(NST):
        k(f"s_waitcnt vmcnt({6*(issued - b - 1)})")
        k("s_barrier")
        if b >= 1 and b - 1 + R < NST:
            issue(b - 1 + R)
            issued += 1
    k.label("wo_kernel_end")
    k("s_endpgm")
    finish(k, (256,1,1), (512,1,1), R*SLOT, 224, 48)

def wave_red_u32max(k, v, t):
    k(f"""
    s_nop 1
    v_max_u32_dpp v{t}, v{v}, v{v} quad_perm:[1,0,3,2] row_mask:0xf bank_mask:0xf
    s_nop 1
    v_max_u32_dpp v{v}, v{t}, v{t} quad_perm:[2,3,0,1] row_mask:0xf bank_mask:0xf
    s_nop 1
    v_max_u32_dpp v{t}, v{v}, v{v} row_half_mirror row_mask:0xf bank_mask:0xf
    s_nop 1
    v_max_u32_dpp v{v}, v{t}, v{t} row_mirror row_mask:0xf bank_mask:0xf
    s_nop 0
    v_mov_b32 v{t}, v{v}
    s_nop 1
    v_permlane16_swap_b32 v{v}, v{t}
    s_nop 0
    v_max_u32 v{v}, v{v}, v{t}
    v_mov_b32 v{t}, v{v}
    s_nop 1
    v_permlane32_swap_b32 v{v}, v{t}
    s_nop 0
    v_max_u32 v{v}, v{v}, v{t}
    """)

def round_bf16(k, a):
    k(f"v_cvt_pk_bf16_f32 v{a}, v{a}, v{a}")
    k(f"v_lshlrev_b32 v{a}, 16, v{a}")

NGEMV = 224
def gen_moe():
    k = K("moe_kernel")
    k(f"""
    s_cmp_ge_u32 s2, {NGEMV + 256}
    s_cbranch_scc1 moe_kernel_end
    s_load_dwordx2 s[6:7], s[0:1], {KA_WS}
    s_load_dwordx2 s[36:37], s[0:1], {KA_WG}
    s_load_dwordx2 s[38:39], s[0:1], {KA_WU}
    s_load_dwordx2 s[40:41], s[0:1], {KA_WD}
    s_load_dwordx2 s[42:43], s[0:1], {KA_WR}
    s_load_dwordx2 s[44:45], s[0:1], {KA_OUT}
    v_lshrrev_b32 v1, 6, v0
    v_and_b32 v2, 63, v0               ; lane
    s_nop 0
    v_readfirstlane_b32 s18, v1
    v_lshlrev_b32 v4, 4, v2            ; lane*16
    s_waitcnt lgkmcnt(0)
    """)
    srd(k, 12, 6, WS_SIZE)
    k(f"""
    s_cmp_ge_u32 s2, {NGEMV}
    s_cbranch_scc1 {'moe_kernel_end' if 'noln2' in FLAGS else 'moe_ln2'}
    """)
    if 'nogemv' in FLAGS: k("s_endpgm")
    stamp(k, 0, 72, 'mstamp')
    srd(k, 48, 36, 1024*3584*2)
    srd(k, 52, 38, 1024*3584*2)
    srd(k, 56, 40, 3584*1024*2)
    srd(k, 60, 42, 2048)
    GW, UW, DW, STT = 64, 80, 96, 112
    k(f"""
    s_and_b32 s69, s2, 7
    s_mul_i32 s69, s69, 28
    s_lshr_b32 s24, s2, 3
    s_add_u32 s69, s69, s24
    v_lshlrev_b32 v5, 4, v0            ; t*16
    s_mov_b32 s20, {WS_STAT}
    s_mov_b32 s21, {WS_STAT + 8192}
    s_mov_b32 s22, {WS_STAT + 16384}
    buffer_load_dwordx4 v[{STT}:{STT+3}], v5, s[12:15], s20 offen
    buffer_load_dwordx4 v[{STT+4}:{STT+7}], v5, s[12:15], s21 offen
    buffer_load_dwordx4 v[{STT+8}:{STT+11}], v5, s[12:15], s22 offen
    v_lshlrev_b32 v6, 2, v0            ; t*4
    s_mov_b32 s23, {WS_MOD + 4*2048}
    buffer_load_dword v8, v6, s[12:15], s23 offen
    buffer_load_dword v9, v6, s[60:63], 0 offen       ; w_r pair
    v_lshlrev_b32 v7, 4, v0
    s_lshl_b32 s24, s69, 15            ; cg*32768
    s_add_u32 s24, s24, {WS_G}
    s_add_u32 s25, s24, 0x800000
    s_add_u32 s26, s24, 16384
    s_add_u32 s27, s25, 16384
    """)
    for i in range(4):
        k(f"buffer_load_dwordx4 v[{GW+4*i}:{GW+4*i+3}], v7, s[12:15], s{24+2*(i>>1)} offen{' offset:%d' % 0 if False else ''}" if not (i & 1) else f"buffer_load_dwordx4 v[{GW+4*i}:{GW+4*i+3}], v10, s[12:15], s{24+2*(i>>1)} offen")
        k(f"buffer_load_dwordx4 v[{UW+4*i}:{UW+4*i+3}], v7, s[12:15], s{25+2*(i>>1)} offen" if not (i & 1) else f"buffer_load_dwordx4 v[{UW+4*i}:{UW+4*i+3}], v10, s[12:15], s{25+2*(i>>1)} offen")
        if i == 0: k("v_add_u32 v10, 8192, v7")
    k(f"""
    v_lshrrev_b32 v10, 7, v0           ; fq
    v_and_b32 v11, 127, v0             ; dg
    v_lshlrev_b32 v11, 4, v11
    v_lshl_add_u32 v124, v10, 13, v11
    s_lshl_b32 s28, s69, 15            ; cg*32768
    s_add_u32 s29, s28, 4096
    s_mov_b32 s19, {WS_MOD + 3*2048}
    buffer_load_dwordx4 v[40:43], v4, s[12:15], s19 offen
    buffer_load_dwordx4 v[44:47], v4, s[12:15], s19 offen offset:1024
    buffer_load_dwordx4 v[48:51], v4, s[12:15], s23 offen
    buffer_load_dwordx4 v[52:55], v4, s[12:15], s23 offen offset:1024
    buffer_load_dwordx4 v[56:59], v4, s[60:63], 0 offen
    buffer_load_dwordx4 v[60:63], v4, s[60:63], 0 offen offset:1024
    s_waitcnt vmcnt(14)
    """)
    stamp(k, 1, 72, 'mstamp')
    unpack_bf16(k, 8, 12)
    k("v_add_f32 v12, 1.0, v12")
    k("v_add_f32 v13, 1.0, v13")
    round_bf16_pair(k, 12, 13, 14)
    unpack_bf16(k, 9, 14)
    k("v_mul_f32 v12, v12, v14")
    k("v_fmac_f32 v12, v13, v15")
    wave_sum(k, 12, 13)
    k(f"""
    s_lshl_b32 s30, s18, 2
    v_mov_b32 v13, s30
    ds_write_b32 v13, v12 offset:0
    s_waitcnt lgkmcnt(0)
    s_barrier
    v_mov_b32 v13, 0
    ds_read_b128 v[16:19], v13 offset:0
    ds_read_b128 v[20:23], v13 offset:16
    s_waitcnt lgkmcnt(0)
    v_add_f32 v12, v16, v17
    v_add_f32 v12, v12, v18
    v_add_f32 v12, v12, v19
    v_add_f32 v12, v12, v20
    v_add_f32 v12, v12, v21
    v_add_f32 v12, v12, v22
    v_add_f32 v12, v12, v23            ; U
    v_lshlrev_b32 v24, 2, v0           ; token0 = 4t
    v_sub_u32 v24, 2047, v24           ; 2047 - token0
    v_mov_b32 v25, 0
    """)
    for i in range(4):
        S1, S2, S3 = STT + i, STT + 4 + i, STT + 8 + i
        k(f"""
        v_mul_f32 v16, 0x3a800000, v{S1}        ; mean
        v_mul_f32 v17, 0x3a800000, v{S2}
        v_fma_f32 v17, -v16, v16, v17           ; var
        v_max_f32 v17, 0, v17
        """)
        round_bf16_pair(k, 16, 17, 18)
        k("v_add_f32 v17, 0x3727c5ac, v17")
        round_bf16(k, 17)
        k("v_sqrt_f32 v17, v17")
        k("s_nop 0")
        round_bf16(k, 17)
        k(f"""
        v_rcp_f32 v17, v17
        v_fma_f32 v18, -v16, v12, v{S3}
        s_nop 0
        v_mul_f32 v18, v18, v17
        v_ashrrev_i32 v19, 31, v18
        v_or_b32 v19, 0x80000000, v19
        v_xor_b32 v18, v18, v19                 ; monotonic u32
        v_and_b32 v18, 0xfffff800, v18
        v_subrev_u32 v19, {i}, v24              ; 2047 - token
        v_or_b32 v18, v18, v19
        v_max_u32 v25, v25, v18
        """)
    wave_red_u32max(k, 25, 26)
    k(f"""
    v_mov_b32 v13, s30
    ds_write_b32 v13, v25 offset:64
    s_waitcnt lgkmcnt(0)
    s_barrier
    v_mov_b32 v13, 0
    ds_read_b128 v[16:19], v13 offset:64
    ds_read_b128 v[20:23], v13 offset:80
    s_waitcnt lgkmcnt(0)
    v_max3_u32 v25, v16, v17, v18
    v_max3_u32 v25, v25, v19, v20
    v_max3_u32 v25, v25, v21, v22
    v_max_u32 v25, v25, v23
    v_and_b32 v25, 0x7ff, v25
    v_sub_u32 v25, 2047, v25           ; sel
    s_nop 0
    v_readfirstlane_b32 s68, v25
    v_lshl_add_u32 v3, v25, 11, v4
    s_mov_b32 s31, {WS_X1}
    s_cmp_lg_u32 s18, 0
    s_cbranch_scc1 moe_norow
    buffer_load_dwordx4 v[8:11], v3, s[12:15], s31 offen
    buffer_load_dwordx4 v[12:15], v3, s[12:15], s31 offen offset:1024
moe_norow:
    buffer_load_dwordx4 v[{DW}:{DW+3}], v124, s[56:59], s28 offen
    buffer_load_dwordx4 v[{DW+4}:{DW+7}], v124, s[56:59], s28 offen offset:2048
    buffer_load_dwordx4 v[{DW+8}:{DW+11}], v124, s[56:59], s29 offen
    buffer_load_dwordx4 v[{DW+12}:{DW+15}], v124, s[56:59], s29 offen offset:2048
    s_cbranch_scc1 moe_wait_h2
    s_waitcnt vmcnt(4)
    """)
    for j in range(8):
        unpack_bf16(k, 8+j, 16+2*j)
    ln_core(k, 16, 32)
    modulate(k, 16, 48, 40, 32)
    for j in range(0, 16, 2):
        round_bf16_pair(k, 16+j, 17+j, 32)
    k(f"""
    v_lshlrev_b32 v33, 5, v2
    ds_write_b128 v33, v[16:19] offset:1024
    ds_write_b128 v33, v[20:23] offset:1040
    ds_write_b128 v33, v[24:27] offset:{1024+2048}
    ds_write_b128 v33, v[28:31] offset:{1040+2048}
    s_cmp_lg_u32 s2, 0
    s_cbranch_scc1 moe_wait_h2
    """)
    for j in range(8):
        unpack_bf16(k, 56+j, 34)
        if j == 0:
            k(f"v_mul_f32 v32, v16, v34")
        else:
            k(f"v_fmac_f32 v32, v{16+2*j}, v34")
        k(f"v_fmac_f32 v32, v{17+2*j}, v35")
    wave_sum(k, 32, 33)
    round_bf16(k, 32)
    k(f"""
    v_mul_f32 v33, 0xbfb8aa3b, v32
    v_exp_f32 v33, v33
    s_nop 0
    v_add_f32 v33, 1.0, v33
    v_rcp_f32 v33, v33
    s_nop 0
    """)
    round_bf16(k, 33)
    k(f"""
    v_mov_b32 v32, s68
    v_mov_b32 v34, 0
    s_mov_b32 s31, {WS_SEL}
    buffer_store_dwordx2 v[32:33], v34, s[12:15], s31 offen
    buffer_store_dwordx4 v[8:11], v4, s[12:15], s31 offen offset:2048
    buffer_store_dwordx4 v[12:15], v4, s[12:15], s31 offen offset:3072
    """)
    for j in range(8):
        k(f"v_cvt_pk_bf16_f32 v{40+j}, v{16+2*j}, v{17+2*j}")
    k(f"""
    s_add_u32 s31, s31, 4096
    buffer_store_dwordx4 v[40:43], v4, s[12:15], s31 offen
    buffer_store_dwordx4 v[44:47], v4, s[12:15], s31 offen offset:1024
    """)
    k.label("moe_wait_h2")
    stamp(k, 2, 72, 'mstamp')
    k(f"""
    s_waitcnt lgkmcnt(0)
    s_barrier
    """)
    stamp(k, 3, 72, 'mstamp')
    k(f"""
    v_lshrrev_b32 v13, 1, v0
    v_lshlrev_b32 v13, 2, v13          ; kr*4
    ds_read_b32 v8, v13 offset:1024
    ds_read_b32 v9, v13 offset:2048
    ds_read_b32 v10, v13 offset:3072
    ds_read_b32 v11, v13 offset:4096
    s_waitcnt vmcnt(4) lgkmcnt(0)
    """)
    stamp(k, 4, 72, 'mstamp')
    AC = 16
    for mi, W in enumerate((GW, UW)):
        for i in range(4):
            for j in range(4):
                unpack_bf16(k, W + 4*i + j, 12)
                a = AC + 8*mi + 2*j
                if i == 0:
                    k(f"v_mul_f32 v{a}, v{8+i}, v12")
                    k(f"v_mul_f32 v{a+1}, v{8+i}, v13")
                else:
                    k(f"v_fmac_f32 v{a}, v{8+i}, v12")
                    k(f"v_fmac_f32 v{a+1}, v{8+i}, v13")
    TM = 32
    k("s_nop 1")
    for j in range(16):
        k(f"v_add_f32_dpp v{TM+j}, v{AC+j}, v{AC+j} quad_perm:[2,3,0,1] row_mask:0xf bank_mask:0xf")
    for j in range(16):
        k(f"v_add_f32_dpp v{AC+j}, v{TM+j}, v{TM+j} row_ror:4 row_mask:0xf bank_mask:0xf")
    for j in range(16):
        k(f"v_add_f32_dpp v{TM+j}, v{AC+j}, v{AC+j} row_ror:8 row_mask:0xf bank_mask:0xf")
    for j in range(16):
        k(f"v_mov_b32 v{AC+j}, v{TM+j}")
    k("s_nop 1")
    for j in range(16):
        k(f"v_permlane16_swap_b32 v{AC+j}, v{TM+j}")
    for j in range(16):
        k(f"v_add_f32 v{AC+j}, v{AC+j}, v{TM+j}")
    for j in range(16):
        k(f"v_mov_b32 v{TM+j}, v{AC+j}")
    k("s_nop 1")
    for j in range(16):
        k(f"v_permlane32_swap_b32 v{AC+j}, v{TM+j}")
    for j in range(16):
        k(f"v_add_f32 v{AC+j}, v{AC+j}, v{TM+j}")
    k(f"""
    s_lshl_b32 s30, s18, 7
    v_lshlrev_b32 v13, 5, v2
    v_add_u32 v13, s30, v13
    v_cmp_gt_u32 vcc, 2, v2
    s_and_saveexec_b64 s[32:33], vcc
    ds_write_b128 v13, v[16:19] offset:6144
    ds_write_b128 v13, v[20:23] offset:6160
    ds_write_b128 v13, v[24:27] offset:{6144+64}
    ds_write_b128 v13, v[28:31] offset:{6160+64}
    s_mov_b64 exec, s[32:33]
    s_waitcnt lgkmcnt(0)
    s_barrier
    v_and_b32 v13, 31, v2
    v_lshlrev_b32 v13, 2, v13
    """)
    for w in range(8):
        k(f"ds_read_b32 v{16+w}, v13 offset:{6144 + 128*w}")
    k("s_waitcnt lgkmcnt(0)")
    for w in range(1, 8):
        k(f"v_add_f32 v16, v16, v{16+w}")
    round_bf16(k, 16)
    k(f"""
    v_mul_f32 v17, 0xbfb8aa3b, v16
    v_exp_f32 v17, v17
    s_nop 0
    v_add_f32 v17, 1.0, v17
    v_rcp_f32 v17, v17
    s_nop 0
    v_mul_f32 v17, v16, v17
    """)
    round_bf16(k, 17)
    k(f"""
    v_mov_b32 v18, v16
    s_nop 1
    v_permlane16_swap_b32 v16, v18
    s_nop 0
    v_mul_f32 v17, v17, v18
    """)
    round_bf16(k, 17)
    k(f"""
    s_lshr_b32 s30, s18, 1
    s_lshl_b32 s30, s30, 2
    s_add_u32 s31, s30, 1
    s_add_u32 s34, s30, 2
    s_add_u32 s35, s30, 3
    s_nop 0
    v_readlane_b32 s64, v17, s30
    v_readlane_b32 s65, v17, s31
    v_readlane_b32 s66, v17, s34
    v_readlane_b32 s67, v17, s35
    s_waitcnt vmcnt(0)
    """)
    for i in range(4):
        for j in range(4):
            unpack_bf16(k, DW + 4*i + j, 12)
            a = AC + 2*j
            if i == 0:
                k(f"v_mul_f32 v{a}, s{64+i}, v12")
                k(f"v_mul_f32 v{a+1}, s{64+i}, v13")
            else:
                k(f"v_fmac_f32 v{a}, s{64+i}, v12")
                k(f"v_fmac_f32 v{a+1}, s{64+i}, v13")
    k(f"""
    v_lshlrev_b32 v13, 5, v0
    ds_write_b128 v13, v[16:19] offset:8192
    ds_write_b128 v13, v[20:23] offset:8208
    s_waitcnt lgkmcnt(0)
    s_barrier
    v_lshlrev_b32 v13, 3, v0           ; t*8
    ds_read_b64 v[16:17], v13 offset:8192
    ds_read_b64 v[18:19], v13 offset:{8192+4096}
    ds_read_b64 v[20:21], v13 offset:{8192+8192}
    ds_read_b64 v[22:23], v13 offset:{8192+12288}
    s_lshl_b32 s30, s2, 12
    s_add_u32 s30, s30, {WS_Y}
    s_waitcnt lgkmcnt(0)
    v_add_f32 v16, v16, v18
    v_add_f32 v17, v17, v19
    v_add_f32 v20, v20, v22
    v_add_f32 v21, v21, v23
    v_add_f32 v16, v16, v20
    v_add_f32 v17, v17, v21
    buffer_store_dwordx2 v[16:17], v13, s[12:15], s30 offen
    """)
    stamp(k, 5, 72, 'mstamp')
    if 'mstamp' in FLAGS:
        k("s_waitcnt vmcnt(0)")
        stamp(k, 6, 72, 'mstamp')
        stamp_store(k, 7, 12, 2, 18, 72, 120, 'mstamp')
    k("s_endpgm")
    k.label("moe_ln2")
    srd(k, 48, 44, 2048*1024*2)
    k(f"""
    s_sub_u32 s20, s2, {NGEMV}
    s_lshl_b32 s20, s20, 3
    s_add_u32 s20, s20, s18            ; row
    s_lshl_b32 s20, s20, 11
    s_add_u32 s21, s20, {WS_X1}
    s_mov_b32 s23, {WS_MOD + 4*2048}
    buffer_load_dwordx4 v[8:11], v4, s[12:15], s21 offen
    buffer_load_dwordx4 v[12:15], v4, s[12:15], s21 offen offset:1024
    s_mov_b32 s19, {WS_MOD + 3*2048}
    buffer_load_dwordx4 v[40:43], v4, s[12:15], s19 offen
    buffer_load_dwordx4 v[44:47], v4, s[12:15], s19 offen offset:1024
    buffer_load_dwordx4 v[48:51], v4, s[12:15], s23 offen
    buffer_load_dwordx4 v[52:55], v4, s[12:15], s23 offen offset:1024
    buffer_load_dwordx4 v[56:59], v4, s[12:15], s23 offen offset:2048
    buffer_load_dwordx4 v[60:63], v4, s[12:15], s23 offen offset:3072
    s_waitcnt vmcnt(6)
    """)
    for j in range(8):
        unpack_bf16(k, 8+j, 16+2*j)
    ln_core(k, 16, 32)
    k("s_waitcnt vmcnt(0)")
    modulate(k, 16, 48, 40, 32)
    for j in range(8):
        a, b = 16+2*j, 17+2*j
        round_bf16_pair(k, a, b, 32)
        unpack_bf16(k, 56+j, 32)
        k(f"v_mul_f32 v{a}, v{a}, v32")
        k(f"v_mul_f32 v{b}, v{b}, v33")
        round_bf16_pair(k, a, b, 32)
        unpack_bf16(k, 8+j, 32)
        k(f"v_add_f32 v{a}, v{a}, v32")
        k(f"v_add_f32 v{b}, v{b}, v33")
        k(f"v_cvt_pk_bf16_f32 v{8+j}, v{a}, v{b}")
    k(f"""
    buffer_store_dwordx4 v[8:11], v4, s[48:51], s20 offen
    buffer_store_dwordx4 v[12:15], v4, s[48:51], s20 offen offset:1024
    """)
    k.label("moe_kernel_end")
    k("s_endpgm")
    finish(k, (NGEMV + 256,1,1), (512,1,1), 8192 + 16384, 128, 102 if 'mstamp' in FLAGS else 72)

def gen_fin():
    k = K("fin_kernel")
    k(f"""
    s_cmp_ge_u32 s2, 32
    s_cbranch_scc1 fin_kernel_end
    s_load_dwordx2 s[6:7], s[0:1], {KA_WS}
    s_load_dwordx2 s[44:45], s[0:1], {KA_OUT}
    v_and_b32 v1, 31, v0               ; col
    v_lshrrev_b32 v2, 5, v0            ; pg
    v_lshlrev_b32 v3, 2, v1
    v_lshl_add_u32 v3, v2, 12, v3
    s_lshl_b32 s20, s2, 7
    s_add_u32 s20, s20, {WS_Y}
    s_lshl_b32 s22, s2, 6
    v_lshlrev_b32 v4, 1, v1
    v_add_u32 v4, s22, v4
    v_mov_b32 v5, 0
    s_waitcnt lgkmcnt(0)
    """)
    srd(k, 12, 6, WS_SIZE)
    srd(k, 48, 44, 2048*1024*2)
    k(f"""
    s_mov_b32 s23, {WS_SEL}
    s_mov_b32 s24, {WS_SEL + 4096}
    s_mov_b32 s25, {WS_MOD + 5*2048}
    buffer_load_dwordx2 v[6:7], v5, s[12:15], s23 offen
    buffer_load_ushort v8, v4, s[12:15], s23 offen offset:2048     ; x1
    buffer_load_ushort v9, v4, s[12:15], s24 offen                 ; h2
    buffer_load_ushort v10, v4, s[12:15], s25 offen                ; gb
    """)
    for i in range(28):
        k(f"buffer_load_dword v{16+i}, v3, s[12:15], s20 offen")
        k(f"s_add_u32 s20, s20, 32768")
    k("s_waitcnt vmcnt(0)")
    for i in range(1, 28):
        k(f"v_add_f32 v16, v16, v{16+i}")
    k(f"""
    v_lshlrev_b32 v11, 2, v0
    ds_write_b32 v11, v16
    s_waitcnt lgkmcnt(0)
    s_barrier
    v_lshlrev_b32 v11, 2, v1
    """)
    for w in range(8):
        k(f"ds_read_b32 v{16+w}, v11 offset:{128*w}")
    k("s_waitcnt lgkmcnt(0)")
    for w in range(1, 8):
        k(f"v_add_f32 v16, v16, v{16+w}")
    round_bf16(k, 16)
    k("v_mul_f32 v16, v16, v7")
    round_bf16(k, 16)
    k("v_lshlrev_b32 v9, 16, v9")
    k("v_add_f32 v16, v16, v9")
    round_bf16(k, 16)
    k("v_lshlrev_b32 v10, 16, v10")
    k("v_mul_f32 v16, v16, v10")
    round_bf16(k, 16)
    k(f"""
    v_lshlrev_b32 v8, 16, v8
    v_add_f32 v16, v16, v8
    v_cvt_pk_bf16_f32 v16, v16, v16
    v_and_b32 v6, 0x7ff, v6
    v_lshl_add_u32 v4, v6, 11, v4
    v_cmp_gt_u32 vcc, 32, v0
    s_and_saveexec_b64 s[28:29], vcc
    buffer_store_short v16, v4, s[48:51], 0 offen
    """)
    k.label("fin_kernel_end")
    k("s_endpgm")
    finish(k, (32,1,1), (256,1,1), 1024, 48, 56)

def build():
    gen_mod()
    gen_qkv() if 'q_v1' in FLAGS else gen_qkv2()
    gen_attn()
    gen_wo()
    gen_moe()
    gen_fin()
    hdr = open("cdna_kernels/" + NAME + ".s.ref").read().split("; Override")[0]
    out = hdr
    for (name, grid, block, lds, vgpr, sgpr, agpr, text) in kernels:
        out += f"; @launch kernel={name} grid=({grid[0]},{grid[1]},{grid[2]}) block=({block[0]},{block[1]},{block[2]}) lds={lds}\n"
    out += '.amdgcn_target "amdgcn-amd-amdhsa--gfx950"\n.text\n'
    for (name, grid, block, lds, vgpr, sgpr, agpr, text) in kernels:
        out += f".globl {name}\n.p2align 8\n.type {name},@function\n{name}:\n{text}"
    out += '.section .rodata,"a"\n'
    for (name, grid, block, lds, vgpr, sgpr, agpr, text) in kernels:
        acc = (vgpr + 3)//4*4
        out += f""".p2align 6
.amdhsa_kernel {name}
  .amdhsa_next_free_vgpr {acc + agpr if agpr else vgpr}
  .amdhsa_next_free_sgpr {sgpr}
  .amdhsa_accum_offset {acc}
  .amdhsa_group_segment_fixed_size 0
  .amdhsa_kernarg_size 104
  .amdhsa_user_sgpr_count 2
  .amdhsa_user_sgpr_kernarg_segment_ptr 1
  .amdhsa_system_sgpr_workgroup_id_x 1
  .amdhsa_float_denorm_mode_32 3
.end_amdhsa_kernel
"""
    import re
    for ln in out.split("\n"):
        l = ln.split(";")[0]
        m = re.search(r"offset:(\d+)", l)
        if m and (l.strip().startswith("buffer_") or l.strip().startswith("global_")):
            assert int(m.group(1)) <= 4095, ln
        if m and l.strip().startswith("ds_"):
            assert int(m.group(1)) <= 65535, ln
    return out

if __name__ == "__main__":
    s = build()
    p = sys.argv[1] if len(sys.argv) > 1 else "cdna_kernels/" + NAME + ".s"
    open(p, "w").write(s)
    print("wrote", p, len(s))
```

```python
import sys, math, os, struct
FLAGS = set(os.environ.get('GENFLAGS', '').split(','))

NAME = "adaLN_cond__mha_block__moe_arch_mod__prompt"

KA_X, KA_WQKV, KA_WO, KA_BX, KA_WR, KA_WG, KA_WU, KA_WD, KA_C, KA_WMOD, KA_OUT, KA_DBG, KA_WS = [8*i for i in range(13)]

WS_MOD = 0x000000
WS_MOD1 = 0x004000
WS_MODF = 0x020000
WS_MOD1F = 0x028000
WS_STAT = 0x010000
WS_SEL = 0x018000
WS_Y   = 0x1900000
WS_H   = 0x100000
WS_Q   = 0x500000
WS_K   = 0x900000
WS_V   = 0xD00000
WS_O   = 0x1100000
WS_X1  = 0x1500000
WS_G   = 0x3000000
WS_SIZE = 0x10000000

class K:
    def __init__(self, name):
        self.name = name
        self.lines = []
        self.lab = 0
    def __call__(self, s):
        for l in s.strip("\n").split("\n"):
            self.lines.append("    " + l.strip())
    def label(self, l):
        self.lines.append(f"{l}:")
    def newlabel(self, base="L"):
        self.lab += 1
        return f"{self.name}_{base}{self.lab}"
    def text(self):
        return "\n".join(self.lines) + "\n"

def srd(k, d, b, nbytes):
    k(f"s_mov_b32 s{d}, s{b}")
    k(f"s_and_b32 s{d+1}, s{b+1}, 0xffff")
    k(f"s_mov_b32 s{d+2}, {nbytes}")
    k(f"s_mov_b32 s{d+3}, 0x00020000")

def wave_sum(k, v, t):
    k(f"""
    s_nop 1
    v_add_f32_dpp v{t}, v{v}, v{v} quad_perm:[1,0,3,2] row_mask:0xf bank_mask:0xf
    s_nop 1
    v_add_f32_dpp v{v}, v{t}, v{t} quad_perm:[2,3,0,1] row_mask:0xf bank_mask:0xf
    s_nop 1
    v_add_f32_dpp v{t}, v{v}, v{v} row_half_mirror row_mask:0xf bank_mask:0xf
    s_nop 1
    v_add_f32_dpp v{v}, v{t}, v{t} row_mirror row_mask:0xf bank_mask:0xf
    s_nop 0
    v_mov_b32 v{t}, v{v}
    s_nop 1
    v_permlane16_swap_b32 v{v}, v{t}
    s_nop 0
    v_add_f32 v{v}, v{v}, v{t}
    v_mov_b32 v{t}, v{v}
    s_nop 1
    v_permlane32_swap_b32 v{v}, v{t}
    s_nop 0
    v_add_f32 v{v}, v{v}, v{t}
    """)

def round_bf16_pair(k, a, b, t):
    k(f"v_cvt_pk_bf16_f32 v{t}, v{a}, v{b}")
    k(f"v_lshlrev_b32 v{a}, 16, v{t}")
    k(f"v_and_b32 v{b}, 0xffff0000, v{t}")

def unpack_bf16(k, src, dst):
    k(f"v_lshlrev_b32 v{dst}, 16, v{src}")
    k(f"v_and_b32 v{dst+1}, 0xffff0000, v{src}")

WS_STAMP = 0x2000000
def stamp(k, idx, sreg=80, flag='stamp'):
    if flag not in FLAGS: return
    k(f"s_memtime s[{sreg+4*idx}:{sreg+4*idx+1}]")
    k(f"s_memrealtime s[{sreg+4*idx+2}:{sreg+4*idx+3}]")
    k("s_waitcnt lgkmcnt(0)")
def stamp_store(k, n, srd_ws, wgreg, wavereg, sreg=80, vt=250, flag='stamp'):
    if flag not in FLAGS: return
    k(f"s_lshl_b32 s{sreg-1}, s{wgreg}, 3")
    k(f"s_add_u32 s{sreg-1}, s{sreg-1}, s{wavereg}")
    k(f"s_lshl_b32 s{sreg-1}, s{sreg-1}, 7")
    k(f"s_add_u32 s{sreg-1}, s{sreg-1}, {WS_STAMP}")
    k(f"v_mov_b32 v{vt}, 0")
    for i in range(n):
        for j in range(4):
            k(f"v_mov_b32 v{vt+1}, s{sreg+4*i+j}")
            k(f"buffer_store_dword v{vt+1}, v{vt}, s[{srd_ws}:{srd_ws+3}], s{sreg-1} offen offset:{16*i+4*j}")
            k("s_nop 1")

kernels = []

def finish(k, grid, block, lds, vgpr, sgpr=102, agpr=0):
    if 'scramble' in FLAGS:
        assert 's_cbranch_scc1' in k.lines[1]
        k.lines[2:2] = ["    s_lshr_b32 s3, s2, 3", "    s_and_b32 s3, s3, 7", "    s_xor_b32 s2, s2, s3"]
    kernels.append((k.name, grid, block, lds, vgpr, sgpr, agpr, k.text()))

def gen_mod():
    k = K("pre_kernel")
    k(f"""
    s_cmp_ge_u32 s2, 256
    s_cbranch_scc1 pre_kernel_end
    s_load_dwordx2 s[4:5], s[0:1], {KA_C}
    s_load_dwordx2 s[6:7], s[0:1], {KA_WMOD}
    s_load_dwordx2 s[8:9], s[0:1], {KA_WS}
    s_load_dwordx4 s[36:39], s[0:1], {KA_X}      ; x, wqkv
    s_and_b32 s20, s2, 0xfffffff0
    s_and_b32 s21, s2, 7
    s_lshl_b32 s21, s21, 1
    s_or_b32 s20, s20, s21
    s_lshr_b32 s21, s2, 3
    s_and_b32 s21, s21, 1
    s_or_b32 s20, s20, s21          ; s20 = slab
    s_lshl_b32 s21, s20, 6
    v_lshrrev_b32 v1, 6, v0         ; wave
    v_and_b32 v2, 63, v0            ; lane
    v_lshrrev_b32 v3, 2, v2         ; l>>2
    v_readfirstlane_b32 s34, v1
    v_lshl_add_u32 v3, v1, 6, v3    ; row0 = 64*w + (l>>2)
    v_and_b32 v4, 3, v2
    v_lshlrev_b32 v4, 4, v4         ; (l&3)*16
    s_mov_b32 s22, 12288
    v_mul_lo_u32 v5, v3, s22
    v_add3_u32 v5, v5, v4, s21
    v_lshlrev_b32 v6, 1, v3         ; c offset
    v_lshlrev_b32 v7, 4, v2         ; lane*16
    s_lshl_b32 s35, s2, 3
    s_add_u32 s35, s35, s34
    s_lshl_b32 s35, s35, 11
    s_waitcnt lgkmcnt(0)
    """)
    srd(k, 12, 4, 2048)
    srd(k, 16, 6, 1024*6144*2)
    srd(k, 24, 8, WS_SIZE)
    srd(k, 40, 36, 2048*1024*2)
    srd(k, 44, 38, 16 if 'nopf' in FLAGS else 1024*3072*2)
    MNT = 'nt' if 'modnt' in FLAGS else ''
    XR = 48
    k(f"""
    s_mov_b32 s28, {16*12288}
    s_mov_b32 s29, {32*12288}
    s_mov_b32 s30, {48*12288}
    s_cmp_ge_u32 s2, 192
    s_cbranch_scc1 pre_nomod1
    buffer_load_dwordx4 v[16:19], v5, s[16:19], 0 offen {MNT}
    buffer_load_dwordx4 v[20:23], v5, s[16:19], s28 offen {MNT}
    buffer_load_dwordx4 v[24:27], v5, s[16:19], s29 offen {MNT}
    buffer_load_dwordx4 v[28:31], v5, s[16:19], s30 offen {MNT}
    buffer_load_ushort v8, v6, s[12:15], 0 offen
    buffer_load_ushort v9, v6, s[12:15], 0 offen offset:32
    buffer_load_ushort v10, v6, s[12:15], 0 offen offset:64
    buffer_load_ushort v11, v6, s[12:15], 0 offen offset:96
    s_cmp_ge_u32 s34, 8
    s_cbranch_scc1 pre_pf1
    buffer_load_dwordx4 v[{XR}:{XR+3}], v7, s[40:43], s35 offen
    buffer_load_dwordx4 v[{XR+4}:{XR+7}], v7, s[40:43], s35 offen offset:1024
    s_waitcnt vmcnt(2)
    s_branch pre_mod
pre_pf1:
    s_lshl_b32 s48, s2, 3
    s_add_u32 s48, s48, s34
    s_sub_u32 s48, s48, 8
    s_lshl_b32 s48, s48, 10
    buffer_load_dwordx4 v[{XR}:{XR+3}], v7, s[44:47], s48 offen
    s_waitcnt vmcnt(1)
pre_mod:
    s_mov_b32 s31, 0xbfb8aa3b      ; -log2(e)
    """)
    for i in range(4):
        r = 8 + i
        k(f"""
        v_lshlrev_b32 v{r}, 16, v{r}
        v_mul_f32 v12, s31, v{r}
        v_exp_f32 v12, v12
        s_nop 0
        v_add_f32 v12, 1.0, v12
        v_rcp_f32 v12, v12
        s_nop 0
        v_mul_f32 v{r}, v{r}, v12
        """)
    round_bf16_pair(k, 8, 9, 12)
    round_bf16_pair(k, 10, 11, 12)
    for i in range(4):
        for j in range(4):
            src = 16 + 4*i + j
            k(f"v_lshlrev_b32 v12, 16, v{src}")
            k(f"v_and_b32 v13, 0xffff0000, v{src}")
            if i == 0:
                k(f"v_mul_f32 v{32+2*j}, v{8+i}, v12")
                k(f"v_mul_f32 v{33+2*j}, v{8+i}, v13")
            else:
                k(f"v_fmac_f32 v{32+2*j}, v{8+i}, v12")
                k(f"v_fmac_f32 v{33+2*j}, v{8+i}, v13")
    k("s_nop 1")
    for j in range(8):
        k(f"v_add_f32_dpp v{40+j}, v{32+j}, v{32+j} row_ror:4 row_mask:0xf bank_mask:0xf")
    for j in range(8):
        k(f"v_add_f32_dpp v{32+j}, v{40+j}, v{40+j} row_ror:8 row_mask:0xf bank_mask:0xf")
    for j in range(8):
        k(f"v_mov_b32 v{40+j}, v{32+j}")
    k("s_nop 1")
    for j in range(8):
        k(f"v_permlane16_swap_b32 v{32+j}, v{40+j}")
    for j in range(8):
        k(f"v_add_f32 v{32+j}, v{32+j}, v{40+j}")
    for j in range(8):
        k(f"v_mov_b32 v{40+j}, v{32+j}")
    k("s_nop 1")
    for j in range(8):
        k(f"v_permlane32_swap_b32 v{32+j}, v{40+j}")
    for j in range(8):
        k(f"v_add_f32 v{32+j}, v{32+j}, v{40+j}")
    k(f"""
    v_lshlrev_b32 v12, 7, v1
    v_lshl_add_u32 v12, v2, 5, v12
    v_cmp_gt_u32 vcc, 4, v2
    s_and_saveexec_b64 s[32:33], vcc
    ds_write_b128 v12, v[32:35]
    ds_write_b128 v12, v[36:39] offset:16
    s_mov_b64 exec, s[32:33]
    s_waitcnt lgkmcnt(0)
    s_barrier
    s_cmp_lg_u32 s34, 0
    s_cbranch_scc1 pre_ln
    v_and_b32 v12, 31, v2
    v_lshlrev_b32 v12, 2, v12
    v_lshrrev_b32 v13, 5, v2
    v_lshl_add_u32 v12, v13, 10, v12
    """)
    for j in range(8):
        k(f"ds_read_b32 v{32+j}, v12 offset:{128*j}")
    k("s_waitcnt lgkmcnt(0)")
    for j in range(1, 8):
        k(f"v_add_f32 v32, v32, v{32+j}")
    k(f"""
    v_mov_b32 v33, v32
    s_nop 1
    v_permlane32_swap_b32 v32, v33
    s_nop 0
    v_add_f32 v32, v32, v33
    v_cvt_pk_bf16_f32 v32, v32, v32
    v_lshlrev_b32 v34, 16, v32
    v_add_f32 v33, 1.0, v34
    v_cvt_pk_bf16_f32 v33, v33, v33
    v_lshlrev_b32 v35, 16, v33
    v_lshlrev_b32 v12, 1, v2
    v_add_u32 v12, s21, v12
    v_lshlrev_b32 v13, 1, v12
    s_mov_b32 s22, {WS_MOD1}
    s_mov_b32 s23, {WS_MODF}
    s_mov_b32 s28, {WS_MOD1F}
    v_cmp_gt_u32 vcc, 32, v2
    s_and_saveexec_b64 s[32:33], vcc
    buffer_store_dword v34, v13, s[24:27], s23 offen
    buffer_store_dword v35, v13, s[24:27], s28 offen
    buffer_store_short v32, v12, s[24:27], 0 offen
    buffer_store_short v33, v12, s[24:27], s22 offen
    s_mov_b64 exec, s[32:33]
    s_branch pre_ln
pre_nomod1:
    s_cmp_ge_u32 s34, 8
    s_cbranch_scc1 pre_pf2
    buffer_load_dwordx4 v[{XR}:{XR+3}], v7, s[40:43], s35 offen
    buffer_load_dwordx4 v[{XR+4}:{XR+7}], v7, s[40:43], s35 offen offset:1024
pre_pf2:
    s_sub_u32 s48, s2, 192
    s_lshl_b32 s48, s48, 4
    s_add_u32 s48, s48, s34
    s_mul_i32 s48, s48, 5120
    s_add_u32 s48, s48, {192*8*1024}
    s_add_u32 s49, s48, 4096
    buffer_load_dwordx4 v[16:19], v7, s[44:47], s48 offen
    buffer_load_dwordx4 v[20:23], v7, s[44:47], s48 offen offset:1024
    buffer_load_dwordx4 v[24:27], v7, s[44:47], s48 offen offset:2048
    buffer_load_dwordx4 v[28:31], v7, s[44:47], s48 offen offset:3072
    buffer_load_dwordx4 v[32:35], v7, s[44:47], s49 offen
    s_waitcnt vmcnt(5)
pre_ln:
    s_cmp_ge_u32 s34, 8
    s_cbranch_scc1 pre_kernel_end
    s_cmp_ge_u32 s2, 192
    s_cbranch_scc1 pre_ln2
    s_waitcnt vmcnt(0)
pre_ln2:
    """)
    for j in range(8):
        unpack_bf16(k, XR+j, 64+2*j)
    ln_core(k, 64, 80)
    for j in range(8):
        k(f"v_cvt_pkrtz_f16_f32 v{XR+j}, v{64+2*j}, v{65+2*j}")
    k(f"""
    s_add_u32 s21, s35, {WS_H}
    buffer_store_dwordx4 v[{XR}:{XR+3}], v7, s[24:27], s21 offen
    buffer_store_dwordx4 v[{XR+4}:{XR+7}], v7, s[24:27], s21 offen offset:1024
    s_lshr_b32 s22, s35, 9             ; row*4
    s_add_u32 s22, s22, {WS_STAT}
    v_lshlrev_b32 v5, 13, v2
    v_mov_b32 v6, 0
    v_cmp_gt_u32 vcc, 3, v2
    s_and_saveexec_b64 s[28:29], vcc
    buffer_store_dword v6, v5, s[24:27], s22 offen
    """)
    k.label("pre_kernel_end")
    k("s_endpgm")
    finish(k, (256,1,1), (1024,1,1), 2048, 88, 56)

def ln_core(k, X, T):
    S, U, M, R = T, T+1, T+2, T+3
    k(f"v_add_f32 v{S}, v{X}, v{X+1}")
    for i in range(2, 16):
        k(f"v_add_f32 v{S}, v{S}, v{X+i}")
    wave_sum(k, S, U)
    k(f"v_mul_f32 v{M}, 0x3a800000, v{S}")
    k(f"v_sub_f32 v{U}, v{X}, v{M}")
    k(f"v_mul_f32 v{S}, v{U}, v{U}")
    for i in range(1, 16):
        k(f"v_sub_f32 v{U}, v{X+i}, v{M}")
        k(f"v_fmac_f32 v{S}, v{U}, v{U}")
    wave_sum(k, S, U)
    k(f"v_mul_f32 v{S}, 0x3a800000, v{S}")
    round_bf16_pair(k, M, S, U)
    k(f"v_add_f32 v{S}, 0x3727c5ac, v{S}")
    k(f"v_cvt_pk_bf16_f32 v{S}, v{S}, v{S}")
    k(f"v_lshlrev_b32 v{S}, 16, v{S}")
    k(f"v_sqrt_f32 v{S}, v{S}")
    k("s_nop 0")
    k(f"v_cvt_pk_bf16_f32 v{S}, v{S}, v{S}")
    k(f"v_lshlrev_b32 v{S}, 16, v{S}")
    k(f"v_rcp_f32 v{R}, v{S}")
    for i in range(16):
        k(f"v_sub_f32 v{X+i}, v{X+i}, v{M}")
    for i in range(0, 16, 2):
        round_bf16_pair(k, X+i, X+i+1, U)
    for i in range(16):
        k(f"v_mul_f32 v{X+i}, v{X+i}, v{R}")
    for i in range(0, 16, 2):
        round_bf16_pair(k, X+i, X+i+1, U)

def modulate(k, X, C, Sh, T):
    for j in range(8):
        unpack_bf16(k, C+j, T)
        k(f"v_add_f32 v{T}, 1.0, v{T}")
        k(f"v_add_f32 v{T+1}, 1.0, v{T+1}")
        round_bf16_pair(k, T, T+1, T+2)
        k(f"v_mul_f32 v{X+2*j}, v{X+2*j}, v{T}")
        k(f"v_mul_f32 v{X+2*j+1}, v{X+2*j+1}, v{T+1}")
        round_bf16_pair(k, X+2*j, X+2*j+1, T+2)
        unpack_bf16(k, Sh+j, T)
        k(f"v_add_f32 v{X+2*j}, v{X+2*j}, v{T}")
        k(f"v_add_f32 v{X+2*j+1}, v{X+2*j+1}, v{T+1}")

WS_WQ = 0x4000000
WS_XCH = 0x040000
WS_PB  = 0x080000
WS_PM  = 0x4800000
def gen_pre5():
    k = K("pre_kernel")
    ST = 'prestamp'
    L_TAB = 4096; L_FLAG = 4096 + 256
    GATE = '' if 'p_nogate' in FLAGS else 's_waitcnt vmcnt(0)'
    k(f"""
    s_cmp_ge_u32 s2, 256
    s_cbranch_scc1 pre_kernel_end
    s_load_dwordx2 s[4:5], s[0:1], {KA_C}
    s_load_dwordx2 s[6:7], s[0:1], {KA_WMOD}
    s_load_dwordx2 s[8:9], s[0:1], {KA_DBG}
    s_load_dwordx2 s[10:11], s[0:1], {KA_WS}
    s_load_dwordx4 s[36:39], s[0:1], {KA_X}      ; x, wqkv
    s_memrealtime s[56:57]
    v_lshrrev_b32 v1, 6, v0         ; wave
    v_and_b32 v2, 63, v0            ; lane
    v_lshlrev_b32 v7, 4, v2         ; lane*16
    v_readfirstlane_b32 s34, v1
    s_and_b32 s20, s2, 7            ; j
    s_lshr_b32 s21, s2, 3           ; g
    s_lshl_b32 s22, s20, 7          ; 128 j
    v_lshrrev_b32 v3, 2, v2
    v_and_b32 v3, 7, v3
    v_lshl_add_u32 v3, v1, 3, v3
    v_add_u32 v3, s22, v3           ; row = 128j + 8w + ((l>>2)&7)
    s_mov_b32 s22, 12288
    v_mul_lo_u32 v5, v3, s22
    v_lshrrev_b32 v4, 5, v2
    v_lshl_add_u32 v5, v4, 11, v5   ; + slab*2048
    v_and_b32 v4, 3, v2
    v_lshl_add_u32 v5, v4, 4, v5    ; + (l&3)*16
    v_lshlrev_b32 v6, 1, v3         ; c offset
    s_lshl_b32 s23, s21, 6          ; g*64
    s_mov_b32 s70, 4
    s_waitcnt lgkmcnt(0)
    """)
    stamp(k, 0, flag=ST)
    srd(k, 16, 6, 1024*6144*2)
    srd(k, 12, 4, 2048)
    k(f"""
    buffer_load_dwordx4 v[24:27], v5, s[16:19], s23 offen
    buffer_load_ushort v28, v6, s[12:15], 0 offen
    """)
    srd(k, 24, 10, WS_SIZE)
    srd(k, 28, 8, 256)
    srd(k, 40, 36, 2048*1024*2)
    srd(k, 44, 38, 1024*3072*2)
    k(f"""
    s_cmp_ge_u32 s34, 8
    s_cbranch_scc1 pre_ldx
    s_cmp_eq_u32 s34, 0
    s_cbranch_scc1 pre_ld0
    s_cmp_eq_u32 s34, 7
    s_cbranch_scc1 pre_ld7
    s_sub_u32 s35, s34, 1
    s_cmp_ge_u32 s35, 3
    s_cselect_b32 s33, 1, 0         ; bnl
    s_mul_i32 s32, s33, 3
    s_sub_u32 s32, s35, s32         ; seg
    s_lshl_b32 s35, s20, 1
    s_add_u32 s33, s33, s35         ; bn
    s_mul_i32 s48, s21, {32*6144}
    s_lshl_b32 s49, s32, 11
    s_add_u32 s48, s48, s49
    s_lshl_b32 s49, s33, 7
    s_add_u32 s48, s48, s49         ; W soffset
    v_lshrrev_b32 v3, 3, v2         ; r
    s_mov_b32 s22, 6144
    v_mul_lo_u32 v5, v3, s22
    v_and_b32 v4, 7, v2
    v_lshl_add_u32 v5, v4, 4, v5
    s_add_u32 s49, s48, {8*6144}
    s_add_u32 s50, s48, {16*6144}
    s_add_u32 s51, s48, {24*6144}
    {GATE}
    buffer_load_dwordx4 v[8:11], v5, s[44:47], s48 offen
    buffer_load_dwordx4 v[12:15], v5, s[44:47], s49 offen
    buffer_load_dwordx4 v[16:19], v5, s[44:47], s50 offen
    buffer_load_dwordx4 v[20:23], v5, s[44:47], s51 offen
    s_waitcnt vmcnt(4)
    s_branch pre_s
pre_ld7:
    v_mov_b32 v3, {L_FLAG}
    v_mov_b32 v4, 0
    ds_write_b32 v3, v4
    s_waitcnt vmcnt(0)
    s_branch pre_s
pre_ld0:
    s_or_b32 s56, s56, 1
    v_mov_b32 v8, s56
    v_mov_b32 v9, s57
    v_mov_b32 v10, 0
    v_mov_b32 v11, 0
    s_lshl_b32 s22, s21, 3
    v_mov_b32 v3, s22
    s_mov_b64 exec, 1
    buffer_atomic_cmpswap_x2 v[8:11], v3, s[28:31], 0 offen sc0 sc1
    s_mov_b64 exec, -1
    s_waitcnt vmcnt(1)
    s_branch pre_s
pre_ldx:
    s_lshl_b32 s35, s2, 3
    s_add_u32 s35, s35, s34
    s_sub_u32 s35, s35, 8           ; token
    s_lshl_b32 s33, s35, 11
    {GATE}
    buffer_load_dwordx4 v[8:11], v7, s[40:43], s33 offen
    buffer_load_dwordx4 v[12:15], v7, s[40:43], s33 offen offset:1024
    s_waitcnt vmcnt(2)
pre_s:
    s_mov_b32 s22, 0xbfb8aa3b      ; -log2(e)
    v_lshlrev_b32 v28, 16, v28
    v_mul_f32 v29, s22, v28
    v_exp_f32 v29, v29
    s_nop 0
    v_add_f32 v29, 1.0, v29
    v_rcp_f32 v29, v29
    s_nop 0
    v_mul_f32 v28, v28, v29
    v_cvt_pk_bf16_f32 v28, v28, v28
    v_lshlrev_b32 v28, 16, v28
    """)
    A = 32; T = 40
    for j in range(4):
        k(f"v_lshlrev_b32 v{T+2*j}, 16, v{24+j}")
        k(f"v_and_b32 v{T+2*j+1}, 0xffff0000, v{24+j}")
    for j in range(8):
        k(f"v_mul_f32 v{A+j}, v28, v{T+j}")
    k("s_nop 1")
    for j in range(8):
        k(f"v_add_f32_dpp v{T+j}, v{A+j}, v{A+j} row_ror:4 row_mask:0xf bank_mask:0xf")
    for j in range(8):
        k(f"v_add_f32_dpp v{A+j}, v{T+j}, v{T+j} row_ror:8 row_mask:0xf bank_mask:0xf")
    for j in range(8):
        k(f"v_mov_b32 v{T+j}, v{A+j}")
    k("s_nop 1")
    for j in range(8):
        k(f"v_permlane16_swap_b32 v{A+j}, v{T+j}")
    for j in range(8):
        k(f"v_add_f32 v{A+j}, v{A+j}, v{T+j}")
    k(f"""
    v_lshrrev_b32 v4, 5, v2
    v_lshlrev_b32 v3, 8, v1
    v_lshl_add_u32 v3, v4, 7, v3
    v_and_b32 v4, 3, v2
    v_lshl_add_u32 v3, v4, 5, v3
    s_mov_b32 s22, 15
    s_mov_b32 s23, 15
    s_mov_b64 exec, s[22:23]
    ds_write_b128 v3, v[{A}:{A+3}]
    ds_write_b128 v3, v[{A+4}:{A+7}] offset:16
    s_mov_b64 exec, -1
    s_waitcnt lgkmcnt(0)
    s_barrier
    s_cmp_ge_u32 s34, 8
    s_cbranch_scc1 pre_ln
    s_cmp_eq_u32 s34, 7
    s_cbranch_scc1 pre_kernel_end
    s_cmp_lg_u32 s34, 0
    s_cbranch_scc1 pre_w
    v_lshlrev_b32 v3, 2, v2
    """)
    stamp(k, 1, flag=ST)
    for j in range(16):
        k(f"ds_read_b32 v{16+j}, v3 offset:{256*j}")
    k(f"""
    s_lshl_b32 s22, s21, 12
    s_add_u32 s22, s22, {WS_XCH}
    s_lshl_b32 s23, s20, 9
    s_add_u32 s23, s23, s22
    v_lshlrev_b32 v4, 3, v2
    v_lshrrev_b32 v5, 4, v2
    v_and_b32 v5, 1, v5
    v_lshlrev_b32 v5, 7, v5
    v_and_b32 v6, 3, v2
    v_lshl_add_u32 v5, v6, 5, v5
    v_lshrrev_b32 v6, 2, v2
    v_and_b32 v6, 3, v6
    v_lshl_add_u32 v5, v6, 2, v5
    s_waitcnt vmcnt(0)
    v_readfirstlane_b32 s58, v8
    v_readfirstlane_b32 s59, v9
    s_or_b32 s60, s58, s59
    s_cmp_eq_u32 s60, 0
    s_cselect_b32 s58, s56, s58
    s_cselect_b32 s59, s57, s59
    v_mov_b32 v34, s58
    v_mov_b32 v35, s59
    s_waitcnt lgkmcnt(0)
    """)
    st = 1
    while st < 16:
        for j in range(0, 16, 2*st):
            k(f"v_add_f32 v{16+j}, v{16+j}, v{16+j+st}")
        st *= 2
    k(f"""
    v_mov_b32 v32, v16
    s_nop 1
    v_mov_b32_dpp v33, v16 quad_perm:[1,0,3,2] row_mask:0xf bank_mask:0xf
    s_mov_b32 s60, 0x55555555
    s_mov_b32 s61, 0x55555555
    s_mov_b64 exec, s[60:61]
    buffer_store_dwordx4 v[32:35], v4, s[24:27], s23 offen sc1
    s_mov_b64 exec, -1
    """)
    if 'p_safe' in FLAGS: k("s_mov_b32 s50, 0")
    k(f"""
pre_poll:
    buffer_load_dwordx4 v[16:19], v7, s[24:27], s22 offen sc1
    buffer_load_dwordx4 v[20:23], v7, s[24:27], s22 offen offset:1024 sc1
    buffer_load_dwordx4 v[24:27], v7, s[24:27], s22 offen offset:2048 sc1
    buffer_load_dwordx4 v[28:31], v7, s[24:27], s22 offen offset:3072 sc1
    s_waitcnt vmcnt(0)
    v_xor_b32 v36, v18, v34
    v_xor_b32 v37, v19, v35
    v_xor_b32 v38, v22, v34
    v_xor_b32 v39, v23, v35
    v_or3_b32 v36, v36, v37, v38
    v_xor_b32 v37, v26, v34
    v_xor_b32 v38, v27, v35
    v_or3_b32 v36, v36, v39, v37
    v_xor_b32 v37, v30, v34
    v_xor_b32 v39, v31, v35
    v_or3_b32 v36, v36, v38, v37
    v_or_b32 v36, v36, v39
    v_cmp_ne_u32 vcc, 0, v36
    """)
    if 'p_safe' in FLAGS:
        k("s_add_u32 s50, s50, 1\ns_cmp_gt_u32 s50, 100000\ns_cbranch_scc1 pre_poll_done")
    k(f"""
    s_cbranch_vccnz pre_poll
pre_poll_done:
    v_add_f32 v16, v16, v20
    v_add_f32 v17, v17, v21
    v_add_f32 v24, v24, v28
    v_add_f32 v25, v25, v29
    v_add_f32 v16, v16, v24
    v_add_f32 v17, v17, v25
    v_mov_b32 v18, v16
    v_mov_b32 v19, v17
    s_nop 1
    v_permlane32_swap_b32 v16, v18
    v_permlane32_swap_b32 v17, v19
    s_nop 0
    v_add_f32 v16, v16, v18
    v_add_f32 v17, v17, v19
    v_cvt_pk_bf16_f32 v20, v16, v17
    v_lshlrev_b32 v16, 16, v20
    v_and_b32 v17, 0xffff0000, v20
    v_add_f32 v18, 1.0, v16
    v_add_f32 v19, 1.0, v17
    v_cvt_pk_bf16_f32 v19, v18, v19
    v_lshlrev_b32 v18, 16, v19
    v_and_b32 v19, 0xffff0000, v19
    v_and_b32 v6, 16, v2
    v_cmp_ne_u32 vcc, 0, v6
    v_mov_b32 v3, {L_FLAG}
    v_mov_b32 v6, 1
    v_cndmask_b32 v16, v16, v18, vcc
    v_cndmask_b32 v17, v17, v19, vcc
    s_mov_b32 s60, -1
    s_mov_b32 s61, 0
    s_mov_b64 exec, s[60:61]
    ds_write_b32 v5, v16 offset:{L_TAB}
    ds_write_b32 v5, v17 offset:{L_TAB+16}
    ds_write_b32 v3, v6
    """)
    if 'p_dbgmod' in FLAGS:
        k(f"""
        v_lshrrev_b32 v4, 4, v2
        v_lshlrev_b32 v4, 11, v4
        v_and_b32 v6, 15, v2
        v_lshl_add_u32 v4, v6, 2, v4
        s_lshl_b32 s22, s21, 6
        buffer_store_dword v20, v4, s[24:27], s22 offen
        """)
    if ST in FLAGS:
        k("s_mov_b64 exec, -1")
        stamp(k, 2, flag=ST)
        stamp(k, 3, flag=ST)
        stamp_store(k, 4, 24, 2, 34, vt=40, flag=ST)
    k(f"""
    s_endpgm
pre_w:
    s_mul_i32 s48, s33, {16*24576}
    s_lshr_b32 s49, s21, 1
    s_mul_i32 s49, s49, 24576
    s_add_u32 s48, s48, s49
    s_lshl_b32 s49, s32, 13
    s_add_u32 s48, s48, s49
    s_and_b32 s49, s21, 1
    s_lshl_b32 s49, s49, 12
    s_add_u32 s48, s48, s49
    s_add_u32 s48, s48, {WS_WQ}
    s_mul_i32 s49, s21, 12288
    s_lshl_b32 s50, s32, 12
    s_add_u32 s49, s49, s50
    s_lshl_b32 s50, s33, 8
    s_add_u32 s49, s49, s50
    s_add_u32 s49, s49, {WS_PB}
    v_lshrrev_b32 v3, 3, v2         ; r
    v_and_b32 v4, 2, v3
    v_lshlrev_b32 v4, 4, v4
    v_xor_b32 v5, v7, v4            ; r*128 + ((c ^ (r&2))*16)
    v_xor_b32 v6, 64, v5            ; odd i
    v_lshlrev_b32 v3, 4, v3
    v_mov_b32 v4, {L_FLAG}
    v_lshlrev_b32 v1, 5, v2
    """)
    U = 24
    for i in range(4):
        k(f"s_waitcnt vmcnt({3-i})")
        for j in range(4):
            unpack_bf16(k, 8+4*i+j, U+8*i+2*j)
    stamp(k, 1, flag=ST)
    if 'p_safe' in FLAGS: k("s_mov_b32 s50, 0")
    k(f"""
pre_wait:
    ds_read_b32 v8, v4
    s_waitcnt lgkmcnt(0)
    v_readfirstlane_b32 s22, v8
    s_cmp_eq_u32 s22, 1
    s_cbranch_scc1 pre_go
    s_sleep 1
    """)
    if 'p_safe' in FLAGS:
        k("s_add_u32 s50, s50, 1\ns_cmp_gt_u32 s50, 1000000\ns_cbranch_scc1 pre_go")
    k(f"""
    s_branch pre_wait
pre_go:
    ds_read_b128 v[12:15], v3 offset:{L_TAB+128}
    ds_read_b128 v[8:11], v3 offset:{L_TAB}          ; sa
    """)
    stamp(k, 2, flag=ST)
    k("s_waitcnt lgkmcnt(1)")
    for i in range(4):
        o = 16 + 4*(i & 1)
        for j in range(4):
            k(f"v_mul_f32 v56, v{12+i}, v{U+8*i+2*j}")
            k(f"v_mul_f32 v57, v{12+i}, v{U+8*i+2*j+1}")
            k(f"v_cvt_pk_bf16_f32 v{o+j}, v56, v57")
        k(f"buffer_store_dwordx4 v[{o}:{o+3}], v{5 + (i & 1)}, s[24:27], s48 offen offset:{i*1024}")
    k("s_waitcnt lgkmcnt(0)")
    A = 56
    for i in range(4):
        for j in range(8):
            k(f"{'v_mul_f32' if i == 0 else 'v_fmac_f32'} v{A+j}, v{8+i}, v{U+8*i+j}")
    T = 24
    k("s_nop 1")
    for j in range(8):
        k(f"v_add_f32_dpp v{T+j}, v{A+j}, v{A+j} row_ror:8 row_mask:0xf bank_mask:0xf")
    for j in range(8):
        k(f"v_mov_b32 v{A+j}, v{T+j}")
    k("s_nop 1")
    for j in range(8):
        k(f"v_permlane16_swap_b32 v{A+j}, v{T+j}")
    for j in range(8):
        k(f"v_add_f32 v{A+j}, v{A+j}, v{T+j}")
    for j in range(8):
        k(f"v_mov_b32 v{T+j}, v{A+j}")
    k("s_nop 1")
    for j in range(8):
        k(f"v_permlane32_swap_b32 v{A+j}, v{T+j}")
    for j in range(8):
        k(f"v_add_f32 v{A+j}, v{A+j}, v{T+j}")
    k(f"""
    s_mov_b64 exec, 0xff
    buffer_store_dwordx4 v[{A}:{A+3}], v1, s[24:27], s49 offen
    buffer_store_dwordx4 v[{A+4}:{A+7}], v1, s[24:27], s49 offen offset:16
    """)
    if ST in FLAGS:
        k("s_mov_b64 exec, -1")
        k("s_waitcnt vmcnt(0)")
        stamp(k, 3, flag=ST)
        stamp_store(k, 4, 24, 2, 34, vt=8, flag=ST)
    k(f"""
    s_endpgm
pre_ln:
    s_and_b32 s20, s35, 0x67        ; keep b6 b5 b2 b1 b0
    s_lshr_b32 s21, s35, 1
    s_and_b32 s22, s21, 8           ; b4 -> bit3
    s_or_b32 s20, s20, s22
    s_lshl_b32 s22, s35, 1
    s_and_b32 s22, s22, 16          ; b3 -> bit4
    s_or_b32 s20, s20, s22          ; rho
    s_lshr_b32 s21, s20, 1
    s_and_b32 s21, s21, 7           ; f = (n>>1)&7
    s_lshr_b32 s22, s35, 7          ; bm
    s_lshl_b32 s22, s22, 18
    s_lshl_b32 s20, s20, 7
    s_add_u32 s22, s22, s20
    s_add_u32 s22, s22, {WS_H}
    s_add_u32 s23, s22, {8*16384}
    v_and_b32 v3, 7, v2
    v_xor_b32 v3, s21, v3
    v_lshlrev_b32 v3, 4, v3
    v_lshrrev_b32 v4, 3, v2
    v_lshl_add_u32 v3, v4, 14, v3
    s_lshl_b32 s20, s35, 2
    s_add_u32 s20, s20, {WS_STAT}
    v_lshlrev_b32 v5, 13, v2
    v_mov_b32 v6, 0
    s_mov_b64 exec, 7
    buffer_store_dword v6, v5, s[24:27], s20 offen
    s_mov_b64 exec, -1
    s_waitcnt vmcnt(1)
    """)
    for j in range(8):
        unpack_bf16(k, 8+j, 16+2*j)
    ln_core(k, 16, 56)
    for j in range(8):
        k(f"v_cvt_pk_bf16_f32 v{8+j}, v{16+2*j}, v{17+2*j}")
    k(f"""
    buffer_store_dwordx4 v[8:11], v3, s[24:27], s22 offen
    buffer_store_dwordx4 v[12:15], v3, s[24:27], s23 offen
    """)
    k.label("pre_kernel_end")
    k("s_endpgm")
    finish(k, (256,1,1), (1024,1,1), 4096 + 512, 64, 102 if ST in FLAGS else 72)

QK_SCALE = 32 ** -0.5 * 1.4426950408889634
def f32bits(x):
    return struct.unpack("<I", struct.pack("<f", x))[0]

def gen_qkv():
    k = K("qkv_kernel")
    NST = 16
    A_SLOT = 16384
    B_BASE = 65536
    B_SLOT = 24576
    k(f"""
    s_cmp_ge_u32 s2, 256
    s_cbranch_scc1 qkv_kernel_end
    s_load_dwordx2 s[4:5], s[0:1], {KA_WQKV}
    s_load_dwordx2 s[6:7], s[0:1], {KA_WS}
    v_lshrrev_b32 v1, 6, v0
    v_and_b32 v2, 63, v0               ; lane
    s_and_b32 s20, s2, 7               ; x
    s_lshr_b32 s21, s2, 3              ; j
    v_readfirstlane_b32 s18, v1
    s_and_b32 s16, s20, 1
    s_lshl_b32 s16, s16, 3
    s_and_b32 s22, s21, 7
    s_add_u32 s16, s16, s22            ; bm
    s_lshr_b32 s17, s20, 1
    s_lshl_b32 s17, s17, 2
    s_lshr_b32 s22, s21, 3
    s_add_u32 s17, s17, s22            ; bn
    s_waitcnt lgkmcnt(0)
    """)
    srd(k, 8, 4, 1024*3072*2)
    srd(k, 12, 6, WS_SIZE)
    k(f"""
    s_cmp_ge_u32 s18, 4
    s_cbranch_scc1 qkv_producer
    """)
    k(f"""
    s_and_b32 s19, s18, 1              ; wm
    s_lshr_b32 s23, s18, 1             ; hd
    v_and_b32 v3, 31, v2               ; l&31
    v_lshrrev_b32 v4, 5, v2            ; hh
    v_lshrrev_b32 v5, 1, v3
    v_and_b32 v5, 7, v5                ; f = (t>>1)&7
    v_xor_b32 v5, v5, v4               ; hh ^ f
    v_lshlrev_b32 v5, 4, v5
    v_lshl_add_u32 v5, v3, 7, v5       ; (l&31)*128 + chunk*16
    s_lshl_b32 s24, s19, 13            ; wm*64*128
    v_add_u32 v8, s24, v5              ; vA[0]
    v_xor_b32 v9, 32, v8
    v_xor_b32 v10, 64, v8
    v_xor_b32 v11, 0x60, v8
    ; vB
    v_lshrrev_b32 v5, 2, v2
    v_and_b32 v5, 3, v5                ; r
    v_lshl_add_u32 v6, v4, 3, v5       ; 8hh + r
    v_lshlrev_b32 v6, 7, v6            ; *128
    v_lshrrev_b32 v5, 1, v5            ; r>>1
    v_xor_b32 v5, s23, v5              ; hd ^ (r>>1)
    v_lshl_add_u32 v6, v5, 6, v6
    v_lshrrev_b32 v5, 4, v2
    v_and_b32 v5, 1, v5                ; ng
    v_lshl_add_u32 v6, v5, 5, v6
    v_and_b32 v5, 3, v2                ; c
    v_lshl_add_u32 v6, v5, 3, v6
    v_add_u32 v12, {B_BASE}, v6
    v_add_u32 v13, {B_BASE + 2*B_SLOT}, v6
    """)
    ACC = 64
    SETS = [24, 44]
    for i in range(96):
        k(f"v_mov_b32 v{ACC+i}, 0")
    def reads(st, stage, ks):
        S = SETS[st]
        r = []
        slot = stage % 3; aslot = stage & 3
        r.append(f"ds_read_b128 v[{S}:{S+3}], v{8+ks} offset:{aslot*A_SLOT}")
        r.append(f"ds_read_b128 v[{S+4}:{S+7}], v{8+ks} offset:{aslot*A_SLOT+4096}")
        for seg in range(3):
            for j in range(2):
                d = S + 8 + 4*seg + 2*j
                r.append(f"ds_read_b64_tr_b16 v[{d}:{d+1}], v{12+(slot>>1)} offset:{(slot&1)*B_SLOT + seg*8192 + ks*2048 + j*512}")
        return r
    def mfmas(st):
        S = SETS[st]
        r = []
        for seg in range(3):
            for tt in range(2):
                a = ACC + 16*(2*seg + tt)
                W = f"v[{S+8+4*seg}:{S+11+4*seg}]"
                H = f"v[{S+4*tt}:{S+4*tt+3}]"
                if seg < 2:
                    r.append(f"v_mfma_f32_32x32x16_bf16 v[{a}:{a+15}], {W}, {H}, v[{a}:{a+15}]")
                else:
                    r.append(f"v_mfma_f32_32x32x16_bf16 v[{a}:{a+15}], {H}, {W}, v[{a}:{a+15}]")
        return r
    k("s_mov_b32 s25, 0")
    if 'noprio' not in FLAGS: k("s_setprio 3")
    stamp(k, 0)
    k("s_barrier")
    k("s_barrier")
    stamp(k, 1)
    rd0 = reads(0, 0, 0)
    for r in [rd0[0], rd0[2], rd0[3], rd0[1], rd0[4], rd0[5], rd0[6], rd0[7]]:
        k(r)
    cur = 0
    for stage in range(NST):
        for ks in range(4):
            m = mfmas(cur)
            if ks < 3:
                rd = reads(cur ^ 1, stage, ks + 1)
            elif stage + 1 < NST:
                rd = reads(cur ^ 1, stage + 1, 0)
            else:
                rd = [';']*8
            if 'q_old' in FLAGS:
                k("s_waitcnt lgkmcnt(0)")
                k(m[0])
                if ks == 3 and stage + 1 < NST:
                    k("s_barrier")
                k(rd[2]); k(rd[3])
                k(m[1])
                k(rd[4]); k(rd[5])
                k(m[2])
                k(rd[0]); k(rd[6])
                k(m[3])
                k(rd[1]); k(rd[7])
                k(m[4])
                k(m[5])
            else:
                r = [rd[0], rd[2], rd[3], rd[1], rd[4], rd[5], rd[6], rd[7]]
                last = (stage + 1 == NST and ks == 3)
                if ks < 3:
                    k("s_waitcnt lgkmcnt(5)"); k(m[0]); k(r[0]); k(r[1])
                    k("s_waitcnt lgkmcnt(6)"); k(m[1]); k(r[2]); k(r[3])
                    k("s_waitcnt lgkmcnt(6)"); k(m[2]); k(r[4]); k(r[5])
                    k(m[3]); k(r[6]); k(r[7])
                    k("s_waitcnt lgkmcnt(8)"); k(m[4]); k(m[5])
                else:
                    k("s_waitcnt lgkmcnt(5)"); k(m[0])
                    k("s_waitcnt lgkmcnt(4)"); k(m[1])
                    k("s_waitcnt lgkmcnt(0)")
                    if not last: k("s_barrier")
                    k(r[0]); k(r[1]); k(r[2])
                    k(m[2]); k(r[3]); k(r[4]); k(r[5])
                    k(m[3]); k(r[6]); k(r[7])
                    k(m[4]); k(m[5])
            cur ^= 1
    stamp(k, 2)
    k(f"""
    s_lshl_b32 s26, s17, 1
    s_add_u32 s26, s26, s23            ; head
    s_lshl_b32 s26, s26, 17
    s_lshl_b32 s27, s16, 2
    s_lshl_b32 s28, s19, 1
    s_add_u32 s27, s27, s28
    s_lshl_b32 s27, s27, 11
    s_add_u32 s26, s26, s27
    s_add_u32 s28, s26, {WS_Q}
    s_add_u32 s29, s26, {WS_K}
    s_add_u32 s30, s26, {WS_V}
    s_mov_b32 s31, {f32bits(QK_SCALE)}
    v_lshlrev_b32 v3, 4, v2            ; lane*16
    s_nop 7
    """)
    for seg in range(3):
        for tt in range(2):
            a = ACC + 16*(2*seg + tt)
            if seg == 0:
                for i in range(16):
                    k(f"v_mul_f32 v{a+i}, s31, v{a+i}")
            for m in range(2):
                d = 24 + 4*((2*seg + tt)*2 + m) % 40
                d = 24 + (4*(((2*seg + tt)*2 + m) % 10))
                for i in range(4):
                    k(f"v_cvt_pk_bf16_f32 v{d+i}, v{a+8*m+2*i}, v{a+8*m+2*i+1}")
                k(f"buffer_store_dwordx4 v[{d}:{d+3}], v3, s[12:15], s{28+seg} offen offset:{tt*2048+m*1024}")
    if 'stamp' in FLAGS:
        k("s_waitcnt vmcnt(0)")
        stamp(k, 3)
        stamp_store(k, 4, 12, 2, 18, vt=160)
    k("s_endpgm")
    k.label("qkv_producer")
    k(f"""
    s_and_b32 s19, s18, 3              ; w
    v_lshrrev_b32 v3, 3, v2            ; l>>3
    s_lshl_b32 s23, s19, 3
    v_add_u32 v3, s23, v3              ; 8w + (l>>3)
    v_lshrrev_b32 v4, 4, v2            ; l>>4
    s_and_b32 s24, s19, 1
    s_lshl_b32 s24, s24, 2
    v_add_u32 v5, s24, v4              ; 4(w&1) + (l>>4)
    v_and_b32 v6, 7, v2
    v_xor_b32 v5, v5, v6
    v_lshlrev_b32 v5, 4, v5
    v_lshl_add_u32 v8, v3, 11, v5      ; vA
    s_mov_b32 s24, 6144
    v_mul_lo_u32 v9, v3, s24
    v_lshrrev_b32 v5, 2, v2
    v_xor_b32 v5, v5, v4
    v_and_b32 v5, 1, v5                ; hd
    v_lshl_add_u32 v9, v5, 6, v9
    v_and_b32 v5, 3, v2
    v_lshl_add_u32 v9, v5, 4, v9       ; vB
    s_lshl_b32 s25, s16, 18
    s_add_u32 s25, s25, {WS_H}
    s_lshl_b32 s26, s17, 7
    s_lshl_b32 s27, s19, 10            ; w*1024
    """)
    TBL = B_BASE + 3*B_SLOT
    k(f"""
    s_cmp_ge_u32 s18, 8
    s_cbranch_scc1 qkv_xform
    v_lshlrev_b32 v12, 4, v2
    s_add_u32 s31, s27, {WS_MOD1F + 4096}
    s_add_u32 m0, s27, {TBL}
    s_add_u32 s32, s27, {WS_MODF}
    buffer_load_dwordx4 v12, s[12:15], s31 offen lds
    s_add_u32 m0, s27, {TBL + 4096}
    s_nop 0
    buffer_load_dwordx4 v12, s[12:15], s32 offen lds
    """)
    vm = [('T', 0), ('T', 0)]
    def wait_tags(tags):
        idx = max(i for i, t in enumerate(vm) if t in tags)
        n = len(vm) - 1 - idx
        assert n <= 63
        k(f"s_waitcnt vmcnt({n})")
    def issueA(s):
        for p in range(4):
            k(f"s_add_u32 m0, s27, {(s & 3)*A_SLOT + p*4096}")
            k(f"s_add_u32 s28, s25, {p*65536 + s*128}")
            k(f"buffer_load_dwordx4 v8, s[12:15], s28 offen lds")
        vm.extend([('A', s)]*4)
    def boff(i): return (i & 1)*32*6144 + (i >> 1)*2048
    def issueB(s):
        for i in range(6):
            k(f"s_add_u32 m0, s27, {B_BASE + (s % 3)*B_SLOT + i*4096}")
            k(f"s_add_u32 s28, s26, {s*393216 + boff(i)}")
            k(f"buffer_load_dwordx4 v9, s[8:11], s28 offen lds")
        vm.extend([('B', s)]*6)
    issueA(0); issueB(0); issueA(1); issueB(1); issueA(2)
    wait_tags([('A', 0)])
    k("s_barrier")
    for b in range(NST):
        wait_tags([('B', b)] + ([('A', b + 1)] if b + 1 < NST else []))
        if b == 9: stamp(k, 2, flag='pstamp')
        k("s_barrier")
        if b == 8: stamp(k, 0, flag='pstamp')
        if b == 9: stamp(k, 3, flag='pstamp')
        if b + 2 < NST: issueB(b + 2)
        if b + 3 < NST: issueA(b + 3)
        if b == 8: stamp(k, 1, flag='pstamp')
    if 'pstamp' in FLAGS:
        stamp_store(k, 4, 12, 2, 18, vt=150, flag='pstamp')
    k("s_endpgm")
    k.label("qkv_xform")
    TP = [48, 64]
    XR_ = 16
    OUT = 32
    k(f"""
    v_and_b32 v10, 0x70, v8
    v_lshlrev_b32 v10, 1, v10
    v_add_u32 v10, {TBL}, v10
    v_lshlrev_b32 v11, 4, v2
    v_add_u32 v11, s27, v11            ; w*1024 + lane*16
    s_barrier
    """)
    def tabs(s):
        T = TP[s & 1]
        k(f"ds_read_b128 v[{T}:{T+3}], v10 offset:{256*s}")
        k(f"ds_read_b128 v[{T+4}:{T+7}], v10 offset:{256*s + 16}")
        k(f"ds_read_b128 v[{T+8}:{T+11}], v10 offset:{4096 + 256*s}")
        k(f"ds_read_b128 v[{T+12}:{T+15}], v10 offset:{4096 + 256*s + 16}")
    tabs(0)
    for s_ in range(NST):
        T = TP[s_ & 1]
        base = (s_ & 3)*A_SLOT
        for p in range(4):
            k(f"ds_read_b128 v[{XR_+4*p}:{XR_+4*p+3}], v11 offset:{base + p*4096}")
        nt = 0
        if s_ + 1 < NST:
            tabs(s_ + 1); nt = 4
        for p in range(4):
            k(f"s_waitcnt lgkmcnt({3 - p + nt + p})")
            for j in range(4):
                x = XR_ + 4*p + j; o = OUT + 4*p + j
                k(f"v_fma_mix_f32 v{o}, v{x}, v{T+2*j}, v{T+8+2*j} op_sel:[0,0,0] op_sel_hi:[1,0,0]")
                k(f"v_fma_mix_f32 v{x}, v{x}, v{T+2*j+1}, v{T+8+2*j+1} op_sel:[1,0,0] op_sel_hi:[1,0,0]")
                k(f"v_cvt_pk_bf16_f32 v{o}, v{o}, v{x}")
            k(f"ds_write_b128 v11, v[{OUT+4*p}:{OUT+4*p+3}] offset:{base + p*4096}")
        k("s_waitcnt lgkmcnt(0)")
        k("s_barrier")
    k.label("qkv_kernel_end")
    k("s_endpgm")
    def qkeep(l):
        if 'q_nomfma' in FLAGS and 'v_mfma' in l: return False
        if 'q_nords' in FLAGS and ('ds_read_b64_tr' in l or ('ds_read_b128' in l and 'v10' not in l)): return False
        if 'q_noB' in FLAGS and 'v9, s[8:11]' in l: return False
        if 'q_noA' in FLAGS and 'buffer_load_dwordx4' in l and ', v8, s[12:15]' in l: return False
        if 'q_nowr' in FLAGS and 'ds_write_b128' in l: return False
        if 'q_notr' in FLAGS and ('v_fma_mix' in l): return False
        if 'q_noxr' in FLAGS and 'ds_read_b128' in l and (' v10 ' in l or ' v11 ' in l): return False
        return True
    k.lines = [l for l in k.lines if qkeep(l)]
    finish(k, (256,1,1), (768,1,1), B_BASE + 3*B_SLOT + 8192, 168 if 'stamp' in FLAGS else 160, 102 if 'stamp' in FLAGS else 40)

def gen_qkv3():
    k = K("qkv_kernel")
    M32 = 'q3_32' in FLAGS
    NST = 16
    A_SLOT = 16384
    B_BASE = 65536
    B_SLOT = 24576
    k(f"""
    s_cmp_ge_u32 s2, 256
    s_cbranch_scc1 qkv_kernel_end
    s_load_dwordx2 s[4:5], s[0:1], {KA_WQKV}
    s_load_dwordx2 s[6:7], s[0:1], {KA_WS}
    v_lshrrev_b32 v1, 6, v0
    v_and_b32 v2, 63, v0               ; lane
    s_and_b32 s20, s2, 7               ; x
    s_lshr_b32 s21, s2, 3              ; j
    v_readfirstlane_b32 s18, v1
    s_and_b32 s16, s20, 1
    s_lshl_b32 s16, s16, 3
    s_and_b32 s22, s21, 7
    s_add_u32 s16, s16, s22            ; bm
    s_lshr_b32 s17, s20, 1
    s_lshl_b32 s17, s17, 2
    s_lshr_b32 s22, s21, 3
    s_add_u32 s17, s17, s22            ; bn
    s_cmp_ge_u32 s18, 4
    s_cbranch_scc1 qkv_producer
    s_lshr_b32 s19, s18, 1             ; wm
    s_and_b32 s23, s18, 1              ; hd
    s_lshl_b32 s24, s19, 13            ; wm*64*128
    """)
    if M32:
        k(f"""
        v_and_b32 v3, 31, v2               ; t
        v_lshrrev_b32 v4, 5, v2            ; hh
        v_lshrrev_b32 v5, 1, v3
        v_and_b32 v5, 7, v5                ; f = (t>>1)&7
        v_xor_b32 v5, v5, v4               ; hh ^ f
        v_lshlrev_b32 v5, 4, v5
        v_lshl_add_u32 v5, v3, 7, v5
        v_add_u32 v8, s24, v5              ; vA[0]
        v_xor_b32 v9, 32, v8
        v_xor_b32 v10, 64, v8
        v_xor_b32 v11, 0x60, v8
        v_lshrrev_b32 v5, 2, v2
        v_and_b32 v5, 3, v5                ; r
        v_lshl_add_u32 v6, v4, 3, v5       ; 8hh + r
        v_lshlrev_b32 v6, 7, v6            ; *128
        v_lshrrev_b32 v5, 1, v5            ; r>>1
        v_xor_b32 v5, s23, v5              ; ^ hd
        v_lshl_add_u32 v6, v5, 6, v6
        v_lshrrev_b32 v5, 4, v2
        v_and_b32 v5, 1, v5                ; ng
        v_lshl_add_u32 v6, v5, 5, v6
        v_and_b32 v5, 3, v2                ; c
        v_lshl_add_u32 v6, v5, 3, v6
        v_add_u32 v12, {B_BASE}, v6
        v_add_u32 v14, {B_BASE + 2*B_SLOT}, v6
        """)
    else:
        k(f"""
        v_and_b32 v3, 15, v2               ; n
        v_lshrrev_b32 v4, 4, v2            ; g
        v_lshrrev_b32 v5, 1, v3            ; f = n>>1
        v_xor_b32 v5, v5, v4               ; g ^ f
        v_lshlrev_b32 v5, 4, v5
        v_lshl_add_u32 v5, v3, 7, v5
        v_add_u32 v8, s24, v5              ; vA[ks=0]
        v_xor_b32 v9, 64, v8               ; ks=1
        v_lshrrev_b32 v5, 2, v2
        v_and_b32 v5, 3, v5                ; r
        v_lshl_add_u32 v6, v4, 3, v5       ; 8g + r
        v_lshlrev_b32 v6, 7, v6            ; *128
        v_lshrrev_b32 v5, 1, v5            ; r>>1
        v_and_b32 v7, 1, v4                ; g&1
        v_xor_b32 v7, s23, v7              ; ^ hd
        v_lshl_add_u32 v5, v7, 1, v5       ; (2hd) ^ f2
        v_lshl_add_u32 v6, v5, 5, v6
        v_and_b32 v5, 3, v2                ; c
        v_lshl_add_u32 v6, v5, 3, v6
        v_add_u32 v12, {B_BASE}, v6
        v_xor_b32 v13, 32, v12                      ; jj1
        v_add_u32 v14, {B_BASE + 2*B_SLOT}, v6      ; slots 2/3
        v_xor_b32 v15, 32, v14
        """)
    AS = [20, 60]; BS = [36, 76]; ACC = 100
    FOLD = not (FLAGS & {'q3ln', 'p_v2', 'p_v3'})
    BI = 196
    MD, MC, MA, MT, MX = 196, 228, 232, 240, 248
    if FOLD:
        k(f"""
        s_load_dwordx2 s[36:37], s[0:1], {KA_C}
        s_load_dwordx2 s[38:39], s[0:1], {KA_WMOD}
        s_lshl_b32 s29, s20, 7
        s_lshl_b32 s30, s18, 5
        s_add_u32 s29, s29, s30            ; row0
        s_lshl_b32 s28, s29, 1             ; c soffset
        v_lshlrev_b32 v16, 4, v4           ; c voffset: q*16
        s_mov_b32 s30, {8*12288}
        v_mul_lo_u32 v17, v4, s30
        v_lshl_add_u32 v17, v3, 4, v17
        v_lshlrev_b32 v18, 5, v3
        s_mul_i32 s29, s29, 12288
        s_lshl_b32 s30, s21, 8
        s_add_u32 s29, s29, s30
        s_add_u32 s29, s29, 4096
        s_lshl_b32 s31, s20, 2
        s_add_u32 s31, s31, s18
        s_lshl_b32 s31, s31, 14
        s_lshl_b32 s30, s21, 9
        s_add_u32 s31, s31, s30
        s_add_u32 s31, s31, {WS_PM}
        s_lshl_b32 s30, s23, 7
        v_lshl_add_u32 v19, v4, 4, s30
        v_lshl_add_u32 v7, v3, 2, s30
        s_mov_b32 s30, 0xbfb8aa3b          ; -log2(e)
        s_waitcnt lgkmcnt(0)
        """)
        srd(k, 40, 36, 2048)
        srd(k, 44, 38, 1024*6144*2)
        if 'q_nom' not in FLAGS:
            k(f"buffer_load_dwordx4 v[{MC}:{MC+3}], v16, s[40:43], s28 offen")
            for i in range(8):
                k(f"buffer_load_dwordx4 v[{MD+4*i}:{MD+4*i+3}], v17, s[44:47], s29 offen")
                k(f"s_add_u32 s29, s29, 12288")
    for i in range(96):
        k(f"v_mov_b32 v{ACC+i}, 0")
    lg = []; done = [-1]
    def ds(tag, txt):
        lg.append(tag); k(txt)
    def need(tags):
        idx = max(i for i, t in enumerate(lg) if t in tags)
        if idx <= done[0]: return
        n = min(15, len(lg) - 1 - idx)
        done[0] = len(lg) - 1 - n
        k(f"s_waitcnt lgkmcnt({n})")
    NSTEP = 2*NST
    def rd(n):
        st, ks = divmod(n, 2)
        slot = st & 3
        A = AS[n & 1]; B = BS[n & 1]
        ra = []; rb = []
        for i in range(4):
            if M32:
                kk, ti = divmod(i, 2)
                ra.append((('A', n, i), f"ds_read_b128 v[{A+4*i}:{A+4*i+3}], v{8+2*ks+kk} offset:{slot*A_SLOT + ti*4096}"))
            else:
                ra.append((('A', n, i), f"ds_read_b128 v[{A+4*i}:{A+4*i+3}], v{8+ks} offset:{slot*A_SLOT + i*2048}"))
        for f in range(6):
            for j in range(2):
                d = B + 4*f + 2*j
                if M32:
                    kk, seg = divmod(f, 3)
                    rb.append((('B', n, f), f"ds_read_b64_tr_b16 v[{d}:{d+1}], v{12+2*(slot>>1)} offset:{(slot&1)*B_SLOT + seg*8192 + (2*ks+kk)*2048 + j*512}"))
                else:
                    seg, jj = divmod(f, 2)
                    rb.append((('B', n, f), f"ds_read_b64_tr_b16 v[{d}:{d+1}], v{12+2*(slot>>1)+jj} offset:{(slot&1)*B_SLOT + seg*8192 + ks*4096 + j*512}"))
        if M32:
            return ra[0:2] + rb[0:6] + ra[2:4] + rb[6:12]
        return [ra[0]] + rb[0:2] + ra[1:4] + rb[2:12]
    def mfs(n):
        A = AS[n & 1]; B = BS[n & 1]
        r = []
        if M32:
            for kk in range(2):
                for seg in range(3):
                    for ti in range(2):
                        a = ACC + 16*(2*seg + ti)
                        f = 3*kk + seg; i = 2*kk + ti
                        W = f"v[{B+4*f}:{B+4*f+3}]"; H = f"v[{A+4*i}:{A+4*i+3}]"
                        x, y = (W, H) if seg < 2 else (H, W)
                        r.append(([('A', n, i), ('B', n, f)], f"v_mfma_f32_32x32x16_bf16 v[{a}:{a+15}], {x}, {y}, v[{a}:{a+15}]"))
        else:
            for f in range(6):
                for i in (range(4) if f % 2 == 0 else range(3, -1, -1)):
                    a = ACC + 4*(4*f + i)
                    W = f"v[{B+4*f}:{B+4*f+3}]"; H = f"v[{A+4*i}:{A+4*i+3}]"
                    x, y = (W, H) if f < 4 else (H, W)
                    r.append(([('A', n, i), ('B', n, f)], f"v_mfma_f32_16x16x32_bf16 v[{a}:{a+3}], {x}, {y}, v[{a}:{a+3}]"))
        return r
    k("s_waitcnt lgkmcnt(0)")
    srd(k, 12, 6, WS_SIZE)
    if 'noprio' not in FLAGS: k("s_setprio 3")
    stamp(k, 0)
    k("s_barrier")
    stamp(k, 1)
    for t, x in rd(0): ds(t, x)
    fill = []
    if FOLD and 'q_nom' not in FLAGS:
        fill.append("s_waitcnt vmcnt(0)")
        for j in range(4):
            fill.append(f"v_lshlrev_b32 v{MT+2*j}, 16, v{MC+j}")
            fill.append(f"v_and_b32 v{MT+2*j+1}, 0xffff0000, v{MC+j}")
        for i in range(8): fill.append(f"v_mul_f32 v{MA+i}, s30, v{MT+i}")
        for i in range(8): fill.append(f"v_exp_f32 v{MA+i}, v{MA+i}")
        for i in range(8): fill.append(f"v_add_f32 v{MA+i}, 1.0, v{MA+i}")
        for i in range(8): fill.append(f"v_rcp_f32 v{MA+i}, v{MA+i}")
        for i in range(8): fill.append(f"v_mul_f32 v{MT+i}, v{MT+i}, v{MA+i}")
        for i in range(8): fill.append(f"v_cvt_pk_bf16_f32 v{MT+i}, v{MT+i}, v{MT+i}")
        for i in range(8): fill.append(f"v_lshlrev_b32 v{MT+i}, 16, v{MT+i}")
        for i in range(8):
            for j in range(4):
                src = MD + 4*i + j
                op = 'v_mul_f32' if i == 0 else 'v_fmac_f32'
                fill.append(f"v_lshlrev_b32 v{MX}, 16, v{src}")
                fill.append(f"v_and_b32 v{MX+1}, 0xffff0000, v{src}")
                fill.append(f"{op} v{MA+2*j}, v{MT+i}, v{MX}")
                fill.append(f"{op} v{MA+2*j+1}, v{MT+i}, v{MX+1}")
        for sw in ('16', '32'):
            for j in range(8): fill.append(f"v_mov_b32 v{MT+j}, v{MA+j}")
            for j in range(8): fill.append(f"v_permlane{sw}_swap_b32 v{MA+j}, v{MT+j}")
            for j in range(8): fill.append(f"v_add_f32 v{MA+j}, v{MA+j}, v{MT+j}")
        fill.append(f"""s_mov_b64 exec, 0xffff
        buffer_store_dwordx4 v[{MA}:{MA+3}], v18, s[12:15], s31 offen
        buffer_store_dwordx4 v[{MA+4}:{MA+7}], v18, s[12:15], s31 offen offset:16
        s_mov_b64 exec, -1""")
    FILL0 = int(os.environ.get('FILL0', '10')); ADD0 = 29
    BI = MD
    def accof(idx):
        f, i = divmod(idx, 4)
        if f % 2: i = 3 - i
        return f, ACC + 4*(4*f + i)
    for n in range(NSTEP):
        st, ks = divmod(n, 2)
        R = rd(n + 1) if n + 1 < NSTEP else []
        M = mfs(n)
        nm = len(M)
        bnd = (ks == 1 and n + 1 < NSTEP)
        if M32:
            plan = [0, 2, 2, 2, 2, 2, 2, 2, 2, 0, 0, 0] if bnd else [2, 2, 2, 2, 2, 2, 2, 2, 0, 0, 0, 0]
            bpos = 1
        else:
            plan = [0, 0, 0] + [1]*16 + [0]*5 if bnd else [1]*16 + [0]*8
            bpos = 3
        for i in range(nm):
            if bnd and i == bpos:
                need([t for t in lg if t[1] == n])
                k("s_barrier")
            need(M[i][0])
            k(M[i][1])
            for _ in range(plan[i]):
                if R:
                    t, x = R.pop(0); ds(t, x)
            for _ in range(1 if plan[i] else 2):
                if n >= FILL0 and fill: k(fill.pop(0))
            if FOLD and n == ADD0 - 1 and i >= 18:
                assert not fill
                f = i - 18
                if f < 4: ds(('P', -1, f), f"ds_read_b128 v[{BI+4*f}:{BI+4*f+3}], v19 offset:{(f>>1)*256 + (f&1)*64}")
                else: ds(('P', -1, f), f"ds_read_b32 v{BI+16+f-4}, v7 offset:{512 + (f&1)*64}")
            if FOLD and ADD0 <= n < ADD0 + 2:
                f, a = accof((i - 10) % 24)
                need([('P', -1, f)])
                for e in range(2*(n - ADD0), 2*(n - ADD0) + 2):
                    k(f"v_add_f32 v{a+e}, v{a+e}, v{BI + 4*f + e if f < 4 else BI + 16 + f - 4}")
        assert not R
    stamp(k, 2)
    k(f"""
    s_lshl_b32 s26, s17, 1
    s_add_u32 s26, s26, s23            ; head
    s_lshl_b32 s26, s26, 17
    s_lshl_b32 s27, s16, 2
    s_lshl_b32 s25, s19, 1
    s_add_u32 s27, s27, s25
    s_lshl_b32 s27, s27, 11
    s_add_u32 s26, s26, s27
    s_add_u32 s28, s26, {WS_Q}
    s_add_u32 s29, s26, {WS_K}
    s_add_u32 s30, s26, {WS_V}
    s_mov_b32 s34, {f32bits(QK_SCALE)}
    """)
    if M32:
        k("v_lshlrev_b32 v3, 4, v2            ; lane*16")
        k("s_nop 7")
        cnt = 0
        for seg in range(3):
            for ti in range(2):
                a = ACC + 16*(2*seg + ti)
                if seg == 0:
                    for e in range(16):
                        k(f"v_mul_f32 v{a+e}, s34, v{a+e}")
                for m in range(2):
                    d = 20 + 4*cnt; cnt += 1
                    for e in range(4):
                        k(f"v_cvt_pk_bf16_f32 v{d+e}, v{a+8*m+2*e}, v{a+8*m+2*e+1}")
                    k(f"buffer_store_dwordx4 v[{d}:{d+3}], v3, s[12:15], s{28+seg} offen offset:{ti*2048 + m*1024}")
    else:
        k(f"""
        v_and_b32 v5, 7, v3
        v_lshrrev_b32 v6, 3, v3
        v_lshl_add_u32 v5, v6, 4, v5       ; (n&7) + 16(n>>3)
        v_lshl_add_u32 v5, v4, 5, v5       ; + g*32
        v_lshlrev_b32 v5, 4, v5
        v_lshl_add_u32 v6, v4, 5, v3       ; g*32 + n
        v_lshlrev_b32 v6, 4, v6
        s_nop 4
        """)
        cnt = 0
        for seg in range(2):
            for i in range(4):
                a0 = ACC + 4*(4*(2*seg) + i); a1 = ACC + 4*(4*(2*seg+1) + i)
                if seg == 0:
                    for e in range(4):
                        k(f"v_mul_f32 v{a0+e}, s34, v{a0+e}")
                        k(f"v_mul_f32 v{a1+e}, s34, v{a1+e}")
                d = 20 + 4*cnt; cnt += 1
                k(f"v_cvt_pk_bf16_f32 v{d}, v{a0}, v{a0+1}")
                k(f"v_cvt_pk_bf16_f32 v{d+1}, v{a0+2}, v{a0+3}")
                k(f"v_cvt_pk_bf16_f32 v{d+2}, v{a1}, v{a1+1}")
                k(f"v_cvt_pk_bf16_f32 v{d+3}, v{a1+2}, v{a1+3}")
                k(f"buffer_store_dwordx4 v[{d}:{d+3}], v5, s[12:15], s{28+seg} offen offset:{(i>>1)*2048 + (i&1)*128}")
        for jj in range(2):
            for T in range(2):
                a0 = ACC + 4*(4*(4+jj) + 2*T); a1 = a0 + 4
                d = 20 + 4*cnt; cnt += 1
                k(f"v_cvt_pk_bf16_f32 v{d}, v{a0}, v{a0+1}")
                k(f"v_cvt_pk_bf16_f32 v{d+1}, v{a0+2}, v{a0+3}")
                k(f"v_cvt_pk_bf16_f32 v{d+2}, v{a1}, v{a1+1}")
                k(f"v_cvt_pk_bf16_f32 v{d+3}, v{a1+2}, v{a1+3}")
                k(f"buffer_store_dwordx4 v[{d}:{d+3}], v6, s[12:15], s30 offen offset:{T*2048 + jj*256}")
    if 'stamp' in FLAGS:
        k("s_waitcnt vmcnt(0)")
        stamp(k, 3)
        stamp_store(k, 4, 12, 2, 18, vt=196)
    k("s_endpgm")
    k.label("qkv_producer")
    k(f"""
    s_and_b32 s19, s18, 3              ; w
    v_lshrrev_b32 v3, 3, v2            ; l>>3
    s_lshl_b32 s23, s19, 3
    v_add_u32 v7, s23, v3              ; 8w + (l>>3)   (B row)
    v_lshrrev_b32 v4, 4, v2            ; l>>4
    s_and_b32 s24, s19, 1
    """)
    if M32:
        k("v_mov_b32 v3, v7")
    else:
        k(f"""
        s_lshl_b32 s23, s24, 4
        s_lshr_b32 s25, s19, 1
        s_lshl_b32 s25, s25, 3
        s_add_u32 s23, s23, s25
        v_add_u32 v3, s23, v3              ; token = (l>>3) + 16(w&1) + 8(w>>1)
        """)
    k(f"""
    s_lshl_b32 s24, s24, 2
    v_add_u32 v5, s24, v4              ; 4(w&1) + (l>>4)
    v_and_b32 v6, 7, v2
    v_xor_b32 v5, v5, v6
    v_lshlrev_b32 v5, 4, v5
    v_lshl_add_u32 v8, v3, 11, v5      ; vA
    s_mov_b32 s25, 6144
    v_mul_lo_u32 v9, v7, s25
    """)
    if M32:
        k(f"""
        v_lshrrev_b32 v5, 2, v2
        v_xor_b32 v5, v5, v4
        v_and_b32 v5, 1, v5                ; hd
        v_lshl_add_u32 v9, v5, 6, v9
        v_and_b32 v5, 3, v2
        v_lshl_add_u32 v9, v5, 4, v9       ; vB
        """)
    else:
        k(f"""
        v_and_b32 v5, 1, v4
        v_lshlrev_b32 v5, 1, v5
        v_xor_b32 v5, v5, v6
        v_xor_b32 v5, s24, v5              ; (l&7) ^ ((l>>4)&1)<<1 ^ (w&1)<<2
        v_lshl_add_u32 v9, v5, 4, v9       ; vB
        """)
    k(f"""
    s_lshl_b32 s25, s16, 18
    s_add_u32 s25, s25, {WS_H}
    s_lshl_b32 s26, s17, 7
    s_lshl_b32 s27, s19, 10            ; w*1024
    s_waitcnt lgkmcnt(0)
    """)
    LIN = 'q3ln' not in FLAGS
    srd(k, 8, 4, 1024*3072*2)
    srd(k, 12, 6, WS_SIZE)
    if LIN:
        k(f"""
        v_lshlrev_b32 v8, 4, v2
        v_add_u32 v8, s27, v8
        s_mul_i32 s26, s17, {16*24576}
        s_add_u32 s26, s26, {WS_WQ}
        """)
    vm = []
    def wait_tags(tags):
        idx = max(i for i, t in enumerate(vm) if t in tags)
        n = len(vm) - 1 - idx
        assert n <= 63
        k(f"s_waitcnt vmcnt({n})")
    def boff(i): return (i & 1)*32*6144 + (i >> 1)*2048
    def issue(s):
        for p in range(4):
            k(f"s_add_u32 m0, s27, {(s & 3)*A_SLOT + p*4096}")
            k(f"s_add_u32 s28, s25, {s*16384 + p*4096 if LIN else p*65536 + s*128}")
            k(f"buffer_load_dwordx4 v8, s[12:15], s28 offen lds")
        for i in range(6):
            k(f"s_add_u32 m0, s27, {B_BASE + (s & 3)*B_SLOT + i*4096}")
            if LIN:
                k(f"s_add_u32 s28, s26, {s*24576 + i*4096}")
                k(f"buffer_load_dwordx4 v8, s[12:15], s28 offen lds")
            else:
                k(f"s_add_u32 s28, s26, {s*393216 + boff(i)}")
                k(f"buffer_load_dwordx4 v9, s[8:11], s28 offen lds")
        vm.extend([('S', s)]*10)
    issue(0); issue(1); issue(2)
    if FOLD:
        k(f"""
        s_min_u32 s29, s19, 2
        s_mov_b32 s30, {8*12288}
        v_mul_lo_u32 v10, v4, s30
        v_and_b32 v11, 15, v2
        v_lshlrev_b32 v11, 4, v11
        v_add_u32 v10, v10, v11
        s_lshl_b32 s30, s29, 8
        v_add_u32 v11, s30, v11
        s_lshl_b32 s29, s29, 12
        s_lshl_b32 s30, s17, 8
        s_add_u32 s29, s29, s30
        s_add_u32 s29, s29, {WS_PB}
        """)
    def bload():
        for i in range(8):
            k(f"buffer_load_dwordx4 v[{32+4*i}:{35+4*i}], v10, s[12:15], s29 offen")
            k(f"s_add_u32 s29, s29, 12288")
        vm.extend([('B', 0)]*8)
    def bsum():
        st_ = 1
        while st_ < 8:
            for i in range(0, 8, 2*st_):
                for e in range(4):
                    k(f"v_add_f32 v{32+4*i+e}, v{32+4*i+e}, v{32+4*(i+st_)+e}")
            st_ *= 2
        for sw in ('16', '32'):
            for j in range(4):
                k(f"v_mov_b32 v{36+j}, v{32+j}")
            k("s_nop 1")
            for j in range(4):
                k(f"v_permlane{sw}_swap_b32 v{32+j}, v{36+j}")
            for j in range(4):
                k(f"v_add_f32 v{32+j}, v{32+j}, v{36+j}")
    for b in range(NST):
        wait_tags([('S', b)])
        if b == 9: stamp(k, 2, flag='pstamp')
        k("s_barrier")
        if b == 8: stamp(k, 0, flag='pstamp')
        if b == 9: stamp(k, 3, flag='pstamp')
        if b + 3 < NST: issue(b + 3)
        if b == 8: stamp(k, 1, flag='pstamp')
        if FOLD:
            if b == 6: bload()
            if b == 11: bsum()
            if b == 13:
                k("ds_write_b128 v11, v[32:35]")
                k("s_waitcnt lgkmcnt(0)")
    if 'pstamp' in FLAGS:
        stamp_store(k, 4, 12, 2, 18, vt=150, flag='pstamp')
    k.label("qkv_kernel_end")
    k("s_endpgm")
    finish(k, (256,1,1), (512,1,1), B_BASE + 4*B_SLOT, 252 if FOLD else (200 if 'stamp' in FLAGS else 196), 102 if FLAGS & {'stamp', 'pstamp'} else 48)

def gen_attn():
    k = K("attn_kernel")
    Q, NEGM, SA, SB, P, O, Lr, ONES = 8, 16, 32, 48, 64, 72, 88, 92
    KB = [96, 104]; VB = [112, 120]
    S = [SA, SB]
    SLOT = 32768
    k(f"""
    s_cmp_ge_u32 s2, 256
    s_cbranch_scc1 attn_kernel_end
    s_load_dwordx2 s[6:7], s[0:1], {KA_WS}
    s_load_dwordx4 s[36:39], s[0:1], {KA_WG}
    s_load_dwordx2 s[52:53], s[0:1], {KA_WD}
    s_load_dwordx2 s[54:55], s[0:1], {KA_WO}
    v_lshrrev_b32 v1, 6, v0
    v_and_b32 v6, 63, v0               ; lane
    s_and_b32 s20, s2, 7               ; x
    s_lshr_b32 s21, s2, 3              ; j
    v_readfirstlane_b32 s18, v1
    s_lshr_b32 s22, s21, 3
    s_lshl_b32 s22, s22, 3
    s_add_u32 s16, s20, s22            ; head
    s_and_b32 s17, s21, 7              ; qblock
    v_lshlrev_b32 v5, 4, v6            ; lane*16
    s_lshl_b32 s23, s16, 17            ; head*64*2048
    s_lshl_b32 s24, s17, 3
    s_add_u32 s24, s24, s18
    s_lshl_b32 s25, s24, 11
    s_add_u32 s25, s25, s23
    s_add_u32 s25, s25, {WS_Q}         ; Q soffset
    s_lshl_b32 s26, s18, 11            ; wave*2048
    s_add_u32 s26, s26, s23
    s_add_u32 s27, s26, {WS_V}
    s_add_u32 s26, s26, {WS_K}
    s_lshl_b32 s28, s18, 12
    s_waitcnt lgkmcnt(0)
    """)
    srd(k, 12, 6, WS_SIZE)
    PF = 128
    k(f"""
    s_lshl_b32 s56, s21, 3
    s_add_u32 s56, s56, s18
    s_and_b32 s57, s56, 127            ; kq8
    s_cmp_ge_u32 s56, 128
    s_cselect_b32 s36, s38, s36
    s_cselect_b32 s37, s39, s37
    s_cselect_b32 s58, 0x800000, 0
    """)
    srd(k, 40, 36, 1024*3584*2)
    srd(k, 44, 52, 3584*1024*2)
    srd(k, 48, 54, 1024*1024*2)
    k(f"""
    s_mul_i32 s59, s57, {8*7168}
    s_mul_i32 s60, s20, {7*128}
    s_add_u32 s59, s59, s60
    s_mul_i32 s60, s20, {7*4*32768}
    s_add_u32 s60, s60, s58
    s_lshl_b32 s57, s57, 8
    s_add_u32 s60, s60, s57
    s_add_u32 s60, s60, {WS_G}
    s_mul_i32 s61, s20, {28*32768}
    s_mul_i32 s62, s56, 3584
    s_add_u32 s61, s61, s62
    s_and_b32 s62, s20, 1
    s_lshl_b32 s62, s62, 10
    s_lshl_b32 s63, s56, 13
    s_add_u32 s62, s62, s63
    v_lshrrev_b32 v1, 3, v6            ; l>>3
    v_and_b32 v7, 7, v6
    s_mov_b32 s63, 7168
    v_mul_lo_u32 v{PF}, v1, s63
    v_lshl_add_u32 v{PF}, v7, 4, v{PF}
    v_lshrrev_b32 v{PF+1}, 1, v7
    v_lshlrev_b32 v{PF+1}, 15, v{PF+1}
    v_lshl_add_u32 v{PF+1}, v1, 5, v{PF+1}
    v_and_b32 v7, 1, v6
    v_lshl_add_u32 v{PF+1}, v7, 4, v{PF+1}
    v_lshlrev_b32 v{PF+2}, 3, v6                ; lane*8
    """)
    def side():
        l1, l2, l3 = k.newlabel("sj"), k.newlabel("sj"), k.newlabel("sj")
        k(f"""
        s_cmp_eq_u32 s33, 0
        s_cbranch_scc1 {l1}
        buffer_store_dwordx4 v[{PF+4}:{PF+7}], v{PF+1}, s[12:15], s60 offen {os.environ.get('SJST','sc1')}
        s_add_u32 s60, s60, {4*32768}
        """)
        k.label(l1)
        k(f"""
        s_cmp_eq_u32 s33, 7
        s_cbranch_scc1 {l3}
        buffer_load_dwordx4 v[{PF+4}:{PF+7}], v{PF}, s[40:43], s59 offen
        buffer_load_dwordx2 v[{PF+8}:{PF+9}], v{PF+2}, s[44:47], s61 offen
        s_add_u32 s59, s59, 128
        s_add_u32 s61, s61, 512
        s_cmp_ge_u32 s33, 4
        s_cbranch_scc1 {l3}
        buffer_load_dwordx4 v[{PF+12}:{PF+15}], v5, s[48:51], s62 offen
        s_add_u32 s62, s62, 2048
        """)
        k.label(l3)
    def dma(slot_sreg_or_imm):
        if isinstance(slot_sreg_or_imm, int):
            k(f"s_add_u32 m0, s28, {slot_sreg_or_imm}")
        else:
            k(f"s_add_u32 m0, s28, {slot_sreg_or_imm}")
        k("s_nop 0")
        k("buffer_load_dwordx4 v5, s[12:15], s26 offen lds")
        k("buffer_load_dwordx4 v5, s[12:15], s26 offen offset:1024 lds")
        k("s_add_u32 m0, m0, 2048")
        k("s_add_u32 s26, s26, 16384")
        k("buffer_load_dwordx4 v5, s[12:15], s27 offen lds")
        k("buffer_load_dwordx4 v5, s[12:15], s27 offen offset:1024 lds")
        k("s_add_u32 s27, s27, 16384")
    FOLD = not (FLAGS & {'q3ln', 'p_v2', 'p_v3', 'q_v1', 'q_v2'})
    if FOLD:
        k(f"""
        s_lshl_b32 s64, s2, 3
        s_add_u32 s64, s64, s18
        s_lshl_b32 s65, s64, 3
        s_add_u32 s65, s65, {WS_PM}
        s_lshl_b32 s64, s64, 2
        s_add_u32 s64, s64, {WS_MOD + 4096}
        v_and_b32 v1, 31, v6
        v_lshlrev_b32 v1, 14, v1
        v_lshrrev_b32 v7, 5, v6
        v_lshl_add_u32 v1, v7, 2, v1
        buffer_load_dword v{PF+10}, v1, s[12:15], s65 offen
        """)
    k(f"""
    buffer_load_dwordx4 v[{Q}:{Q+3}], v5, s[12:15], s25 offen
    buffer_load_dwordx4 v[{Q+4}:{Q+7}], v5, s[12:15], s25 offen offset:1024
    """)
    dma(0)
    dma(SLOT)
    k(f"""
    v_lshrrev_b32 v1, 2, v6
    v_xor_b32 v1, v1, v6
    v_and_b32 v1, 4, v1
    v_cmp_eq_u32 vcc, 0, v1
    v_mov_b32 v7, 0x3f803f80
    s_nop 1
    v_cndmask_b32 v{ONES}, 0, v7, vcc
    v_cndmask_b32 v{ONES+1}, 0, v7, vcc
    v_cndmask_b32 v{ONES+2}, 0, v7, vcc
    v_cndmask_b32 v{ONES+3}, 0, v7, vcc
    v_mov_b32 v2, v5
    v_add_u32 v3, {SLOT}, v5
    s_mov_b32 s30, 0
    s_mov_b32 s31, {SLOT}
    s_mov_b32 s32, {2*SLOT}
    s_mov_b32 s33, 0                   ; stage
    """)
    for i in range(16):
        k(f"v_mov_b32 v{O+i}, 0")
    for i in range(4):
        k(f"v_mov_b32 v{Lr+i}, 0")
    stamp(k, 0, flag='astamp')
    k(f"""
    s_waitcnt vmcnt(4)
    s_barrier
    """)
    stamp(k, 1, flag='astamp')
    k(f"""
    ds_read_b128 v[{KB[0]}:{KB[0]+3}], v2 offset:0
    ds_read_b128 v[{KB[0]+4}:{KB[0]+7}], v2 offset:1024
    ds_read_b128 v[{KB[1]}:{KB[1]+3}], v2 offset:4096
    ds_read_b128 v[{KB[1]+4}:{KB[1]+7}], v2 offset:{4096+1024}
    ds_read_b128 v[{VB[0]}:{VB[0]+3}], v2 offset:2048
    ds_read_b128 v[{VB[0]+4}:{VB[0]+7}], v2 offset:3072
    s_waitcnt lgkmcnt(4)
    v_mfma_f32_32x32x16_bf16 v[{SA}:{SA+15}], v[{KB[0]}:{KB[0]+3}], v[{Q}:{Q+3}], 0
    v_mfma_f32_32x32x16_bf16 v[{SA}:{SA+15}], v[{KB[0]+4}:{KB[0]+7}], v[{Q+4}:{Q+7}], v[{SA}:{SA+15}]
    """)
    if FOLD:
        a, t = PF+10, PF+11
        k(f"""
        v_add_f32_dpp v{t}, v{a}, v{a} quad_perm:[1,0,3,2] row_mask:0xf bank_mask:0xf
        s_nop 1
        v_add_f32_dpp v{a}, v{t}, v{t} quad_perm:[2,3,0,1] row_mask:0xf bank_mask:0xf
        s_nop 1
        v_add_f32_dpp v{t}, v{a}, v{a} row_half_mirror row_mask:0xf bank_mask:0xf
        s_nop 1
        v_add_f32_dpp v{a}, v{t}, v{t} row_mirror row_mask:0xf bank_mask:0xf
        s_nop 0
        v_mov_b32 v{t}, v{a}
        s_nop 1
        v_permlane16_swap_b32 v{a}, v{t}
        s_nop 0
        v_add_f32 v{a}, v{a}, v{t}
        v_mov_b32 v{t}, v{a}
        s_nop 1
        v_permlane32_swap_b32 v{a}, v{t}
        v_mov_b32 v1, 0
        v_cvt_pk_bf16_f32 v{a}, v{a}, v{t}
        s_mov_b64 exec, 1
        buffer_store_dword v{a}, v1, s[12:15], s64 offen
        s_mov_b64 exec, -1
        """)
    else:
        k("s_nop 15\ns_nop 3")
    def tile_max(src, d, t):
        k(f"v_max3_f32 v{d}, v{src}, v{src+1}, v{src+2}")
        for i in range(3, 15, 2):
            k(f"v_max3_f32 v{d}, v{d}, v{src+i}, v{src+i+1}")
        k(f"v_max_f32 v{d}, v{d}, v{src+15}")
        k(f"v_mov_b32 v{t}, v{d}")
        k("s_nop 1")
        k(f"v_permlane32_swap_b32 v{d}, v{t}")
        k("s_nop 0")
        k(f"v_max_f32 v{d}, v{d}, v{t}")
    tile_max(SA, 1, 7)
    for i in range(16):
        k(f"v_sub_f32 v{NEGM+i}, 0, v1")
    k(f"""
    s_nop 1
    v_mfma_f32_32x32x16_bf16 v[{SA}:{SA+15}], v[{KB[0]}:{KB[0]+3}], v[{Q}:{Q+3}], v[{NEGM}:{NEGM+15}]
    v_mfma_f32_32x32x16_bf16 v[{SA}:{SA+15}], v[{KB[0]+4}:{KB[0]+7}], v[{Q+4}:{Q+7}], v[{SA}:{SA+15}]
    s_nop 11
    """)
    if 'a_old' not in FLAGS:
        k("s_nop 7")
        k(f"v_exp_f32 v{SA}, v{SA}")
        k(f"v_exp_f32 v{SA+1}, v{SA+1}")
        if 'a_prio' in FLAGS:
            k("s_cmp_lt_u32 s18, 4")
            k("s_cbranch_scc1 attn_noprio")
            k("s_setprio 1")
            k.label("attn_noprio")
        k(".p2align 3")
        if 'a_mis' in FLAGS: k("s_nop 0")
    k.label("attn_loop")
    for i in range(8):
        c = i & 1; n = c ^ 1
        Sc, Sn = S[c], S[n]
        Kn, Kc = KB[n], KB[c]
        Vc, Vn = VB[c], VB[n]
        k2 = ("v2", (i+2)*4096) if i + 2 < 8 else ("v3", (i+2-8)*4096)
        v1_ = ("v2", (i+1)*4096) if i + 1 < 8 else ("v3", (i+1-8)*4096)
        if i == 6:
            lab = k.newlabel("nodma")
            k(f"""
            s_waitcnt vmcnt(0)
            s_barrier
            s_cmp_ge_u32 s33, 6
            s_cbranch_scc1 {lab}
            """)
            dma("s32")
            k.label(lab)
            if 'noside' not in FLAGS: side()
        if 'a_old' in FLAGS:
            k(f"""
            s_waitcnt lgkmcnt(2)
            v_mfma_f32_32x32x16_bf16 v[{Sn}:{Sn+15}], v[{Kn}:{Kn+3}], v[{Q}:{Q+3}], v[{NEGM}:{NEGM+15}]
            """)
            for e in range(0, 4):
                k(f"v_exp_f32 v{Sc+e}, v{Sc+e}")
            k(f"v_mfma_f32_32x32x16_bf16 v[{Sn}:{Sn+15}], v[{Kn+4}:{Kn+7}], v[{Q+4}:{Q+7}], v[{Sn}:{Sn+15}]")
            k(f"ds_read_b128 v[{Kc}:{Kc+3}], {k2[0]} offset:{k2[1]}")
            k(f"ds_read_b128 v[{Kc+4}:{Kc+7}], {k2[0]} offset:{k2[1]+1024}")
            for e in range(4, 8):
                k(f"v_exp_f32 v{Sc+e}, v{Sc+e}")
            k(f"ds_read_b128 v[{Vn}:{Vn+3}], {v1_[0]} offset:{v1_[1]+2048}")
            k(f"ds_read_b128 v[{Vn+4}:{Vn+7}], {v1_[0]} offset:{v1_[1]+3072}")
            for e in range(4):
                k(f"v_cvt_pk_bf16_f32 v{P+e}, v{Sc+2*e}, v{Sc+2*e+1}")
            for e in range(8, 12):
                k(f"v_exp_f32 v{Sc+e}, v{Sc+e}")
            k("s_waitcnt lgkmcnt(4)")
            k(f"v_mfma_f32_32x32x16_bf16 v[{O}:{O+15}], v[{Vc}:{Vc+3}], v[{P}:{P+3}], v[{O}:{O+15}]")
            for e in range(12, 16):
                k(f"v_exp_f32 v{Sc+e}, v{Sc+e}")
            k(f"v_mfma_f32_16x16x32_bf16 v[{Lr}:{Lr+3}], v[{ONES}:{ONES+3}], v[{P}:{P+3}], v[{Lr}:{Lr+3}]")
            for e in range(4, 8):
                k(f"v_cvt_pk_bf16_f32 v{P+e}, v{Sc+2*e}, v{Sc+2*e+1}")
            k("s_nop 1")
            k(f"v_mfma_f32_32x32x16_bf16 v[{O}:{O+15}], v[{Vc+4}:{Vc+7}], v[{P+4}:{P+7}], v[{O}:{O+15}]")
            k(f"v_mfma_f32_16x16x32_bf16 v[{Lr}:{Lr+3}], v[{ONES}:{ONES+3}], v[{P+4}:{P+7}], v[{Lr}:{Lr+3}]")
            continue
        if i == 6: k(".p2align 3")
        def ex(regs):
            for r in regs: k(f"v_exp_f32 v{r}, v{r}")
        k("s_waitcnt lgkmcnt(2)")
        ex([Sc+2])
        k(f"v_mfma_f32_32x32x16_bf16 v[{Sn}:{Sn+15}], v[{Kn}:{Kn+3}], v[{Q}:{Q+3}], v[{NEGM}:{NEGM+15}]")
        ex([Sc+3, Sc+4, Sc+5, Sc+6])
        k(f"v_mfma_f32_32x32x16_bf16 v[{Sn}:{Sn+15}], v[{Kn+4}:{Kn+7}], v[{Q+4}:{Q+7}], v[{Sn}:{Sn+15}]")
        k(f"ds_read_b128 v[{Kc}:{Kc+3}], {k2[0]} offset:{k2[1]}")
        k(f"ds_read_b128 v[{Kc+4}:{Kc+7}], {k2[0]} offset:{k2[1]+1024}")
        ex([Sc+7, Sc+8])
        k(f"ds_read_b128 v[{Vn}:{Vn+3}], {v1_[0]} offset:{v1_[1]+2048}")
        k(f"ds_read_b128 v[{Vn+4}:{Vn+7}], {v1_[0]} offset:{v1_[1]+3072}")
        for e in range(4):
            k(f"v_cvt_pk_bf16_f32 v{P+e}, v{Sc+2*e}, v{Sc+2*e+1}")
        ex([Sc+9, Sc+10, Sc+11])
        k("s_waitcnt lgkmcnt(4)")
        k(f"v_mfma_f32_32x32x16_bf16 v[{O}:{O+15}], v[{Vc}:{Vc+3}], v[{P}:{P+3}], v[{O}:{O+15}]")
        ex([Sc+12, Sc+13, Sc+14, Sc+15])
        k(f"v_mfma_f32_16x16x32_bf16 v[{Lr}:{Lr+3}], v[{ONES}:{ONES+3}], v[{P}:{P+3}], v[{Lr}:{Lr+3}]")
        for e in range(4, 8):
            k(f"v_cvt_pk_bf16_f32 v{P+e}, v{Sc+2*e}, v{Sc+2*e+1}")
        ex([Sn, Sn+1])
        k(f"v_mfma_f32_32x32x16_bf16 v[{O}:{O+15}], v[{Vc+4}:{Vc+7}], v[{P+4}:{P+7}], v[{O}:{O+15}]")
        k(f"v_mfma_f32_16x16x32_bf16 v[{Lr}:{Lr+3}], v[{ONES}:{ONES+3}], v[{P+4}:{P+7}], v[{Lr}:{Lr+3}]")
    if FLAGS & {'a_nomfma','a_noexp','a_nods','a_nosum','a_nocvt','a_nopv'}:
        i0 = k.lines.index("attn_loop:")
        body = k.lines[i0:]
        def keep(l):
            if 'a_nomfma' in FLAGS and 'v_mfma' in l: return False
            if 'a_noexp' in FLAGS and 'v_exp' in l: return False
            if 'a_nods' in FLAGS and 'ds_read' in l: return False
            if 'a_nosum' in FLAGS and '16x16x32' in l: return False
            if 'a_nocvt' in FLAGS and 'v_cvt_pk' in l: return False
            if 'a_nopv' in FLAGS and 'v_mfma_f32_32x32x16_bf16 v[72:' in l: return False
            return True
        k.lines[i0:] = [l for l in body if keep(l)]
    k(f"""
    s_mov_b32 s34, s30
    s_mov_b32 s30, s31
    s_mov_b32 s31, s32
    s_mov_b32 s32, s34
    v_mov_b32 v2, v3
    v_add_u32 v3, s31, v5
    s_add_u32 s33, s33, 1
    s_cmp_lt_u32 s33, 8
    s_cbranch_scc1 attn_loop
    s_waitcnt lgkmcnt(0)
    s_nop 15
    """)
    stamp(k, 2, flag='astamp')
    k(f"v_mul_f32 v1, 0, v{O}")
    for i in range(1, 16):
        k(f"v_fmac_f32 v1, 0, v{O+i}")
    k(f"""
    v_add_f32 v1, v1, v{Lr}
    s_mov_b32 s34, {0 if 'forcesafe' in FLAGS else 0x4e800000}          ; 2^30
    v_cmp_nlt_f32 vcc, v1, s34
    s_nop 1
    s_cmp_lg_u64 vcc, 0
    {';' if 'a_nosafe' in FLAGS else ''}s_cbranch_scc1 attn_safe
    """)
    k.label("attn_fin")
    k(f"""
    v_rcp_f32 v1, v{Lr}
    s_lshl_b32 s25, s24, 5
    s_add_u32 s25, s25, s16
    s_lshl_b32 s25, s25, 11
    s_add_u32 s25, s25, {WS_O}
    """)
    for i in range(16):
        k(f"v_mul_f32 v{O+i}, v{O+i}, v1")
    for e in range(8):
        k(f"v_cvt_pk_bf16_f32 v{P+e}, v{O+2*e}, v{O+2*e+1}")
    k(f"""
    buffer_store_dwordx4 v[{P}:{P+3}], v5, s[12:15], s25 offen
    buffer_store_dwordx4 v[{P+4}:{P+7}], v5, s[12:15], s25 offen offset:1024
    """)
    if 'astamp' in FLAGS:
        k("s_waitcnt vmcnt(0)")
        stamp(k, 3, flag='astamp')
        stamp_store(k, 4, 12, 2, 18, flag='astamp')
    k("s_endpgm")
    k.label("attn_safe")
    M = 2; AL = 3
    k(f"""
    s_add_u32 s26, s23, {WS_K}
    s_add_u32 s27, s23, {WS_V}
    s_mov_b32 s33, 0
    v_mov_b32 v{M}, 0xff7fffff
    """)
    for i in range(16):
        k(f"v_mov_b32 v{O+i}, 0")
    for i in range(4):
        k(f"v_mov_b32 v{Lr+i}, 0")
    k.label("attn_safe_loop")
    k(f"""
    buffer_load_dwordx4 v[{KB[0]}:{KB[0]+3}], v5, s[12:15], s26 offen
    buffer_load_dwordx4 v[{KB[0]+4}:{KB[0]+7}], v5, s[12:15], s26 offen offset:1024
    buffer_load_dwordx4 v[{VB[0]}:{VB[0]+3}], v5, s[12:15], s27 offen
    buffer_load_dwordx4 v[{VB[0]+4}:{VB[0]+7}], v5, s[12:15], s27 offen offset:1024
    s_add_u32 s26, s26, 2048
    s_add_u32 s27, s27, 2048
    s_waitcnt vmcnt(0)
    v_mfma_f32_32x32x16_bf16 v[{SA}:{SA+15}], v[{KB[0]}:{KB[0]+3}], v[{Q}:{Q+3}], 0
    v_mfma_f32_32x32x16_bf16 v[{SA}:{SA+15}], v[{KB[0]+4}:{KB[0]+7}], v[{Q+4}:{Q+7}], v[{SA}:{SA+15}]
    s_nop 15
    s_nop 3
    """)
    tile_max(SA, 1, 7)
    k(f"""
    v_max_f32 v1, v1, v{M}
    v_sub_f32 v{AL}, v{M}, v1
    v_exp_f32 v{AL}, v{AL}
    v_mov_b32 v{M}, v1
    """)
    for i in range(16):
        k(f"v_sub_f32 v{SA+i}, v{SA+i}, v1")
    for i in range(16):
        k(f"v_exp_f32 v{SA+i}, v{SA+i}")
    for i in range(16):
        k(f"v_mul_f32 v{O+i}, v{O+i}, v{AL}")
    for i in range(4):
        k(f"v_mul_f32 v{Lr+i}, v{Lr+i}, v{AL}")
    for e in range(8):
        k(f"v_cvt_pk_bf16_f32 v{P+e}, v{SA+2*e}, v{SA+2*e+1}")
    k(f"""
    s_nop 1
    v_mfma_f32_32x32x16_bf16 v[{O}:{O+15}], v[{VB[0]}:{VB[0]+3}], v[{P}:{P+3}], v[{O}:{O+15}]
    v_mfma_f32_16x16x32_bf16 v[{Lr}:{Lr+3}], v[{ONES}:{ONES+3}], v[{P}:{P+3}], v[{Lr}:{Lr+3}]
    v_mfma_f32_32x32x16_bf16 v[{O}:{O+15}], v[{VB[0]+4}:{VB[0]+7}], v[{P+4}:{P+7}], v[{O}:{O+15}]
    v_mfma_f32_16x16x32_bf16 v[{Lr}:{Lr+3}], v[{ONES}:{ONES+3}], v[{P+4}:{P+7}], v[{Lr}:{Lr+3}]
    s_nop 15
    s_nop 3
    s_add_u32 s33, s33, 1
    s_cmp_lt_u32 s33, 64
    s_cbranch_scc1 attn_safe_loop
    s_branch attn_fin
    """)
    k.label("attn_kernel_end")
    k("s_endpgm")
    finish(k, (256,1,1), (512,1,1), 3*SLOT, 256 if 'astamp' in FLAGS else 144, 102 if 'astamp' in FLAGS else 72)

def gen_wo():
    k = K("wo_kernel")
    NST, R = 16, 6
    SLOT = 24576
    WOFF = 8192
    k(f"""
    s_cmp_ge_u32 s2, 256
    s_cbranch_scc1 wo_kernel_end
    s_load_dwordx2 s[4:5], s[0:1], {KA_WO}
    s_load_dwordx2 s[6:7], s[0:1], {KA_WS}
    s_load_dwordx2 s[36:37], s[0:1], {KA_X}
    s_load_dwordx2 s[38:39], s[0:1], {KA_WR}
    v_lshrrev_b32 v1, 6, v0
    v_and_b32 v2, 63, v0               ; lane
    s_and_b32 s20, s2, 7               ; x
    s_lshr_b32 s21, s2, 3              ; j
    v_readfirstlane_b32 s18, v1
    s_lshr_b32 s16, s20, 1
    s_lshl_b32 s16, s16, 3
    s_and_b32 s22, s21, 7
    s_add_u32 s16, s16, s22            ; bm (0..31)
    s_and_b32 s17, s20, 1
    s_lshl_b32 s17, s17, 2
    s_lshr_b32 s22, s21, 3
    s_add_u32 s17, s17, s22            ; bn (0..7)
    s_waitcnt lgkmcnt(0)
    """)
    srd(k, 8, 4, 1024*1024*2)
    srd(k, 12, 6, WS_SIZE)
    k(f"""
    s_cmp_ge_u32 s18, 4
    s_cbranch_scc1 wo_producer
    """)
    srd(k, 40, 36, 2048*1024*2)
    srd(k, 44, 38, 2048)
    XR, GA, CB, WR = 128, 144, 152, 160
    k(f"""
    v_and_b32 v3, 31, v2               ; tok
    v_lshrrev_b32 v4, 5, v2            ; hh
    v_lshlrev_b32 v5, 11, v3
    v_lshl_add_u32 v5, v4, 3, v5
    s_lshl_b32 s24, s16, 17            ; bm*64*2048
    s_lshl_b32 s25, s17, 8             ; bn*256
    s_lshl_b32 s26, s18, 6             ; w*64
    s_add_u32 s25, s25, s26
    s_add_u32 s26, s24, s25
    s_add_u32 s27, s26, 65536          ; tt=1
    v_lshlrev_b32 v6, 3, v4            ; hh*8
    s_add_u32 s28, s25, {WS_MOD + 2*2048}   ; ga
    s_add_u32 s29, s25, {WS_MOD + 4*2048}   ; cb
    """)
    for tt in range(2):
        for q in range(4):
            r = XR + 8*tt + 2*q
            k(f"buffer_load_dwordx2 v[{r}:{r+1}], v5, s[40:43], s{26+tt} offen offset:{16*q}")
    for q in range(4):
        k(f"buffer_load_dwordx2 v[{GA+2*q}:{GA+2*q+1}], v6, s[12:15], s28 offen offset:{16*q}")
        k(f"buffer_load_dwordx2 v[{CB+2*q}:{CB+2*q+1}], v6, s[12:15], s29 offen offset:{16*q}")
        k(f"buffer_load_dwordx2 v[{WR+2*q}:{WR+2*q+1}], v6, s[44:47], s25 offen offset:{16*q}")
    k(f"""
    v_lshlrev_b32 v8, 4, v2
    v_add_u32 v9, {2*SLOT}, v8
    v_add_u32 v10, {4*SLOT}, v8
    v_lshrrev_b32 v7, 2, v2
    v_and_b32 v7, 3, v7                ; r
    v_lshl_add_u32 v11, v4, 2, v7      ; 4hh + r
    v_lshlrev_b32 v11, 8, v11          ; *256
    v_xor_b32 v7, s18, v7              ; w ^ r
    v_lshl_add_u32 v11, v7, 6, v11
    v_lshrrev_b32 v7, 4, v2
    v_and_b32 v7, 1, v7                ; ng
    v_lshl_add_u32 v11, v7, 5, v11
    v_and_b32 v7, 3, v2
    v_lshl_add_u32 v11, v7, 3, v11
    v_add_u32 v11, {WOFF}, v11
    v_add_u32 v12, {2*SLOT}, v11
    v_add_u32 v13, {4*SLOT}, v11
    """)
    ACC = 16
    SETS = [48, 96 - 0]
    SETS = [48, 176]
    for i in range(32):
        k(f"v_mov_b32 v{ACC+i}, 0")
    def reads(st, s):
        S = SETS[st]; slot = s % R
        r = []
        for ks in range(4):
            b = S + 12*ks
            base = (slot & 1)*SLOT
            r.append(f"ds_read_b64_tr_b16 v[{b+8}:{b+9}], v{11+(slot>>1)} offset:{base + ks*4096}")
            r.append(f"ds_read_b64_tr_b16 v[{b+10}:{b+11}], v{11+(slot>>1)} offset:{base + ks*4096 + 2048}")
            r.append(f"ds_read_b128 v[{b}:{b+3}], v{8+(slot>>1)} offset:{base + ks*1024}")
            r.append(f"ds_read_b128 v[{b+4}:{b+7}], v{8+(slot>>1)} offset:{base + 4096 + ks*1024}")
        return r
    def mfmas(st):
        S = SETS[st]; r = []
        for ks in range(4):
            b = S + 12*ks
            for tt in range(2):
                a = ACC + 16*tt
                r.append(f"v_mfma_f32_32x32x16_bf16 v[{a}:{a+15}], v[{b+8}:{b+11}], v[{b+4*tt}:{b+4*tt+3}], v[{a}:{a+15}]")
        return r
    k("s_barrier")
    for r in reads(0, 0):
        k(r)
    for s in range(NST):
        m = mfmas(s & 1)
        k("s_waitcnt lgkmcnt(0)")
        k(m[0])
        if s + 1 < NST:
            k("s_barrier")
            rd = reads((s + 1) & 1, s + 1)
        else:
            rd = []
        for i in range(1, 8):
            for r in rd[(i-1)*3:(i-1)*3+3]:
                k(r)
            k(m[i])
    U = 48; G = 64; T = 80; ST = 84
    k("s_waitcnt vmcnt(0)")
    for j in range(8):
        unpack_bf16(k, GA+j, G+2*j)
        unpack_bf16(k, CB+j, U+2*j)
        k(f"v_add_f32 v{U+2*j}, 1.0, v{U+2*j}")
        k(f"v_add_f32 v{U+2*j+1}, 1.0, v{U+2*j+1}")
        round_bf16_pair(k, U+2*j, U+2*j+1, T)
        unpack_bf16(k, WR+j, T)
        k(f"v_mul_f32 v{U+2*j}, v{U+2*j}, v{T}")
        k(f"v_mul_f32 v{U+2*j+1}, v{U+2*j+1}, v{T+1}")
    k(f"""
    v_lshlrev_b32 v5, 11, v3
    v_lshl_add_u32 v5, v4, 4, v5
    s_add_u32 s26, s26, {WS_X1}
    s_add_u32 s27, s27, {WS_X1}
    """)
    for tt in range(2):
        a = ACC + 16*tt
        s1, s2_, s3 = ST + 3*tt, ST + 3*tt + 1, ST + 3*tt + 2
        for j in range(8):
            x0, x1 = a + 2*j, a + 2*j + 1
            round_bf16_pair(k, x0, x1, T)
            k(f"v_mul_f32 v{x0}, v{x0}, v{G+2*j}")
            k(f"v_mul_f32 v{x1}, v{x1}, v{G+2*j+1}")
            round_bf16_pair(k, x0, x1, T)
            unpack_bf16(k, XR + 8*tt + j, T)
            k(f"v_add_f32 v{x0}, v{x0}, v{T}")
            k(f"v_add_f32 v{x1}, v{x1}, v{T+1}")
            d = XR + 8*tt + j
            k(f"v_cvt_pk_bf16_f32 v{d}, v{x0}, v{x1}")
            k(f"v_lshlrev_b32 v{x0}, 16, v{d}")
            k(f"v_and_b32 v{x1}, 0xffff0000, v{d}")
            if j == 0:
                k(f"v_add_f32 v{s1}, v{x0}, v{x1}")
                k(f"v_mul_f32 v{s2_}, v{x0}, v{x0}")
                k(f"v_mul_f32 v{s3}, v{x0}, v{U+2*j}")
            else:
                k(f"v_add_f32 v{s1}, v{s1}, v{x0}")
                k(f"v_add_f32 v{s1}, v{s1}, v{x1}")
                k(f"v_fmac_f32 v{s2_}, v{x0}, v{x0}")
                k(f"v_fmac_f32 v{s3}, v{x0}, v{U+2*j}")
            k(f"v_fmac_f32 v{s2_}, v{x1}, v{x1}")
            k(f"v_fmac_f32 v{s3}, v{x1}, v{U+2*j+1}")
        for q in (0, 2):
            d = XR + 8*tt + 2*q
            k("s_nop 1")
            k(f"v_permlane32_swap_b32 v{d}, v{d+2}")
            k(f"v_permlane32_swap_b32 v{d+1}, v{d+3}")
            k(f"buffer_store_dwordx4 v[{d}:{d+3}], v5, s[12:15], s{26+tt} offen offset:{16*q}")
    k(f"""
    v_lshlrev_b32 v5, 2, v2            ; lane*4
    s_lshl_b32 s26, s16, 8
    s_add_u32 s26, s26, {WS_STAT}
    s_add_u32 s27, s26, 8192
    s_add_u32 s28, s26, 16384
    s_nop 1
    """)
    for i in range(3):
        k(f"v_permlane32_swap_b32 v{ST+i}, v{ST+3+i}")
    k("s_nop 0")
    for i in range(3):
        k(f"v_add_f32 v{ST+i}, v{ST+i}, v{ST+3+i}")
    for i in range(3):
        k(f"buffer_atomic_add_f32 v{ST+i}, v5, s[12:15], s{26+i} offen")
    k("s_endpgm")
    k.label("wo_producer")
    k(f"""
    s_sub_u32 s19, s18, 4              ; w
    v_lshlrev_b32 v8, 4, v2            ; o: lane*16
    v_lshrrev_b32 v3, 4, v2
    s_lshl_b32 s23, s19, 2
    v_add_u32 v4, s23, v3              ; 4w + row
    v_lshlrev_b32 v9, 11, v4
    v_lshrrev_b32 v5, 2, v2
    v_xor_b32 v5, v5, v3
    v_and_b32 v5, 3, v5
    v_lshl_add_u32 v9, v5, 6, v9
    v_and_b32 v5, 3, v2
    v_lshl_add_u32 v9, v5, 4, v9       ; vW
    s_lshl_b32 s25, s16, 1
    s_lshr_b32 s24, s19, 1
    s_add_u32 s25, s25, s24            ; T = 2bm + (w>>1)
    s_lshl_b32 s25, s25, 16
    s_and_b32 s24, s19, 1
    s_lshl_b32 s24, s24, 11
    s_add_u32 s25, s25, s24
    s_add_u32 s25, s25, {WS_O}
    s_lshl_b32 s26, s17, 8
    s_lshl_b32 s27, s19, 11
    s_lshl_b32 s29, s19, 10
    """)
    def issue(s):
        slot = s % R
        k(f"s_add_u32 m0, s27, {slot*SLOT}")
        k(f"s_add_u32 s28, s25, {s*4096}")
        k(f"buffer_load_dwordx4 v8, s[12:15], s28 offen lds")
        k(f"buffer_load_dwordx4 v8, s[12:15], s28 offen offset:1024 lds")
        for i in range(4):
            k(f"s_add_u32 m0, s29, {slot*SLOT + WOFF + i*4096}")
            k(f"s_add_u32 s28, s26, {(s*64 + i*16)*2048}")
            k(f"buffer_load_dwordx4 v9, s[8:11], s28 offen lds")
    for s in range(R):
        issue(s)
    issued = R
    for b in range(NST):
        k(f"s_waitcnt vmcnt({6*(issued - b - 1)})")
        k("s_barrier")
        if b >= 1 and b - 1 + R < NST:
            issue(b - 1 + R)
            issued += 1
    k.label("wo_kernel_end")
    k("s_endpgm")
    finish(k, (256,1,1), (512,1,1), R*SLOT, 224, 48)

def wave_red_u32max(k, v, t):
    k(f"""
    s_nop 1
    v_max_u32_dpp v{t}, v{v}, v{v} quad_perm:[1,0,3,2] row_mask:0xf bank_mask:0xf
    s_nop 1
    v_max_u32_dpp v{v}, v{t}, v{t} quad_perm:[2,3,0,1] row_mask:0xf bank_mask:0xf
    s_nop 1
    v_max_u32_dpp v{t}, v{v}, v{v} row_half_mirror row_mask:0xf bank_mask:0xf
    s_nop 1
    v_max_u32_dpp v{v}, v{t}, v{t} row_mirror row_mask:0xf bank_mask:0xf
    s_nop 0
    v_mov_b32 v{t}, v{v}
    s_nop 1
    v_permlane16_swap_b32 v{v}, v{t}
    s_nop 0
    v_max_u32 v{v}, v{v}, v{t}
    v_mov_b32 v{t}, v{v}
    s_nop 1
    v_permlane32_swap_b32 v{v}, v{t}
    s_nop 0
    v_max_u32 v{v}, v{v}, v{t}
    """)

def round_bf16(k, a):
    k(f"v_cvt_pk_bf16_f32 v{a}, v{a}, v{a}")
    k(f"v_lshlrev_b32 v{a}, 16, v{a}")

NGEMV = 224
def gen_moe():
    k = K("moe_kernel")
    k(f"""
    s_cmp_ge_u32 s2, {NGEMV + 256}
    s_cbranch_scc1 moe_kernel_end
    s_load_dwordx2 s[6:7], s[0:1], {KA_WS}
    s_load_dwordx2 s[36:37], s[0:1], {KA_WG}
    s_load_dwordx2 s[38:39], s[0:1], {KA_WU}
    s_load_dwordx2 s[40:41], s[0:1], {KA_WD}
    s_load_dwordx2 s[42:43], s[0:1], {KA_WR}
    s_load_dwordx2 s[44:45], s[0:1], {KA_OUT}
    v_lshrrev_b32 v1, 6, v0
    v_and_b32 v2, 63, v0               ; lane
    s_nop 0
    v_readfirstlane_b32 s18, v1
    v_lshlrev_b32 v4, 4, v2            ; lane*16
    s_waitcnt lgkmcnt(0)
    """)
    srd(k, 12, 6, WS_SIZE)
    k(f"""
    s_cmp_ge_u32 s2, {NGEMV}
    s_cbranch_scc1 {'moe_kernel_end' if 'noln2' in FLAGS else 'moe_ln2'}
    """)
    if 'nogemv' in FLAGS: k("s_endpgm")
    stamp(k, 0, 72, 'mstamp')
    srd(k, 48, 36, 1024*3584*2)
    srd(k, 52, 38, 1024*3584*2)
    srd(k, 56, 40, 3584*1024*2)
    srd(k, 60, 42, 2048)
    GW, UW, DW, STT = 64, 80, 96, 112
    k(f"""
    s_and_b32 s69, s2, 7
    s_mul_i32 s69, s69, 28
    s_lshr_b32 s24, s2, 3
    s_add_u32 s69, s69, s24
    v_lshlrev_b32 v5, 4, v0            ; t*16
    s_mov_b32 s20, {WS_STAT}
    s_mov_b32 s21, {WS_STAT + 8192}
    s_mov_b32 s22, {WS_STAT + 16384}
    buffer_load_dwordx4 v[{STT}:{STT+3}], v5, s[12:15], s20 offen
    buffer_load_dwordx4 v[{STT+4}:{STT+7}], v5, s[12:15], s21 offen
    buffer_load_dwordx4 v[{STT+8}:{STT+11}], v5, s[12:15], s22 offen
    v_lshlrev_b32 v6, 2, v0            ; t*4
    s_mov_b32 s23, {WS_MOD + 4*2048}
    buffer_load_dword v8, v6, s[12:15], s23 offen
    buffer_load_dword v9, v6, s[60:63], 0 offen       ; w_r pair
    v_lshlrev_b32 v7, 4, v0
    s_lshl_b32 s24, s69, 15            ; cg*32768
    s_add_u32 s24, s24, {WS_G}
    s_add_u32 s25, s24, 0x800000
    s_add_u32 s26, s24, 16384
    s_add_u32 s27, s25, 16384
    """)
    for i in range(4):
        k(f"buffer_load_dwordx4 v[{GW+4*i}:{GW+4*i+3}], v7, s[12:15], s{24+2*(i>>1)} offen{' offset:%d' % 0 if False else ''}" if not (i & 1) else f"buffer_load_dwordx4 v[{GW+4*i}:{GW+4*i+3}], v10, s[12:15], s{24+2*(i>>1)} offen")
        k(f"buffer_load_dwordx4 v[{UW+4*i}:{UW+4*i+3}], v7, s[12:15], s{25+2*(i>>1)} offen" if not (i & 1) else f"buffer_load_dwordx4 v[{UW+4*i}:{UW+4*i+3}], v10, s[12:15], s{25+2*(i>>1)} offen")
        if i == 0: k("v_add_u32 v10, 8192, v7")
    k(f"""
    v_lshrrev_b32 v10, 7, v0           ; fq
    v_and_b32 v11, 127, v0             ; dg
    v_lshlrev_b32 v11, 4, v11
    v_lshl_add_u32 v124, v10, 13, v11
    s_lshl_b32 s28, s69, 15            ; cg*32768
    s_add_u32 s29, s28, 4096
    s_mov_b32 s19, {WS_MOD + 3*2048}
    buffer_load_dwordx4 v[40:43], v4, s[12:15], s19 offen
    buffer_load_dwordx4 v[44:47], v4, s[12:15], s19 offen offset:1024
    buffer_load_dwordx4 v[48:51], v4, s[12:15], s23 offen
    buffer_load_dwordx4 v[52:55], v4, s[12:15], s23 offen offset:1024
    buffer_load_dwordx4 v[56:59], v4, s[60:63], 0 offen
    buffer_load_dwordx4 v[60:63], v4, s[60:63], 0 offen offset:1024
    s_waitcnt vmcnt(14)
    """)
    stamp(k, 1, 72, 'mstamp')
    unpack_bf16(k, 8, 12)
    k("v_add_f32 v12, 1.0, v12")
    k("v_add_f32 v13, 1.0, v13")
    round_bf16_pair(k, 12, 13, 14)
    unpack_bf16(k, 9, 14)
    k("v_mul_f32 v12, v12, v14")
    k("v_fmac_f32 v12, v13, v15")
    wave_sum(k, 12, 13)
    k(f"""
    s_lshl_b32 s30, s18, 2
    v_mov_b32 v13, s30
    ds_write_b32 v13, v12 offset:0
    s_waitcnt lgkmcnt(0)
    s_barrier
    v_mov_b32 v13, 0
    ds_read_b128 v[16:19], v13 offset:0
    ds_read_b128 v[20:23], v13 offset:16
    s_waitcnt lgkmcnt(0)
    v_add_f32 v12, v16, v17
    v_add_f32 v12, v12, v18
    v_add_f32 v12, v12, v19
    v_add_f32 v12, v12, v20
    v_add_f32 v12, v12, v21
    v_add_f32 v12, v12, v22
    v_add_f32 v12, v12, v23            ; U
    v_lshlrev_b32 v24, 2, v0           ; token0 = 4t
    v_sub_u32 v24, 2047, v24           ; 2047 - token0
    v_mov_b32 v25, 0
    """)
    for i in range(4):
        S1, S2, S3 = STT + i, STT + 4 + i, STT + 8 + i
        k(f"""
        v_mul_f32 v16, 0x3a800000, v{S1}        ; mean
        v_mul_f32 v17, 0x3a800000, v{S2}
        v_fma_f32 v17, -v16, v16, v17           ; var
        v_max_f32 v17, 0, v17
        """)
        round_bf16_pair(k, 16, 17, 18)
        k("v_add_f32 v17, 0x3727c5ac, v17")
        round_bf16(k, 17)
        k("v_sqrt_f32 v17, v17")
        k("s_nop 0")
        round_bf16(k, 17)
        k(f"""
        v_rcp_f32 v17, v17
        v_fma_f32 v18, -v16, v12, v{S3}
        s_nop 0
        v_mul_f32 v18, v18, v17
        v_ashrrev_i32 v19, 31, v18
        v_or_b32 v19, 0x80000000, v19
        v_xor_b32 v18, v18, v19                 ; monotonic u32
        v_and_b32 v18, 0xfffff800, v18
        v_subrev_u32 v19, {i}, v24              ; 2047 - token
        v_or_b32 v18, v18, v19
        v_max_u32 v25, v25, v18
        """)
    wave_red_u32max(k, 25, 26)
    k(f"""
    v_mov_b32 v13, s30
    ds_write_b32 v13, v25 offset:64
    s_waitcnt lgkmcnt(0)
    s_barrier
    v_mov_b32 v13, 0
    ds_read_b128 v[16:19], v13 offset:64
    ds_read_b128 v[20:23], v13 offset:80
    s_waitcnt lgkmcnt(0)
    v_max3_u32 v25, v16, v17, v18
    v_max3_u32 v25, v25, v19, v20
    v_max3_u32 v25, v25, v21, v22
    v_max_u32 v25, v25, v23
    v_and_b32 v25, 0x7ff, v25
    v_sub_u32 v25, 2047, v25           ; sel
    s_nop 0
    v_readfirstlane_b32 s68, v25
    v_lshl_add_u32 v3, v25, 11, v4
    s_mov_b32 s31, {WS_X1}
    s_cmp_lg_u32 s18, 0
    s_cbranch_scc1 moe_norow
    buffer_load_dwordx4 v[8:11], v3, s[12:15], s31 offen
    buffer_load_dwordx4 v[12:15], v3, s[12:15], s31 offen offset:1024
moe_norow:
    buffer_load_dwordx4 v[{DW}:{DW+3}], v124, s[56:59], s28 offen
    buffer_load_dwordx4 v[{DW+4}:{DW+7}], v124, s[56:59], s28 offen offset:2048
    buffer_load_dwordx4 v[{DW+8}:{DW+11}], v124, s[56:59], s29 offen
    buffer_load_dwordx4 v[{DW+12}:{DW+15}], v124, s[56:59], s29 offen offset:2048
    s_cbranch_scc1 moe_wait_h2
    s_waitcnt vmcnt(4)
    """)
    for j in range(8):
        unpack_bf16(k, 8+j, 16+2*j)
    ln_core(k, 16, 32)
    modulate(k, 16, 48, 40, 32)
    for j in range(0, 16, 2):
        round_bf16_pair(k, 16+j, 17+j, 32)
    k(f"""
    v_lshlrev_b32 v33, 5, v2
    ds_write_b128 v33, v[16:19] offset:1024
    ds_write_b128 v33, v[20:23] offset:1040
    ds_write_b128 v33, v[24:27] offset:{1024+2048}
    ds_write_b128 v33, v[28:31] offset:{1040+2048}
    s_cmp_lg_u32 s2, 0
    s_cbranch_scc1 moe_wait_h2
    """)
    for j in range(8):
        unpack_bf16(k, 56+j, 34)
        if j == 0:
            k(f"v_mul_f32 v32, v16, v34")
        else:
            k(f"v_fmac_f32 v32, v{16+2*j}, v34")
        k(f"v_fmac_f32 v32, v{17+2*j}, v35")
    wave_sum(k, 32, 33)
    round_bf16(k, 32)
    k(f"""
    v_mul_f32 v33, 0xbfb8aa3b, v32
    v_exp_f32 v33, v33
    s_nop 0
    v_add_f32 v33, 1.0, v33
    v_rcp_f32 v33, v33
    s_nop 0
    """)
    round_bf16(k, 33)
    k(f"""
    v_mov_b32 v32, s68
    v_mov_b32 v34, 0
    s_mov_b32 s31, {WS_SEL}
    buffer_store_dwordx2 v[32:33], v34, s[12:15], s31 offen
    buffer_store_dwordx4 v[8:11], v4, s[12:15], s31 offen offset:2048
    buffer_store_dwordx4 v[12:15], v4, s[12:15], s31 offen offset:3072
    """)
    for j in range(8):
        k(f"v_cvt_pk_bf16_f32 v{40+j}, v{16+2*j}, v{17+2*j}")
    k(f"""
    s_add_u32 s31, s31, 4096
    buffer_store_dwordx4 v[40:43], v4, s[12:15], s31 offen
    buffer_store_dwordx4 v[44:47], v4, s[12:15], s31 offen offset:1024
    """)
    k.label("moe_wait_h2")
    stamp(k, 2, 72, 'mstamp')
    k(f"""
    s_waitcnt lgkmcnt(0)
    s_barrier
    """)
    stamp(k, 3, 72, 'mstamp')
    k(f"""
    v_lshrrev_b32 v13, 1, v0
    v_lshlrev_b32 v13, 2, v13          ; kr*4
    ds_read_b32 v8, v13 offset:1024
    ds_read_b32 v9, v13 offset:2048
    ds_read_b32 v10, v13 offset:3072
    ds_read_b32 v11, v13 offset:4096
    s_waitcnt vmcnt(4) lgkmcnt(0)
    """)
    stamp(k, 4, 72, 'mstamp')
    AC = 16
    for mi, W in enumerate((GW, UW)):
        for i in range(4):
            for j in range(4):
                unpack_bf16(k, W + 4*i + j, 12)
                a = AC + 8*mi + 2*j
                if i == 0:
                    k(f"v_mul_f32 v{a}, v{8+i}, v12")
                    k(f"v_mul_f32 v{a+1}, v{8+i}, v13")
                else:
                    k(f"v_fmac_f32 v{a}, v{8+i}, v12")
                    k(f"v_fmac_f32 v{a+1}, v{8+i}, v13")
    TM = 32
    k("s_nop 1")
    for j in range(16):
        k(f"v_add_f32_dpp v{TM+j}, v{AC+j}, v{AC+j} quad_perm:[2,3,0,1] row_mask:0xf bank_mask:0xf")
    for j in range(16):
        k(f"v_add_f32_dpp v{AC+j}, v{TM+j}, v{TM+j} row_ror:4 row_mask:0xf bank_mask:0xf")
    for j in range(16):
        k(f"v_add_f32_dpp v{TM+j}, v{AC+j}, v{AC+j} row_ror:8 row_mask:0xf bank_mask:0xf")
    for j in range(16):
        k(f"v_mov_b32 v{AC+j}, v{TM+j}")
    k("s_nop 1")
    for j in range(16):
        k(f"v_permlane16_swap_b32 v{AC+j}, v{TM+j}")
    for j in range(16):
        k(f"v_add_f32 v{AC+j}, v{AC+j}, v{TM+j}")
    for j in range(16):
        k(f"v_mov_b32 v{TM+j}, v{AC+j}")
    k("s_nop 1")
    for j in range(16):
        k(f"v_permlane32_swap_b32 v{AC+j}, v{TM+j}")
    for j in range(16):
        k(f"v_add_f32 v{AC+j}, v{AC+j}, v{TM+j}")
    k(f"""
    s_lshl_b32 s30, s18, 7
    v_lshlrev_b32 v13, 5, v2
    v_add_u32 v13, s30, v13
    v_cmp_gt_u32 vcc, 2, v2
    s_and_saveexec_b64 s[32:33], vcc
    ds_write_b128 v13, v[16:19] offset:6144
    ds_write_b128 v13, v[20:23] offset:6160
    ds_write_b128 v13, v[24:27] offset:{6144+64}
    ds_write_b128 v13, v[28:31] offset:{6160+64}
    s_mov_b64 exec, s[32:33]
    s_waitcnt lgkmcnt(0)
    s_barrier
    v_and_b32 v13, 31, v2
    v_lshlrev_b32 v13, 2, v13
    """)
    for w in range(8):
        k(f"ds_read_b32 v{16+w}, v13 offset:{6144 + 128*w}")
    k("s_waitcnt lgkmcnt(0)")
    for w in range(1, 8):
        k(f"v_add_f32 v16, v16, v{16+w}")
    round_bf16(k, 16)
    k(f"""
    v_mul_f32 v17, 0xbfb8aa3b, v16
    v_exp_f32 v17, v17
    s_nop 0
    v_add_f32 v17, 1.0, v17
    v_rcp_f32 v17, v17
    s_nop 0
    v_mul_f32 v17, v16, v17
    """)
    round_bf16(k, 17)
    k(f"""
    v_mov_b32 v18, v16
    s_nop 1
    v_permlane16_swap_b32 v16, v18
    s_nop 0
    v_mul_f32 v17, v17, v18
    """)
    round_bf16(k, 17)
    k(f"""
    s_lshr_b32 s30, s18, 1
    s_lshl_b32 s30, s30, 2
    s_add_u32 s31, s30, 1
    s_add_u32 s34, s30, 2
    s_add_u32 s35, s30, 3
    s_nop 0
    v_readlane_b32 s64, v17, s30
    v_readlane_b32 s65, v17, s31
    v_readlane_b32 s66, v17, s34
    v_readlane_b32 s67, v17, s35
    s_waitcnt vmcnt(0)
    """)
    for i in range(4):
        for j in range(4):
            unpack_bf16(k, DW + 4*i + j, 12)
            a = AC + 2*j
            if i == 0:
                k(f"v_mul_f32 v{a}, s{64+i}, v12")
                k(f"v_mul_f32 v{a+1}, s{64+i}, v13")
            else:
                k(f"v_fmac_f32 v{a}, s{64+i}, v12")
                k(f"v_fmac_f32 v{a+1}, s{64+i}, v13")
    k(f"""
    v_lshlrev_b32 v13, 5, v0
    ds_write_b128 v13, v[16:19] offset:8192
    ds_write_b128 v13, v[20:23] offset:8208
    s_waitcnt lgkmcnt(0)
    s_barrier
    v_lshlrev_b32 v13, 3, v0           ; t*8
    ds_read_b64 v[16:17], v13 offset:8192
    ds_read_b64 v[18:19], v13 offset:{8192+4096}
    ds_read_b64 v[20:21], v13 offset:{8192+8192}
    ds_read_b64 v[22:23], v13 offset:{8192+12288}
    s_lshl_b32 s30, s2, 12
    s_add_u32 s30, s30, {WS_Y}
    s_waitcnt lgkmcnt(0)
    v_add_f32 v16, v16, v18
    v_add_f32 v17, v17, v19
    v_add_f32 v20, v20, v22
    v_add_f32 v21, v21, v23
    v_add_f32 v16, v16, v20
    v_add_f32 v17, v17, v21
    buffer_store_dwordx2 v[16:17], v13, s[12:15], s30 offen
    """)
    stamp(k, 5, 72, 'mstamp')
    if 'mstamp' in FLAGS:
        k("s_waitcnt vmcnt(0)")
        stamp(k, 6, 72, 'mstamp')
        stamp_store(k, 7, 12, 2, 18, 72, 120, 'mstamp')
    k("s_endpgm")
    k.label("moe_ln2")
    srd(k, 48, 44, 2048*1024*2)
    k(f"""
    s_sub_u32 s20, s2, {NGEMV}
    s_lshl_b32 s20, s20, 3
    s_add_u32 s20, s20, s18            ; row
    s_lshl_b32 s20, s20, 11
    s_add_u32 s21, s20, {WS_X1}
    s_mov_b32 s23, {WS_MOD + 4*2048}
    buffer_load_dwordx4 v[8:11], v4, s[12:15], s21 offen
    buffer_load_dwordx4 v[12:15], v4, s[12:15], s21 offen offset:1024
    s_mov_b32 s19, {WS_MOD + 3*2048}
    buffer_load_dwordx4 v[40:43], v4, s[12:15], s19 offen
    buffer_load_dwordx4 v[44:47], v4, s[12:15], s19 offen offset:1024
    buffer_load_dwordx4 v[48:51], v4, s[12:15], s23 offen
    buffer_load_dwordx4 v[52:55], v4, s[12:15], s23 offen offset:1024
    buffer_load_dwordx4 v[56:59], v4, s[12:15], s23 offen offset:2048
    buffer_load_dwordx4 v[60:63], v4, s[12:15], s23 offen offset:3072
    s_waitcnt vmcnt(6)
    """)
    for j in range(8):
        unpack_bf16(k, 8+j, 16+2*j)
    ln_core(k, 16, 32)
    k("s_waitcnt vmcnt(0)")
    modulate(k, 16, 48, 40, 32)
    for j in range(8):
        a, b = 16+2*j, 17+2*j
        round_bf16_pair(k, a, b, 32)
        unpack_bf16(k, 56+j, 32)
        k(f"v_mul_f32 v{a}, v{a}, v32")
        k(f"v_mul_f32 v{b}, v{b}, v33")
        round_bf16_pair(k, a, b, 32)
        unpack_bf16(k, 8+j, 32)
        k(f"v_add_f32 v{a}, v{a}, v32")
        k(f"v_add_f32 v{b}, v{b}, v33")
        k(f"v_cvt_pk_bf16_f32 v{8+j}, v{a}, v{b}")
    k(f"""
    buffer_store_dwordx4 v[8:11], v4, s[48:51], s20 offen
    buffer_store_dwordx4 v[12:15], v4, s[48:51], s20 offen offset:1024
    """)
    k.label("moe_kernel_end")
    k("s_endpgm")
    finish(k, (NGEMV + 256,1,1), (512,1,1), 8192 + 16384, 128, 102 if 'mstamp' in FLAGS else 72)

def gen_fin():
    k = K("fin_kernel")
    k(f"""
    s_cmp_ge_u32 s2, 32
    s_cbranch_scc1 fin_kernel_end
    s_load_dwordx2 s[6:7], s[0:1], {KA_WS}
    s_load_dwordx2 s[44:45], s[0:1], {KA_OUT}
    v_and_b32 v1, 31, v0               ; col
    v_lshrrev_b32 v2, 5, v0            ; pg
    v_lshlrev_b32 v3, 2, v1
    v_lshl_add_u32 v3, v2, 12, v3
    s_lshl_b32 s20, s2, 7
    s_add_u32 s20, s20, {WS_Y}
    s_lshl_b32 s22, s2, 6
    v_lshlrev_b32 v4, 1, v1
    v_add_u32 v4, s22, v4
    v_mov_b32 v5, 0
    s_waitcnt lgkmcnt(0)
    """)
    srd(k, 12, 6, WS_SIZE)
    srd(k, 48, 44, 2048*1024*2)
    k(f"""
    s_mov_b32 s23, {WS_SEL}
    s_mov_b32 s24, {WS_SEL + 4096}
    s_mov_b32 s25, {WS_MOD + 5*2048}
    buffer_load_dwordx2 v[6:7], v5, s[12:15], s23 offen
    buffer_load_ushort v8, v4, s[12:15], s23 offen offset:2048     ; x1
    buffer_load_ushort v9, v4, s[12:15], s24 offen                 ; h2
    buffer_load_ushort v10, v4, s[12:15], s25 offen                ; gb
    """)
    for i in range(28):
        k(f"buffer_load_dword v{16+i}, v3, s[12:15], s20 offen")
        k(f"s_add_u32 s20, s20, 32768")
    k("s_waitcnt vmcnt(0)")
    for i in range(1, 28):
        k(f"v_add_f32 v16, v16, v{16+i}")
    k(f"""
    v_lshlrev_b32 v11, 2, v0
    ds_write_b32 v11, v16
    s_waitcnt lgkmcnt(0)
    s_barrier
    v_lshlrev_b32 v11, 2, v1
    """)
    for w in range(8):
        k(f"ds_read_b32 v{16+w}, v11 offset:{128*w}")
    k("s_waitcnt lgkmcnt(0)")
    for w in range(1, 8):
        k(f"v_add_f32 v16, v16, v{16+w}")
    round_bf16(k, 16)
    k("v_mul_f32 v16, v16, v7")
    round_bf16(k, 16)
    k("v_lshlrev_b32 v9, 16, v9")
    k("v_add_f32 v16, v16, v9")
    round_bf16(k, 16)
    k("v_lshlrev_b32 v10, 16, v10")
    k("v_mul_f32 v16, v16, v10")
    round_bf16(k, 16)
    k(f"""
    v_lshlrev_b32 v8, 16, v8
    v_add_f32 v16, v16, v8
    v_cvt_pk_bf16_f32 v16, v16, v16
    v_and_b32 v6, 0x7ff, v6
    v_lshl_add_u32 v4, v6, 11, v4
    v_cmp_gt_u32 vcc, 32, v0
    s_and_saveexec_b64 s[28:29], vcc
    buffer_store_short v16, v4, s[48:51], 0 offen
    """)
    k.label("fin_kernel_end")
    k("s_endpgm")
    finish(k, (32,1,1), (256,1,1), 1024, 48, 56)

def build():
    OLDPRE = 'q3ln' in FLAGS or 'q_v1' in FLAGS or 'q_v2' in FLAGS
    gen_mod() if OLDPRE else gen_pre5()
    if 'q_v1' in FLAGS: gen_qkv()
    else: gen_qkv3()
    gen_attn()
    gen_wo()
    gen_moe()
    gen_fin()
    hdr = open("cdna_kernels/" + NAME + ".s.ref").read().split("; Override")[0]
    out = hdr
    for (name, grid, block, lds, vgpr, sgpr, agpr, text) in kernels:
        out += f"; @launch kernel={name} grid=({grid[0]},{grid[1]},{grid[2]}) block=({block[0]},{block[1]},{block[2]}) lds={lds}\n"
    out += '.amdgcn_target "amdgcn-amd-amdhsa--gfx950"\n.text\n'
    for (name, grid, block, lds, vgpr, sgpr, agpr, text) in kernels:
        out += f".globl {name}\n.p2align 8\n.type {name},@function\n{name}:\n{text}"
    out += '.section .rodata,"a"\n'
    for (name, grid, block, lds, vgpr, sgpr, agpr, text) in kernels:
        acc = (vgpr + 3)//4*4
        out += f""".p2align 6
.amdhsa_kernel {name}
  .amdhsa_next_free_vgpr {acc + agpr if agpr else vgpr}
  .amdhsa_next_free_sgpr {sgpr}
  .amdhsa_accum_offset {acc}
  .amdhsa_group_segment_fixed_size 0
  .amdhsa_kernarg_size 104
  .amdhsa_user_sgpr_count 2
  .amdhsa_user_sgpr_kernarg_segment_ptr 1
  .amdhsa_system_sgpr_workgroup_id_x 1
  .amdhsa_float_denorm_mode_32 3
.end_amdhsa_kernel
"""
    import re
    for ln in out.split("\n"):
        l = ln.split(";")[0]
        m = re.search(r"offset:(\d+)", l)
        if m and (l.strip().startswith("buffer_") or l.strip().startswith("global_")):
            assert int(m.group(1)) <= 4095, ln
        if m and l.strip().startswith("ds_"):
            assert int(m.group(1)) <= 65535, ln
    return out

if __name__ == "__main__":
    s = build()
    p = sys.argv[1] if len(sys.argv) > 1 else "cdna_kernels/" + NAME + ".s"
    open(p, "w").write(s)
    print("wrote", p, len(s))
```

```python
import sys, math, os, struct
FLAGS = set(os.environ.get('GENFLAGS', '').split(','))

NAME = "adaLN_cond__mha_block__moe_arch_mod__prompt"

KA_X, KA_WQKV, KA_WO, KA_BX, KA_WR, KA_WG, KA_WU, KA_WD, KA_C, KA_WMOD, KA_OUT, KA_DBG, KA_WS = [8*i for i in range(13)]

WS_MOD = 0x000000
WS_MOD1 = 0x004000
WS_MODF = 0x020000
WS_MOD1F = 0x028000
WS_STAT = 0x010000
WS_SEL = 0x018000
WS_Y   = 0x1900000
WS_H   = 0x100000
WS_Q   = 0x500000
WS_K   = 0x900000
WS_V   = 0xD00000
WS_O   = 0x1100000
WS_X1  = 0x1500000
WS_G   = 0x3000000
WS_SIZE = 0x10000000

class K:
    def __init__(self, name):
        self.name = name
        self.lines = []
        self.lab = 0
    def __call__(self, s):
        for l in s.strip("\n").split("\n"):
            self.lines.append("    " + l.strip())
    def label(self, l):
        self.lines.append(f"{l}:")
    def newlabel(self, base="L"):
        self.lab += 1
        return f"{self.name}_{base}{self.lab}"
    def text(self):
        return "\n".join(self.lines) + "\n"

def srd(k, d, b, nbytes):
    k(f"s_mov_b32 s{d}, s{b}")
    k(f"s_and_b32 s{d+1}, s{b+1}, 0xffff")
    k(f"s_mov_b32 s{d+2}, {nbytes}")
    k(f"s_mov_b32 s{d+3}, 0x00020000")

def wave_sum(k, v, t):
    k(f"""
    s_nop 1
    v_add_f32_dpp v{t}, v{v}, v{v} quad_perm:[1,0,3,2] row_mask:0xf bank_mask:0xf
    s_nop 1
    v_add_f32_dpp v{v}, v{t}, v{t} quad_perm:[2,3,0,1] row_mask:0xf bank_mask:0xf
    s_nop 1
    v_add_f32_dpp v{t}, v{v}, v{v} row_half_mirror row_mask:0xf bank_mask:0xf
    s_nop 1
    v_add_f32_dpp v{v}, v{t}, v{t} row_mirror row_mask:0xf bank_mask:0xf
    s_nop 0
    v_mov_b32 v{t}, v{v}
    s_nop 1
    v_permlane16_swap_b32 v{v}, v{t}
    s_nop 0
    v_add_f32 v{v}, v{v}, v{t}
    v_mov_b32 v{t}, v{v}
    s_nop 1
    v_permlane32_swap_b32 v{v}, v{t}
    s_nop 0
    v_add_f32 v{v}, v{v}, v{t}
    """)

def round_bf16_pair(k, a, b, t):
    k(f"v_cvt_pk_bf16_f32 v{t}, v{a}, v{b}")
    k(f"v_lshlrev_b32 v{a}, 16, v{t}")
    k(f"v_and_b32 v{b}, 0xffff0000, v{t}")

def unpack_bf16(k, src, dst):
    k(f"v_lshlrev_b32 v{dst}, 16, v{src}")
    k(f"v_and_b32 v{dst+1}, 0xffff0000, v{src}")

WS_STAMP = 0x2000000
def stamp(k, idx, sreg=80, flag='stamp'):
    if flag not in FLAGS: return
    k(f"s_memtime s[{sreg+4*idx}:{sreg+4*idx+1}]")
    k(f"s_memrealtime s[{sreg+4*idx+2}:{sreg+4*idx+3}]")
    k("s_waitcnt lgkmcnt(0)")
def stamp_store(k, n, srd_ws, wgreg, wavereg, sreg=80, vt=250, flag='stamp'):
    if flag not in FLAGS: return
    k(f"s_lshl_b32 s{sreg-1}, s{wgreg}, 3")
    k(f"s_add_u32 s{sreg-1}, s{sreg-1}, s{wavereg}")
    k(f"s_lshl_b32 s{sreg-1}, s{sreg-1}, 7")
    k(f"s_add_u32 s{sreg-1}, s{sreg-1}, {WS_STAMP}")
    k(f"v_mov_b32 v{vt}, 0")
    for i in range(n):
        for j in range(4):
            k(f"v_mov_b32 v{vt+1}, s{sreg+4*i+j}")
            k(f"buffer_store_dword v{vt+1}, v{vt}, s[{srd_ws}:{srd_ws+3}], s{sreg-1} offen offset:{16*i+4*j}")
            k("s_nop 1")

kernels = []

def finish(k, grid, block, lds, vgpr, sgpr=102, agpr=0):
    if 'scramble' in FLAGS:
        assert 's_cbranch_scc1' in k.lines[1]
        k.lines[2:2] = ["    s_lshr_b32 s3, s2, 3", "    s_and_b32 s3, s3, 7", "    s_xor_b32 s2, s2, s3"]
    kernels.append((k.name, grid, block, lds, vgpr, sgpr, agpr, k.text()))

def gen_mod():
    k = K("pre_kernel")
    k(f"""
    s_cmp_ge_u32 s2, 256
    s_cbranch_scc1 pre_kernel_end
    s_load_dwordx2 s[4:5], s[0:1], {KA_C}
    s_load_dwordx2 s[6:7], s[0:1], {KA_WMOD}
    s_load_dwordx2 s[8:9], s[0:1], {KA_WS}
    s_load_dwordx4 s[36:39], s[0:1], {KA_X}      ; x, wqkv
    s_and_b32 s20, s2, 0xfffffff0
    s_and_b32 s21, s2, 7
    s_lshl_b32 s21, s21, 1
    s_or_b32 s20, s20, s21
    s_lshr_b32 s21, s2, 3
    s_and_b32 s21, s21, 1
    s_or_b32 s20, s20, s21          ; s20 = slab
    s_lshl_b32 s21, s20, 6
    v_lshrrev_b32 v1, 6, v0         ; wave
    v_and_b32 v2, 63, v0            ; lane
    v_lshrrev_b32 v3, 2, v2         ; l>>2
    v_readfirstlane_b32 s34, v1
    v_lshl_add_u32 v3, v1, 6, v3    ; row0 = 64*w + (l>>2)
    v_and_b32 v4, 3, v2
    v_lshlrev_b32 v4, 4, v4         ; (l&3)*16
    s_mov_b32 s22, 12288
    v_mul_lo_u32 v5, v3, s22
    v_add3_u32 v5, v5, v4, s21
    v_lshlrev_b32 v6, 1, v3         ; c offset
    v_lshlrev_b32 v7, 4, v2         ; lane*16
    s_lshl_b32 s35, s2, 3
    s_add_u32 s35, s35, s34
    s_lshl_b32 s35, s35, 11
    s_waitcnt lgkmcnt(0)
    """)
    srd(k, 12, 4, 2048)
    srd(k, 16, 6, 1024*6144*2)
    srd(k, 24, 8, WS_SIZE)
    srd(k, 40, 36, 2048*1024*2)
    srd(k, 44, 38, 16 if 'nopf' in FLAGS else 1024*3072*2)
    MNT = 'nt' if 'modnt' in FLAGS else ''
    XR = 48
    k(f"""
    s_mov_b32 s28, {16*12288}
    s_mov_b32 s29, {32*12288}
    s_mov_b32 s30, {48*12288}
    s_cmp_ge_u32 s2, 192
    s_cbranch_scc1 pre_nomod1
    buffer_load_dwordx4 v[16:19], v5, s[16:19], 0 offen {MNT}
    buffer_load_dwordx4 v[20:23], v5, s[16:19], s28 offen {MNT}
    buffer_load_dwordx4 v[24:27], v5, s[16:19], s29 offen {MNT}
    buffer_load_dwordx4 v[28:31], v5, s[16:19], s30 offen {MNT}
    buffer_load_ushort v8, v6, s[12:15], 0 offen
    buffer_load_ushort v9, v6, s[12:15], 0 offen offset:32
    buffer_load_ushort v10, v6, s[12:15], 0 offen offset:64
    buffer_load_ushort v11, v6, s[12:15], 0 offen offset:96
    s_cmp_ge_u32 s34, 8
    s_cbranch_scc1 pre_pf1
    buffer_load_dwordx4 v[{XR}:{XR+3}], v7, s[40:43], s35 offen
    buffer_load_dwordx4 v[{XR+4}:{XR+7}], v7, s[40:43], s35 offen offset:1024
    s_waitcnt vmcnt(2)
    s_branch pre_mod
pre_pf1:
    s_lshl_b32 s48, s2, 3
    s_add_u32 s48, s48, s34
    s_sub_u32 s48, s48, 8
    s_lshl_b32 s48, s48, 10
    buffer_load_dwordx4 v[{XR}:{XR+3}], v7, s[44:47], s48 offen
    s_waitcnt vmcnt(1)
pre_mod:
    s_mov_b32 s31, 0xbfb8aa3b      ; -log2(e)
    """)
    for i in range(4):
        r = 8 + i
        k(f"""
        v_lshlrev_b32 v{r}, 16, v{r}
        v_mul_f32 v12, s31, v{r}
        v_exp_f32 v12, v12
        s_nop 0
        v_add_f32 v12, 1.0, v12
        v_rcp_f32 v12, v12
        s_nop 0
        v_mul_f32 v{r}, v{r}, v12
        """)
    round_bf16_pair(k, 8, 9, 12)
    round_bf16_pair(k, 10, 11, 12)
    for i in range(4):
        for j in range(4):
            src = 16 + 4*i + j
            k(f"v_lshlrev_b32 v12, 16, v{src}")
            k(f"v_and_b32 v13, 0xffff0000, v{src}")
            if i == 0:
                k(f"v_mul_f32 v{32+2*j}, v{8+i}, v12")
                k(f"v_mul_f32 v{33+2*j}, v{8+i}, v13")
            else:
                k(f"v_fmac_f32 v{32+2*j}, v{8+i}, v12")
                k(f"v_fmac_f32 v{33+2*j}, v{8+i}, v13")
    k("s_nop 1")
    for j in range(8):
        k(f"v_add_f32_dpp v{40+j}, v{32+j}, v{32+j} row_ror:4 row_mask:0xf bank_mask:0xf")
    for j in range(8):
        k(f"v_add_f32_dpp v{32+j}, v{40+j}, v{40+j} row_ror:8 row_mask:0xf bank_mask:0xf")
    for j in range(8):
        k(f"v_mov_b32 v{40+j}, v{32+j}")
    k("s_nop 1")
    for j in range(8):
        k(f"v_permlane16_swap_b32 v{32+j}, v{40+j}")
    for j in range(8):
        k(f"v_add_f32 v{32+j}, v{32+j}, v{40+j}")
    for j in range(8):
        k(f"v_mov_b32 v{40+j}, v{32+j}")
    k("s_nop 1")
    for j in range(8):
        k(f"v_permlane32_swap_b32 v{32+j}, v{40+j}")
    for j in range(8):
        k(f"v_add_f32 v{32+j}, v{32+j}, v{40+j}")
    k(f"""
    v_lshlrev_b32 v12, 7, v1
    v_lshl_add_u32 v12, v2, 5, v12
    v_cmp_gt_u32 vcc, 4, v2
    s_and_saveexec_b64 s[32:33], vcc
    ds_write_b128 v12, v[32:35]
    ds_write_b128 v12, v[36:39] offset:16
    s_mov_b64 exec, s[32:33]
    s_waitcnt lgkmcnt(0)
    s_barrier
    s_cmp_lg_u32 s34, 0
    s_cbranch_scc1 pre_ln
    v_and_b32 v12, 31, v2
    v_lshlrev_b32 v12, 2, v12
    v_lshrrev_b32 v13, 5, v2
    v_lshl_add_u32 v12, v13, 10, v12
    """)
    for j in range(8):
        k(f"ds_read_b32 v{32+j}, v12 offset:{128*j}")
    k("s_waitcnt lgkmcnt(0)")
    for j in range(1, 8):
        k(f"v_add_f32 v32, v32, v{32+j}")
    k(f"""
    v_mov_b32 v33, v32
    s_nop 1
    v_permlane32_swap_b32 v32, v33
    s_nop 0
    v_add_f32 v32, v32, v33
    v_cvt_pk_bf16_f32 v32, v32, v32
    v_lshlrev_b32 v34, 16, v32
    v_add_f32 v33, 1.0, v34
    v_cvt_pk_bf16_f32 v33, v33, v33
    v_lshlrev_b32 v35, 16, v33
    v_lshlrev_b32 v12, 1, v2
    v_add_u32 v12, s21, v12
    v_lshlrev_b32 v13, 1, v12
    s_mov_b32 s22, {WS_MOD1}
    s_mov_b32 s23, {WS_MODF}
    s_mov_b32 s28, {WS_MOD1F}
    v_cmp_gt_u32 vcc, 32, v2
    s_and_saveexec_b64 s[32:33], vcc
    buffer_store_dword v34, v13, s[24:27], s23 offen
    buffer_store_dword v35, v13, s[24:27], s28 offen
    buffer_store_short v32, v12, s[24:27], 0 offen
    buffer_store_short v33, v12, s[24:27], s22 offen
    s_mov_b64 exec, s[32:33]
    s_branch pre_ln
pre_nomod1:
    s_cmp_ge_u32 s34, 8
    s_cbranch_scc1 pre_pf2
    buffer_load_dwordx4 v[{XR}:{XR+3}], v7, s[40:43], s35 offen
    buffer_load_dwordx4 v[{XR+4}:{XR+7}], v7, s[40:43], s35 offen offset:1024
pre_pf2:
    s_sub_u32 s48, s2, 192
    s_lshl_b32 s48, s48, 4
    s_add_u32 s48, s48, s34
    s_mul_i32 s48, s48, 5120
    s_add_u32 s48, s48, {192*8*1024}
    s_add_u32 s49, s48, 4096
    buffer_load_dwordx4 v[16:19], v7, s[44:47], s48 offen
    buffer_load_dwordx4 v[20:23], v7, s[44:47], s48 offen offset:1024
    buffer_load_dwordx4 v[24:27], v7, s[44:47], s48 offen offset:2048
    buffer_load_dwordx4 v[28:31], v7, s[44:47], s48 offen offset:3072
    buffer_load_dwordx4 v[32:35], v7, s[44:47], s49 offen
    s_waitcnt vmcnt(5)
pre_ln:
    s_cmp_ge_u32 s34, 8
    s_cbranch_scc1 pre_kernel_end
    s_cmp_ge_u32 s2, 192
    s_cbranch_scc1 pre_ln2
    s_waitcnt vmcnt(0)
pre_ln2:
    """)
    for j in range(8):
        unpack_bf16(k, XR+j, 64+2*j)
    ln_core(k, 64, 80)
    for j in range(8):
        k(f"v_cvt_pkrtz_f16_f32 v{XR+j}, v{64+2*j}, v{65+2*j}")
    k(f"""
    s_add_u32 s21, s35, {WS_H}
    buffer_store_dwordx4 v[{XR}:{XR+3}], v7, s[24:27], s21 offen
    buffer_store_dwordx4 v[{XR+4}:{XR+7}], v7, s[24:27], s21 offen offset:1024
    s_lshr_b32 s22, s35, 9             ; row*4
    s_add_u32 s22, s22, {WS_STAT}
    v_lshlrev_b32 v5, 13, v2
    v_mov_b32 v6, 0
    v_cmp_gt_u32 vcc, 3, v2
    s_and_saveexec_b64 s[28:29], vcc
    buffer_store_dword v6, v5, s[24:27], s22 offen
    """)
    k.label("pre_kernel_end")
    k("s_endpgm")
    finish(k, (256,1,1), (1024,1,1), 2048, 88, 56)

def ln_core(k, X, T):
    S, U, M, R = T, T+1, T+2, T+3
    k(f"v_add_f32 v{S}, v{X}, v{X+1}")
    for i in range(2, 16):
        k(f"v_add_f32 v{S}, v{S}, v{X+i}")
    wave_sum(k, S, U)
    k(f"v_mul_f32 v{M}, 0x3a800000, v{S}")
    k(f"v_sub_f32 v{U}, v{X}, v{M}")
    k(f"v_mul_f32 v{S}, v{U}, v{U}")
    for i in range(1, 16):
        k(f"v_sub_f32 v{U}, v{X+i}, v{M}")
        k(f"v_fmac_f32 v{S}, v{U}, v{U}")
    wave_sum(k, S, U)
    k(f"v_mul_f32 v{S}, 0x3a800000, v{S}")
    round_bf16_pair(k, M, S, U)
    k(f"v_add_f32 v{S}, 0x3727c5ac, v{S}")
    k(f"v_cvt_pk_bf16_f32 v{S}, v{S}, v{S}")
    k(f"v_lshlrev_b32 v{S}, 16, v{S}")
    k(f"v_sqrt_f32 v{S}, v{S}")
    k("s_nop 0")
    k(f"v_cvt_pk_bf16_f32 v{S}, v{S}, v{S}")
    k(f"v_lshlrev_b32 v{S}, 16, v{S}")
    k(f"v_rcp_f32 v{R}, v{S}")
    for i in range(16):
        k(f"v_sub_f32 v{X+i}, v{X+i}, v{M}")
    for i in range(0, 16, 2):
        round_bf16_pair(k, X+i, X+i+1, U)
    for i in range(16):
        k(f"v_mul_f32 v{X+i}, v{X+i}, v{R}")
    for i in range(0, 16, 2):
        round_bf16_pair(k, X+i, X+i+1, U)

def modulate(k, X, C, Sh, T):
    for j in range(8):
        unpack_bf16(k, C+j, T)
        k(f"v_add_f32 v{T}, 1.0, v{T}")
        k(f"v_add_f32 v{T+1}, 1.0, v{T+1}")
        round_bf16_pair(k, T, T+1, T+2)
        k(f"v_mul_f32 v{X+2*j}, v{X+2*j}, v{T}")
        k(f"v_mul_f32 v{X+2*j+1}, v{X+2*j+1}, v{T+1}")
        round_bf16_pair(k, X+2*j, X+2*j+1, T+2)
        unpack_bf16(k, Sh+j, T)
        k(f"v_add_f32 v{X+2*j}, v{X+2*j}, v{T}")
        k(f"v_add_f32 v{X+2*j+1}, v{X+2*j+1}, v{T+1}")

WS_WQ = 0x4000000
WS_XCH = 0x040000
WS_PB  = 0x080000
WS_PM  = 0x4800000
def gen_pre5():
    k = K("pre_kernel")
    ST = 'prestamp'
    L_TAB = 4096; L_FLAG = 4096 + 256
    GATE = '' if 'p_nogate' in FLAGS else 's_waitcnt vmcnt(0)'
    k(f"""
    s_cmp_ge_u32 s2, 256
    s_cbranch_scc1 pre_kernel_end
    s_load_dwordx2 s[4:5], s[0:1], {KA_C}
    s_load_dwordx2 s[6:7], s[0:1], {KA_WMOD}
    s_load_dwordx2 s[8:9], s[0:1], {KA_DBG}
    s_load_dwordx2 s[10:11], s[0:1], {KA_WS}
    s_load_dwordx4 s[36:39], s[0:1], {KA_X}      ; x, wqkv
    s_memrealtime s[56:57]
    v_lshrrev_b32 v1, 6, v0         ; wave
    v_and_b32 v2, 63, v0            ; lane
    v_lshlrev_b32 v7, 4, v2         ; lane*16
    v_readfirstlane_b32 s34, v1
    s_and_b32 s20, s2, 7            ; j
    s_lshr_b32 s21, s2, 3           ; g
    s_lshl_b32 s22, s20, 7          ; 128 j
    v_lshrrev_b32 v3, 2, v2
    v_and_b32 v3, 7, v3
    v_lshl_add_u32 v3, v1, 3, v3
    v_add_u32 v3, s22, v3           ; row = 128j + 8w + ((l>>2)&7)
    s_mov_b32 s22, 12288
    v_mul_lo_u32 v5, v3, s22
    v_lshrrev_b32 v4, 5, v2
    v_lshl_add_u32 v5, v4, 11, v5   ; + slab*2048
    v_and_b32 v4, 3, v2
    v_lshl_add_u32 v5, v4, 4, v5    ; + (l&3)*16
    v_lshlrev_b32 v6, 1, v3         ; c offset
    s_lshl_b32 s23, s21, 6          ; g*64
    s_mov_b32 s70, 4
    s_waitcnt lgkmcnt(0)
    """)
    stamp(k, 0, flag=ST)
    srd(k, 16, 6, 1024*6144*2)
    srd(k, 12, 4, 2048)
    k(f"""
    buffer_load_dwordx4 v[24:27], v5, s[16:19], s23 offen
    buffer_load_ushort v28, v6, s[12:15], 0 offen
    """)
    srd(k, 24, 10, WS_SIZE)
    srd(k, 28, 8, 256)
    srd(k, 40, 36, 2048*1024*2)
    srd(k, 44, 38, 1024*3072*2)
    k(f"""
    s_cmp_ge_u32 s34, 8
    s_cbranch_scc1 pre_ldx
    s_cmp_eq_u32 s34, 0
    s_cbranch_scc1 pre_ld0
    s_cmp_eq_u32 s34, 7
    s_cbranch_scc1 pre_ld7
    s_sub_u32 s35, s34, 1
    s_cmp_ge_u32 s35, 3
    s_cselect_b32 s33, 1, 0         ; bnl
    s_mul_i32 s32, s33, 3
    s_sub_u32 s32, s35, s32         ; seg
    s_lshl_b32 s35, s20, 1
    s_add_u32 s33, s33, s35         ; bn
    s_mul_i32 s48, s21, {32*6144}
    s_lshl_b32 s49, s32, 11
    s_add_u32 s48, s48, s49
    s_lshl_b32 s49, s33, 7
    s_add_u32 s48, s48, s49         ; W soffset
    v_lshrrev_b32 v3, 3, v2         ; r
    s_mov_b32 s22, 6144
    v_mul_lo_u32 v5, v3, s22
    v_and_b32 v4, 7, v2
    v_lshl_add_u32 v5, v4, 4, v5
    s_add_u32 s49, s48, {8*6144}
    s_add_u32 s50, s48, {16*6144}
    s_add_u32 s51, s48, {24*6144}
    {GATE}
    buffer_load_dwordx4 v[8:11], v5, s[44:47], s48 offen
    buffer_load_dwordx4 v[12:15], v5, s[44:47], s49 offen
    buffer_load_dwordx4 v[16:19], v5, s[44:47], s50 offen
    buffer_load_dwordx4 v[20:23], v5, s[44:47], s51 offen
    s_waitcnt vmcnt(4)
    s_branch pre_s
pre_ld7:
    v_mov_b32 v3, {L_FLAG}
    v_mov_b32 v4, 0
    ds_write_b32 v3, v4
    s_waitcnt vmcnt(0)
    s_branch pre_s
pre_ld0:
    s_or_b32 s56, s56, 1
    v_mov_b32 v8, s56
    v_mov_b32 v9, s57
    v_mov_b32 v10, 0
    v_mov_b32 v11, 0
    s_lshl_b32 s22, s21, 3
    v_mov_b32 v3, s22
    s_mov_b64 exec, 1
    buffer_atomic_cmpswap_x2 v[8:11], v3, s[28:31], 0 offen sc0 sc1
    s_mov_b64 exec, -1
    s_waitcnt vmcnt(1)
    s_branch pre_s
pre_ldx:
    s_lshl_b32 s35, s2, 3
    s_add_u32 s35, s35, s34
    s_sub_u32 s35, s35, 8           ; token
    s_lshl_b32 s33, s35, 11
    {GATE}
    buffer_load_dwordx4 v[8:11], v7, s[40:43], s33 offen
    buffer_load_dwordx4 v[12:15], v7, s[40:43], s33 offen offset:1024
    s_waitcnt vmcnt(2)
pre_s:
    s_mov_b32 s22, 0xbfb8aa3b      ; -log2(e)
    v_lshlrev_b32 v28, 16, v28
    v_mul_f32 v29, s22, v28
    v_exp_f32 v29, v29
    s_nop 0
    v_add_f32 v29, 1.0, v29
    v_rcp_f32 v29, v29
    s_nop 0
    v_mul_f32 v28, v28, v29
    v_cvt_pk_bf16_f32 v28, v28, v28
    v_lshlrev_b32 v28, 16, v28
    """)
    A = 32; T = 40
    for j in range(4):
        k(f"v_lshlrev_b32 v{T+2*j}, 16, v{24+j}")
        k(f"v_and_b32 v{T+2*j+1}, 0xffff0000, v{24+j}")
    for j in range(8):
        k(f"v_mul_f32 v{A+j}, v28, v{T+j}")
    k("s_nop 1")
    for j in range(8):
        k(f"v_add_f32_dpp v{T+j}, v{A+j}, v{A+j} row_ror:4 row_mask:0xf bank_mask:0xf")
    for j in range(8):
        k(f"v_add_f32_dpp v{A+j}, v{T+j}, v{T+j} row_ror:8 row_mask:0xf bank_mask:0xf")
    for j in range(8):
        k(f"v_mov_b32 v{T+j}, v{A+j}")
    k("s_nop 1")
    for j in range(8):
        k(f"v_permlane16_swap_b32 v{A+j}, v{T+j}")
    for j in range(8):
        k(f"v_add_f32 v{A+j}, v{A+j}, v{T+j}")
    k(f"""
    v_lshrrev_b32 v4, 5, v2
    v_lshlrev_b32 v3, 8, v1
    v_lshl_add_u32 v3, v4, 7, v3
    v_and_b32 v4, 3, v2
    v_lshl_add_u32 v3, v4, 5, v3
    s_mov_b32 s22, 15
    s_mov_b32 s23, 15
    s_mov_b64 exec, s[22:23]
    ds_write_b128 v3, v[{A}:{A+3}]
    ds_write_b128 v3, v[{A+4}:{A+7}] offset:16
    s_mov_b64 exec, -1
    s_waitcnt lgkmcnt(0)
    s_barrier
    s_cmp_ge_u32 s34, 8
    s_cbranch_scc1 pre_ln
    s_cmp_eq_u32 s34, 7
    s_cbranch_scc1 pre_kernel_end
    s_cmp_lg_u32 s34, 0
    s_cbranch_scc1 pre_w
    v_lshlrev_b32 v3, 2, v2
    """)
    stamp(k, 1, flag=ST)
    for j in range(16):
        k(f"ds_read_b32 v{16+j}, v3 offset:{256*j}")
    k(f"""
    s_lshl_b32 s22, s21, 12
    s_add_u32 s22, s22, {WS_XCH}
    s_lshl_b32 s23, s20, 9
    s_add_u32 s23, s23, s22
    v_lshlrev_b32 v4, 3, v2
    v_lshrrev_b32 v5, 4, v2
    v_and_b32 v5, 1, v5
    v_lshlrev_b32 v5, 7, v5
    v_and_b32 v6, 3, v2
    v_lshl_add_u32 v5, v6, 5, v5
    v_lshrrev_b32 v6, 2, v2
    v_and_b32 v6, 3, v6
    v_lshl_add_u32 v5, v6, 2, v5
    s_waitcnt vmcnt(0)
    v_readfirstlane_b32 s58, v8
    v_readfirstlane_b32 s59, v9
    s_or_b32 s60, s58, s59
    s_cmp_eq_u32 s60, 0
    s_cselect_b32 s58, s56, s58
    s_cselect_b32 s59, s57, s59
    v_mov_b32 v34, s58
    v_mov_b32 v35, s59
    s_waitcnt lgkmcnt(0)
    """)
    st = 1
    while st < 16:
        for j in range(0, 16, 2*st):
            k(f"v_add_f32 v{16+j}, v{16+j}, v{16+j+st}")
        st *= 2
    k(f"""
    v_mov_b32 v32, v16
    s_nop 1
    v_mov_b32_dpp v33, v16 quad_perm:[1,0,3,2] row_mask:0xf bank_mask:0xf
    s_mov_b32 s60, 0x55555555
    s_mov_b32 s61, 0x55555555
    s_mov_b64 exec, s[60:61]
    buffer_store_dwordx4 v[32:35], v4, s[24:27], s23 offen sc1
    s_mov_b64 exec, -1
    """)
    if 'p_safe' in FLAGS: k("s_mov_b32 s50, 0")
    k(f"""
pre_poll:
    buffer_load_dwordx4 v[16:19], v7, s[24:27], s22 offen sc1
    buffer_load_dwordx4 v[20:23], v7, s[24:27], s22 offen offset:1024 sc1
    buffer_load_dwordx4 v[24:27], v7, s[24:27], s22 offen offset:2048 sc1
    buffer_load_dwordx4 v[28:31], v7, s[24:27], s22 offen offset:3072 sc1
    s_waitcnt vmcnt(0)
    v_xor_b32 v36, v18, v34
    v_xor_b32 v37, v19, v35
    v_xor_b32 v38, v22, v34
    v_xor_b32 v39, v23, v35
    v_or3_b32 v36, v36, v37, v38
    v_xor_b32 v37, v26, v34
    v_xor_b32 v38, v27, v35
    v_or3_b32 v36, v36, v39, v37
    v_xor_b32 v37, v30, v34
    v_xor_b32 v39, v31, v35
    v_or3_b32 v36, v36, v38, v37
    v_or_b32 v36, v36, v39
    v_cmp_ne_u32 vcc, 0, v36
    """)
    if 'p_safe' in FLAGS:
        k("s_add_u32 s50, s50, 1\ns_cmp_gt_u32 s50, 100000\ns_cbranch_scc1 pre_poll_done")
    k(f"""
    s_cbranch_vccnz pre_poll
pre_poll_done:
    v_add_f32 v16, v16, v20
    v_add_f32 v17, v17, v21
    v_add_f32 v24, v24, v28
    v_add_f32 v25, v25, v29
    v_add_f32 v16, v16, v24
    v_add_f32 v17, v17, v25
    v_mov_b32 v18, v16
    v_mov_b32 v19, v17
    s_nop 1
    v_permlane32_swap_b32 v16, v18
    v_permlane32_swap_b32 v17, v19
    s_nop 0
    v_add_f32 v16, v16, v18
    v_add_f32 v17, v17, v19
    v_cvt_pk_bf16_f32 v20, v16, v17
    v_lshlrev_b32 v16, 16, v20
    v_and_b32 v17, 0xffff0000, v20
    v_add_f32 v18, 1.0, v16
    v_add_f32 v19, 1.0, v17
    v_cvt_pk_bf16_f32 v19, v18, v19
    v_lshlrev_b32 v18, 16, v19
    v_and_b32 v19, 0xffff0000, v19
    v_and_b32 v6, 16, v2
    v_cmp_ne_u32 vcc, 0, v6
    v_mov_b32 v3, {L_FLAG}
    v_mov_b32 v6, 1
    v_cndmask_b32 v16, v16, v18, vcc
    v_cndmask_b32 v17, v17, v19, vcc
    s_mov_b32 s60, -1
    s_mov_b32 s61, 0
    s_mov_b64 exec, s[60:61]
    ds_write_b32 v5, v16 offset:{L_TAB}
    ds_write_b32 v5, v17 offset:{L_TAB+16}
    ds_write_b32 v3, v6
    """)
    if 'p_dbgmod' in FLAGS:
        k(f"""
        v_lshrrev_b32 v4, 4, v2
        v_lshlrev_b32 v4, 11, v4
        v_and_b32 v6, 15, v2
        v_lshl_add_u32 v4, v6, 2, v4
        s_lshl_b32 s22, s21, 6
        buffer_store_dword v20, v4, s[24:27], s22 offen
        """)
    if ST in FLAGS:
        k("s_mov_b64 exec, -1")
        stamp(k, 2, flag=ST)
        stamp(k, 3, flag=ST)
        stamp_store(k, 4, 24, 2, 34, vt=40, flag=ST)
    k(f"""
    s_endpgm
pre_w:
    s_mul_i32 s48, s33, {16*24576}
    s_lshr_b32 s49, s21, 1
    s_mul_i32 s49, s49, 24576
    s_add_u32 s48, s48, s49
    s_lshl_b32 s49, s32, 13
    s_add_u32 s48, s48, s49
    s_and_b32 s49, s21, 1
    s_lshl_b32 s49, s49, 12
    s_add_u32 s48, s48, s49
    s_add_u32 s48, s48, {WS_WQ}
    s_mul_i32 s49, s21, 12288
    s_lshl_b32 s50, s32, 12
    s_add_u32 s49, s49, s50
    s_lshl_b32 s50, s33, 8
    s_add_u32 s49, s49, s50
    s_add_u32 s49, s49, {WS_PB}
    v_lshrrev_b32 v3, 3, v2         ; r
    v_and_b32 v4, 2, v3
    v_lshlrev_b32 v4, 4, v4
    v_xor_b32 v5, v7, v4            ; r*128 + ((c ^ (r&2))*16)
    v_xor_b32 v6, 64, v5            ; odd i
    v_lshlrev_b32 v3, 4, v3
    v_mov_b32 v4, {L_FLAG}
    v_lshlrev_b32 v1, 5, v2
    """)
    U = 24
    for i in range(4):
        k(f"s_waitcnt vmcnt({3-i})")
        for j in range(4):
            unpack_bf16(k, 8+4*i+j, U+8*i+2*j)
    stamp(k, 1, flag=ST)
    if 'p_safe' in FLAGS: k("s_mov_b32 s50, 0")
    k(f"""
pre_wait:
    ds_read_b32 v8, v4
    s_waitcnt lgkmcnt(0)
    v_readfirstlane_b32 s22, v8
    s_cmp_eq_u32 s22, 1
    s_cbranch_scc1 pre_go
    s_sleep 1
    """)
    if 'p_safe' in FLAGS:
        k("s_add_u32 s50, s50, 1\ns_cmp_gt_u32 s50, 1000000\ns_cbranch_scc1 pre_go")
    k(f"""
    s_branch pre_wait
pre_go:
    ds_read_b128 v[12:15], v3 offset:{L_TAB+128}
    ds_read_b128 v[8:11], v3 offset:{L_TAB}          ; sa
    """)
    stamp(k, 2, flag=ST)
    k("s_waitcnt lgkmcnt(1)")
    for i in range(4):
        o = 16 + 4*(i & 1)
        for j in range(4):
            k(f"v_mul_f32 v56, v{12+i}, v{U+8*i+2*j}")
            k(f"v_mul_f32 v57, v{12+i}, v{U+8*i+2*j+1}")
            k(f"v_cvt_pk_bf16_f32 v{o+j}, v56, v57")
        k(f"buffer_store_dwordx4 v[{o}:{o+3}], v{5 + (i & 1)}, s[24:27], s48 offen offset:{i*1024}")
    k("s_waitcnt lgkmcnt(0)")
    A = 56
    for i in range(4):
        for j in range(8):
            k(f"{'v_mul_f32' if i == 0 else 'v_fmac_f32'} v{A+j}, v{8+i}, v{U+8*i+j}")
    T = 24
    k("s_nop 1")
    for j in range(8):
        k(f"v_add_f32_dpp v{T+j}, v{A+j}, v{A+j} row_ror:8 row_mask:0xf bank_mask:0xf")
    for j in range(8):
        k(f"v_mov_b32 v{A+j}, v{T+j}")
    k("s_nop 1")
    for j in range(8):
        k(f"v_permlane16_swap_b32 v{A+j}, v{T+j}")
    for j in range(8):
        k(f"v_add_f32 v{A+j}, v{A+j}, v{T+j}")
    for j in range(8):
        k(f"v_mov_b32 v{T+j}, v{A+j}")
    k("s_nop 1")
    for j in range(8):
        k(f"v_permlane32_swap_b32 v{A+j}, v{T+j}")
    for j in range(8):
        k(f"v_add_f32 v{A+j}, v{A+j}, v{T+j}")
    k(f"""
    s_mov_b64 exec, 0xff
    buffer_store_dwordx4 v[{A}:{A+3}], v1, s[24:27], s49 offen
    buffer_store_dwordx4 v[{A+4}:{A+7}], v1, s[24:27], s49 offen offset:16
    """)
    if ST in FLAGS:
        k("s_mov_b64 exec, -1")
        k("s_waitcnt vmcnt(0)")
        stamp(k, 3, flag=ST)
        stamp_store(k, 4, 24, 2, 34, vt=8, flag=ST)
    k(f"""
    s_endpgm
pre_ln:
    s_and_b32 s20, s35, 0x67        ; keep b6 b5 b2 b1 b0
    s_lshr_b32 s21, s35, 1
    s_and_b32 s22, s21, 8           ; b4 -> bit3
    s_or_b32 s20, s20, s22
    s_lshl_b32 s22, s35, 1
    s_and_b32 s22, s22, 16          ; b3 -> bit4
    s_or_b32 s20, s20, s22          ; rho
    s_lshr_b32 s21, s20, 1
    s_and_b32 s21, s21, 7           ; f = (n>>1)&7
    s_lshr_b32 s22, s35, 7          ; bm
    s_lshl_b32 s22, s22, 18
    s_lshl_b32 s20, s20, 7
    s_add_u32 s22, s22, s20
    s_add_u32 s22, s22, {WS_H}
    s_add_u32 s23, s22, {8*16384}
    v_and_b32 v3, 7, v2
    v_xor_b32 v3, s21, v3
    v_lshlrev_b32 v3, 4, v3
    v_lshrrev_b32 v4, 3, v2
    v_lshl_add_u32 v3, v4, 14, v3
    s_lshl_b32 s20, s35, 2
    s_add_u32 s20, s20, {WS_STAT}
    v_lshlrev_b32 v5, 13, v2
    v_mov_b32 v6, 0
    s_mov_b64 exec, 7
    buffer_store_dword v6, v5, s[24:27], s20 offen
    s_mov_b64 exec, -1
    s_waitcnt vmcnt(1)
    """)
    for j in range(8):
        unpack_bf16(k, 8+j, 16+2*j)
    ln_core(k, 16, 56)
    for j in range(8):
        k(f"v_cvt_pk_bf16_f32 v{8+j}, v{16+2*j}, v{17+2*j}")
    k(f"""
    buffer_store_dwordx4 v[8:11], v3, s[24:27], s22 offen
    buffer_store_dwordx4 v[12:15], v3, s[24:27], s23 offen
    """)
    k.label("pre_kernel_end")
    k("s_endpgm")
    finish(k, (256,1,1), (1024,1,1), 4096 + 512, 64, 102 if ST in FLAGS else 72)

QK_SCALE = 32 ** -0.5 * 1.4426950408889634
def f32bits(x):
    return struct.unpack("<I", struct.pack("<f", x))[0]

def gen_qkv():
    k = K("qkv_kernel")
    NST = 16
    A_SLOT = 16384
    B_BASE = 65536
    B_SLOT = 24576
    k(f"""
    s_cmp_ge_u32 s2, 256
    s_cbranch_scc1 qkv_kernel_end
    s_load_dwordx2 s[4:5], s[0:1], {KA_WQKV}
    s_load_dwordx2 s[6:7], s[0:1], {KA_WS}
    v_lshrrev_b32 v1, 6, v0
    v_and_b32 v2, 63, v0               ; lane
    s_and_b32 s20, s2, 7               ; x
    s_lshr_b32 s21, s2, 3              ; j
    v_readfirstlane_b32 s18, v1
    s_and_b32 s16, s20, 1
    s_lshl_b32 s16, s16, 3
    s_and_b32 s22, s21, 7
    s_add_u32 s16, s16, s22            ; bm
    s_lshr_b32 s17, s20, 1
    s_lshl_b32 s17, s17, 2
    s_lshr_b32 s22, s21, 3
    s_add_u32 s17, s17, s22            ; bn
    s_waitcnt lgkmcnt(0)
    """)
    srd(k, 8, 4, 1024*3072*2)
    srd(k, 12, 6, WS_SIZE)
    k(f"""
    s_cmp_ge_u32 s18, 4
    s_cbranch_scc1 qkv_producer
    """)
    k(f"""
    s_and_b32 s19, s18, 1              ; wm
    s_lshr_b32 s23, s18, 1             ; hd
    v_and_b32 v3, 31, v2               ; l&31
    v_lshrrev_b32 v4, 5, v2            ; hh
    v_lshrrev_b32 v5, 1, v3
    v_and_b32 v5, 7, v5                ; f = (t>>1)&7
    v_xor_b32 v5, v5, v4               ; hh ^ f
    v_lshlrev_b32 v5, 4, v5
    v_lshl_add_u32 v5, v3, 7, v5       ; (l&31)*128 + chunk*16
    s_lshl_b32 s24, s19, 13            ; wm*64*128
    v_add_u32 v8, s24, v5              ; vA[0]
    v_xor_b32 v9, 32, v8
    v_xor_b32 v10, 64, v8
    v_xor_b32 v11, 0x60, v8
    ; vB
    v_lshrrev_b32 v5, 2, v2
    v_and_b32 v5, 3, v5                ; r
    v_lshl_add_u32 v6, v4, 3, v5       ; 8hh + r
    v_lshlrev_b32 v6, 7, v6            ; *128
    v_lshrrev_b32 v5, 1, v5            ; r>>1
    v_xor_b32 v5, s23, v5              ; hd ^ (r>>1)
    v_lshl_add_u32 v6, v5, 6, v6
    v_lshrrev_b32 v5, 4, v2
    v_and_b32 v5, 1, v5                ; ng
    v_lshl_add_u32 v6, v5, 5, v6
    v_and_b32 v5, 3, v2                ; c
    v_lshl_add_u32 v6, v5, 3, v6
    v_add_u32 v12, {B_BASE}, v6
    v_add_u32 v13, {B_BASE + 2*B_SLOT}, v6
    """)
    ACC = 64
    SETS = [24, 44]
    for i in range(96):
        k(f"v_mov_b32 v{ACC+i}, 0")
    def reads(st, stage, ks):
        S = SETS[st]
        r = []
        slot = stage % 3; aslot = stage & 3
        r.append(f"ds_read_b128 v[{S}:{S+3}], v{8+ks} offset:{aslot*A_SLOT}")
        r.append(f"ds_read_b128 v[{S+4}:{S+7}], v{8+ks} offset:{aslot*A_SLOT+4096}")
        for seg in range(3):
            for j in range(2):
                d = S + 8 + 4*seg + 2*j
                r.append(f"ds_read_b64_tr_b16 v[{d}:{d+1}], v{12+(slot>>1)} offset:{(slot&1)*B_SLOT + seg*8192 + ks*2048 + j*512}")
        return r
    def mfmas(st):
        S = SETS[st]
        r = []
        for seg in range(3):
            for tt in range(2):
                a = ACC + 16*(2*seg + tt)
                W = f"v[{S+8+4*seg}:{S+11+4*seg}]"
                H = f"v[{S+4*tt}:{S+4*tt+3}]"
                if seg < 2:
                    r.append(f"v_mfma_f32_32x32x16_bf16 v[{a}:{a+15}], {W}, {H}, v[{a}:{a+15}]")
                else:
                    r.append(f"v_mfma_f32_32x32x16_bf16 v[{a}:{a+15}], {H}, {W}, v[{a}:{a+15}]")
        return r
    k("s_mov_b32 s25, 0")
    if 'noprio' not in FLAGS: k("s_setprio 3")
    stamp(k, 0)
    k("s_barrier")
    k("s_barrier")
    stamp(k, 1)
    rd0 = reads(0, 0, 0)
    for r in [rd0[0], rd0[2], rd0[3], rd0[1], rd0[4], rd0[5], rd0[6], rd0[7]]:
        k(r)
    cur = 0
    for stage in range(NST):
        for ks in range(4):
            m = mfmas(cur)
            if ks < 3:
                rd = reads(cur ^ 1, stage, ks + 1)
            elif stage + 1 < NST:
                rd = reads(cur ^ 1, stage + 1, 0)
            else:
                rd = [';']*8
            if 'q_old' in FLAGS:
                k("s_waitcnt lgkmcnt(0)")
                k(m[0])
                if ks == 3 and stage + 1 < NST:
                    k("s_barrier")
                k(rd[2]); k(rd[3])
                k(m[1])
                k(rd[4]); k(rd[5])
                k(m[2])
                k(rd[0]); k(rd[6])
                k(m[3])
                k(rd[1]); k(rd[7])
                k(m[4])
                k(m[5])
            else:
                r = [rd[0], rd[2], rd[3], rd[1], rd[4], rd[5], rd[6], rd[7]]
                last = (stage + 1 == NST and ks == 3)
                if ks < 3:
                    k("s_waitcnt lgkmcnt(5)"); k(m[0]); k(r[0]); k(r[1])
                    k("s_waitcnt lgkmcnt(6)"); k(m[1]); k(r[2]); k(r[3])
                    k("s_waitcnt lgkmcnt(6)"); k(m[2]); k(r[4]); k(r[5])
                    k(m[3]); k(r[6]); k(r[7])
                    k("s_waitcnt lgkmcnt(8)"); k(m[4]); k(m[5])
                else:
                    k("s_waitcnt lgkmcnt(5)"); k(m[0])
                    k("s_waitcnt lgkmcnt(4)"); k(m[1])
                    k("s_waitcnt lgkmcnt(0)")
                    if not last: k("s_barrier")
                    k(r[0]); k(r[1]); k(r[2])
                    k(m[2]); k(r[3]); k(r[4]); k(r[5])
                    k(m[3]); k(r[6]); k(r[7])
                    k(m[4]); k(m[5])
            cur ^= 1
    stamp(k, 2)
    k(f"""
    s_lshl_b32 s26, s17, 1
    s_add_u32 s26, s26, s23            ; head
    s_lshl_b32 s26, s26, 17
    s_lshl_b32 s27, s16, 2
    s_lshl_b32 s28, s19, 1
    s_add_u32 s27, s27, s28
    s_lshl_b32 s27, s27, 11
    s_add_u32 s26, s26, s27
    s_add_u32 s28, s26, {WS_Q}
    s_add_u32 s29, s26, {WS_K}
    s_add_u32 s30, s26, {WS_V}
    s_mov_b32 s31, {f32bits(QK_SCALE)}
    v_lshlrev_b32 v3, 4, v2            ; lane*16
    s_nop 7
    """)
    for seg in range(3):
        for tt in range(2):
            a = ACC + 16*(2*seg + tt)
            if seg == 0:
                for i in range(16):
                    k(f"v_mul_f32 v{a+i}, s31, v{a+i}")
            for m in range(2):
                d = 24 + 4*((2*seg + tt)*2 + m) % 40
                d = 24 + (4*(((2*seg + tt)*2 + m) % 10))
                for i in range(4):
                    k(f"v_cvt_pk_bf16_f32 v{d+i}, v{a+8*m+2*i}, v{a+8*m+2*i+1}")
                k(f"buffer_store_dwordx4 v[{d}:{d+3}], v3, s[12:15], s{28+seg} offen offset:{tt*2048+m*1024}")
    if 'stamp' in FLAGS:
        k("s_waitcnt vmcnt(0)")
        stamp(k, 3)
        stamp_store(k, 4, 12, 2, 18, vt=160)
    k("s_endpgm")
    k.label("qkv_producer")
    k(f"""
    s_and_b32 s19, s18, 3              ; w
    v_lshrrev_b32 v3, 3, v2            ; l>>3
    s_lshl_b32 s23, s19, 3
    v_add_u32 v3, s23, v3              ; 8w + (l>>3)
    v_lshrrev_b32 v4, 4, v2            ; l>>4
    s_and_b32 s24, s19, 1
    s_lshl_b32 s24, s24, 2
    v_add_u32 v5, s24, v4              ; 4(w&1) + (l>>4)
    v_and_b32 v6, 7, v2
    v_xor_b32 v5, v5, v6
    v_lshlrev_b32 v5, 4, v5
    v_lshl_add_u32 v8, v3, 11, v5      ; vA
    s_mov_b32 s24, 6144
    v_mul_lo_u32 v9, v3, s24
    v_lshrrev_b32 v5, 2, v2
    v_xor_b32 v5, v5, v4
    v_and_b32 v5, 1, v5                ; hd
    v_lshl_add_u32 v9, v5, 6, v9
    v_and_b32 v5, 3, v2
    v_lshl_add_u32 v9, v5, 4, v9       ; vB
    s_lshl_b32 s25, s16, 18
    s_add_u32 s25, s25, {WS_H}
    s_lshl_b32 s26, s17, 7
    s_lshl_b32 s27, s19, 10            ; w*1024
    """)
    TBL = B_BASE + 3*B_SLOT
    k(f"""
    s_cmp_ge_u32 s18, 8
    s_cbranch_scc1 qkv_xform
    v_lshlrev_b32 v12, 4, v2
    s_add_u32 s31, s27, {WS_MOD1F + 4096}
    s_add_u32 m0, s27, {TBL}
    s_add_u32 s32, s27, {WS_MODF}
    buffer_load_dwordx4 v12, s[12:15], s31 offen lds
    s_add_u32 m0, s27, {TBL + 4096}
    s_nop 0
    buffer_load_dwordx4 v12, s[12:15], s32 offen lds
    """)
    vm = [('T', 0), ('T', 0)]
    def wait_tags(tags):
        idx = max(i for i, t in enumerate(vm) if t in tags)
        n = len(vm) - 1 - idx
        assert n <= 63
        k(f"s_waitcnt vmcnt({n})")
    def issueA(s):
        for p in range(4):
            k(f"s_add_u32 m0, s27, {(s & 3)*A_SLOT + p*4096}")
            k(f"s_add_u32 s28, s25, {p*65536 + s*128}")
            k(f"buffer_load_dwordx4 v8, s[12:15], s28 offen lds")
        vm.extend([('A', s)]*4)
    def boff(i): return (i & 1)*32*6144 + (i >> 1)*2048
    def issueB(s):
        for i in range(6):
            k(f"s_add_u32 m0, s27, {B_BASE + (s % 3)*B_SLOT + i*4096}")
            k(f"s_add_u32 s28, s26, {s*393216 + boff(i)}")
            k(f"buffer_load_dwordx4 v9, s[8:11], s28 offen lds")
        vm.extend([('B', s)]*6)
    issueA(0); issueB(0); issueA(1); issueB(1); issueA(2)
    wait_tags([('A', 0)])
    k("s_barrier")
    for b in range(NST):
        wait_tags([('B', b)] + ([('A', b + 1)] if b + 1 < NST else []))
        if b == 9: stamp(k, 2, flag='pstamp')
        k("s_barrier")
        if b == 8: stamp(k, 0, flag='pstamp')
        if b == 9: stamp(k, 3, flag='pstamp')
        if b + 2 < NST: issueB(b + 2)
        if b + 3 < NST: issueA(b + 3)
        if b == 8: stamp(k, 1, flag='pstamp')
    if 'pstamp' in FLAGS:
        stamp_store(k, 4, 12, 2, 18, vt=150, flag='pstamp')
    k("s_endpgm")
    k.label("qkv_xform")
    TP = [48, 64]
    XR_ = 16
    OUT = 32
    k(f"""
    v_and_b32 v10, 0x70, v8
    v_lshlrev_b32 v10, 1, v10
    v_add_u32 v10, {TBL}, v10
    v_lshlrev_b32 v11, 4, v2
    v_add_u32 v11, s27, v11            ; w*1024 + lane*16
    s_barrier
    """)
    def tabs(s):
        T = TP[s & 1]
        k(f"ds_read_b128 v[{T}:{T+3}], v10 offset:{256*s}")
        k(f"ds_read_b128 v[{T+4}:{T+7}], v10 offset:{256*s + 16}")
        k(f"ds_read_b128 v[{T+8}:{T+11}], v10 offset:{4096 + 256*s}")
        k(f"ds_read_b128 v[{T+12}:{T+15}], v10 offset:{4096 + 256*s + 16}")
    tabs(0)
    for s_ in range(NST):
        T = TP[s_ & 1]
        base = (s_ & 3)*A_SLOT
        for p in range(4):
            k(f"ds_read_b128 v[{XR_+4*p}:{XR_+4*p+3}], v11 offset:{base + p*4096}")
        nt = 0
        if s_ + 1 < NST:
            tabs(s_ + 1); nt = 4
        for p in range(4):
            k(f"s_waitcnt lgkmcnt({3 - p + nt + p})")
            for j in range(4):
                x = XR_ + 4*p + j; o = OUT + 4*p + j
                k(f"v_fma_mix_f32 v{o}, v{x}, v{T+2*j}, v{T+8+2*j} op_sel:[0,0,0] op_sel_hi:[1,0,0]")
                k(f"v_fma_mix_f32 v{x}, v{x}, v{T+2*j+1}, v{T+8+2*j+1} op_sel:[1,0,0] op_sel_hi:[1,0,0]")
                k(f"v_cvt_pk_bf16_f32 v{o}, v{o}, v{x}")
            k(f"ds_write_b128 v11, v[{OUT+4*p}:{OUT+4*p+3}] offset:{base + p*4096}")
        k("s_waitcnt lgkmcnt(0)")
        k("s_barrier")
    k.label("qkv_kernel_end")
    k("s_endpgm")
    def qkeep(l):
        if 'q_nomfma' in FLAGS and 'v_mfma' in l: return False
        if 'q_nords' in FLAGS and ('ds_read_b64_tr' in l or ('ds_read_b128' in l and 'v10' not in l)): return False
        if 'q_noB' in FLAGS and 'v9, s[8:11]' in l: return False
        if 'q_noA' in FLAGS and 'buffer_load_dwordx4' in l and ', v8, s[12:15]' in l: return False
        if 'q_nowr' in FLAGS and 'ds_write_b128' in l: return False
        if 'q_notr' in FLAGS and ('v_fma_mix' in l): return False
        if 'q_noxr' in FLAGS and 'ds_read_b128' in l and (' v10 ' in l or ' v11 ' in l): return False
        return True
    k.lines = [l for l in k.lines if qkeep(l)]
    finish(k, (256,1,1), (768,1,1), B_BASE + 3*B_SLOT + 8192, 168 if 'stamp' in FLAGS else 160, 102 if 'stamp' in FLAGS else 40)

def gen_qkv3():
    k = K("qkv_kernel")
    M32 = 'q3_32' in FLAGS
    NST = 16
    A_SLOT = 16384
    B_BASE = 65536
    B_SLOT = 24576
    k(f"""
    s_cmp_ge_u32 s2, 256
    s_cbranch_scc1 qkv_kernel_end
    s_load_dwordx2 s[4:5], s[0:1], {KA_WQKV}
    s_load_dwordx2 s[6:7], s[0:1], {KA_WS}
    v_lshrrev_b32 v1, 6, v0
    v_and_b32 v2, 63, v0               ; lane
    s_and_b32 s20, s2, 7               ; x
    s_lshr_b32 s21, s2, 3              ; j
    v_readfirstlane_b32 s18, v1
    s_and_b32 s16, s20, 1
    s_lshl_b32 s16, s16, 3
    s_and_b32 s22, s21, 7
    s_add_u32 s16, s16, s22            ; bm
    s_lshr_b32 s17, s20, 1
    s_lshl_b32 s17, s17, 2
    s_lshr_b32 s22, s21, 3
    s_add_u32 s17, s17, s22            ; bn
    s_cmp_ge_u32 s18, 4
    s_cbranch_scc1 qkv_producer
    s_lshr_b32 s19, s18, 1             ; wm
    s_and_b32 s23, s18, 1              ; hd
    s_lshl_b32 s24, s19, 13            ; wm*64*128
    """)
    if M32:
        k(f"""
        v_and_b32 v3, 31, v2               ; t
        v_lshrrev_b32 v4, 5, v2            ; hh
        v_lshrrev_b32 v5, 1, v3
        v_and_b32 v5, 7, v5                ; f = (t>>1)&7
        v_xor_b32 v5, v5, v4               ; hh ^ f
        v_lshlrev_b32 v5, 4, v5
        v_lshl_add_u32 v5, v3, 7, v5
        v_add_u32 v8, s24, v5              ; vA[0]
        v_xor_b32 v9, 32, v8
        v_xor_b32 v10, 64, v8
        v_xor_b32 v11, 0x60, v8
        v_lshrrev_b32 v5, 2, v2
        v_and_b32 v5, 3, v5                ; r
        v_lshl_add_u32 v6, v4, 3, v5       ; 8hh + r
        v_lshlrev_b32 v6, 7, v6            ; *128
        v_lshrrev_b32 v5, 1, v5            ; r>>1
        v_xor_b32 v5, s23, v5              ; ^ hd
        v_lshl_add_u32 v6, v5, 6, v6
        v_lshrrev_b32 v5, 4, v2
        v_and_b32 v5, 1, v5                ; ng
        v_lshl_add_u32 v6, v5, 5, v6
        v_and_b32 v5, 3, v2                ; c
        v_lshl_add_u32 v6, v5, 3, v6
        v_add_u32 v12, {B_BASE}, v6
        v_add_u32 v14, {B_BASE + 2*B_SLOT}, v6
        """)
    else:
        k(f"""
        v_and_b32 v3, 15, v2               ; n
        v_lshrrev_b32 v4, 4, v2            ; g
        v_lshrrev_b32 v5, 1, v3            ; f = n>>1
        v_xor_b32 v5, v5, v4               ; g ^ f
        v_lshlrev_b32 v5, 4, v5
        v_lshl_add_u32 v5, v3, 7, v5
        v_add_u32 v8, s24, v5              ; vA[ks=0]
        v_xor_b32 v9, 64, v8               ; ks=1
        v_lshrrev_b32 v5, 2, v2
        v_and_b32 v5, 3, v5                ; r
        v_lshl_add_u32 v6, v4, 3, v5       ; 8g + r
        v_lshlrev_b32 v6, 7, v6            ; *128
        v_lshrrev_b32 v5, 1, v5            ; r>>1
        v_and_b32 v7, 1, v4                ; g&1
        v_xor_b32 v7, s23, v7              ; ^ hd
        v_lshl_add_u32 v5, v7, 1, v5       ; (2hd) ^ f2
        v_lshl_add_u32 v6, v5, 5, v6
        v_and_b32 v5, 3, v2                ; c
        v_lshl_add_u32 v6, v5, 3, v6
        v_add_u32 v12, {B_BASE}, v6
        v_xor_b32 v13, 32, v12                      ; jj1
        v_add_u32 v14, {B_BASE + 2*B_SLOT}, v6      ; slots 2/3
        v_xor_b32 v15, 32, v14
        """)
    AS = [20, 60]; BS = [36, 76]; ACC = 100
    FOLD = not (FLAGS & {'q3ln', 'p_v2', 'p_v3'})
    BI = 196
    MD, MC, MA, MT, MX = 196, 228, 232, 240, 248
    if FOLD:
        k(f"""
        s_load_dwordx2 s[36:37], s[0:1], {KA_C}
        s_load_dwordx2 s[38:39], s[0:1], {KA_WMOD}
        s_lshl_b32 s29, s20, 7
        s_lshl_b32 s30, s18, 5
        s_add_u32 s29, s29, s30            ; row0
        s_lshl_b32 s28, s29, 1             ; c soffset
        v_lshlrev_b32 v16, 4, v4           ; c voffset: q*16
        s_mov_b32 s30, {8*12288}
        v_mul_lo_u32 v17, v4, s30
        v_lshl_add_u32 v17, v3, 4, v17
        v_lshlrev_b32 v18, 5, v3
        s_mul_i32 s29, s29, 12288
        s_lshl_b32 s30, s21, 8
        s_add_u32 s29, s29, s30
        s_add_u32 s29, s29, 4096
        s_lshl_b32 s31, s20, 2
        s_add_u32 s31, s31, s18
        s_lshl_b32 s31, s31, 14
        s_lshl_b32 s30, s21, 9
        s_add_u32 s31, s31, s30
        s_add_u32 s31, s31, {WS_PM}
        s_lshl_b32 s30, s23, 7
        v_lshl_add_u32 v19, v4, 4, s30
        v_lshl_add_u32 v7, v3, 2, s30
        s_mov_b32 s30, 0xbfb8aa3b          ; -log2(e)
        s_waitcnt lgkmcnt(0)
        """)
        srd(k, 40, 36, 2048)
        srd(k, 44, 38, 1024*6144*2)
        if 'q_nom' not in FLAGS:
            k(f"buffer_load_dwordx4 v[{MC}:{MC+3}], v16, s[40:43], s28 offen")
            for i in range(8):
                k(f"buffer_load_dwordx4 v[{MD+4*i}:{MD+4*i+3}], v17, s[44:47], s29 offen")
                k(f"s_add_u32 s29, s29, 12288")
    for i in range(96):
        k(f"v_mov_b32 v{ACC+i}, 0")
    lg = []; done = [-1]
    def ds(tag, txt):
        lg.append(tag); k(txt)
    def need(tags):
        idx = max(i for i, t in enumerate(lg) if t in tags)
        if idx <= done[0]: return
        n = min(15, len(lg) - 1 - idx)
        done[0] = len(lg) - 1 - n
        k(f"s_waitcnt lgkmcnt({n})")
    NSTEP = 2*NST
    def rd(n):
        st, ks = divmod(n, 2)
        slot = st & 3
        A = AS[n & 1]; B = BS[n & 1]
        ra = []; rb = []
        for i in range(4):
            if M32:
                kk, ti = divmod(i, 2)
                ra.append((('A', n, i), f"ds_read_b128 v[{A+4*i}:{A+4*i+3}], v{8+2*ks+kk} offset:{slot*A_SLOT + ti*4096}"))
            else:
                ra.append((('A', n, i), f"ds_read_b128 v[{A+4*i}:{A+4*i+3}], v{8+ks} offset:{slot*A_SLOT + i*2048}"))
        for f in range(6):
            for j in range(2):
                d = B + 4*f + 2*j
                if M32:
                    kk, seg = divmod(f, 3)
                    rb.append((('B', n, f), f"ds_read_b64_tr_b16 v[{d}:{d+1}], v{12+2*(slot>>1)} offset:{(slot&1)*B_SLOT + seg*8192 + (2*ks+kk)*2048 + j*512}"))
                else:
                    seg, jj = divmod(f, 2)
                    rb.append((('B', n, f), f"ds_read_b64_tr_b16 v[{d}:{d+1}], v{12+2*(slot>>1)+jj} offset:{(slot&1)*B_SLOT + seg*8192 + ks*4096 + j*512}"))
        if M32:
            return ra[0:2] + rb[0:6] + ra[2:4] + rb[6:12]
        return [ra[0]] + rb[0:2] + ra[1:4] + rb[2:12]
    def mfs(n):
        A = AS[n & 1]; B = BS[n & 1]
        r = []
        if M32:
            for kk in range(2):
                for seg in range(3):
                    for ti in range(2):
                        a = ACC + 16*(2*seg + ti)
                        f = 3*kk + seg; i = 2*kk + ti
                        W = f"v[{B+4*f}:{B+4*f+3}]"; H = f"v[{A+4*i}:{A+4*i+3}]"
                        x, y = (W, H) if seg < 2 else (H, W)
                        r.append(([('A', n, i), ('B', n, f)], f"v_mfma_f32_32x32x16_bf16 v[{a}:{a+15}], {x}, {y}, v[{a}:{a+15}]"))
        else:
            for f in range(6):
                for i in (range(4) if f % 2 == 0 else range(3, -1, -1)):
                    a = ACC + 4*(4*f + i)
                    W = f"v[{B+4*f}:{B+4*f+3}]"; H = f"v[{A+4*i}:{A+4*i+3}]"
                    x, y = (W, H) if f < 4 else (H, W)
                    r.append(([('A', n, i), ('B', n, f)], f"v_mfma_f32_16x16x32_bf16 v[{a}:{a+3}], {x}, {y}, v[{a}:{a+3}]"))
        return r
    k("s_waitcnt lgkmcnt(0)")
    srd(k, 12, 6, WS_SIZE)
    if 'noprio' not in FLAGS: k("s_setprio 3")
    stamp(k, 0)
    k("s_barrier")
    stamp(k, 1)
    for t, x in rd(0): ds(t, x)
    fill = []
    if FOLD and 'q_nom' not in FLAGS:
        fill.append("s_waitcnt vmcnt(0)")
        for j in range(4):
            fill.append(f"v_lshlrev_b32 v{MT+2*j}, 16, v{MC+j}")
            fill.append(f"v_and_b32 v{MT+2*j+1}, 0xffff0000, v{MC+j}")
        for i in range(8): fill.append(f"v_mul_f32 v{MA+i}, s30, v{MT+i}")
        for i in range(8): fill.append(f"v_exp_f32 v{MA+i}, v{MA+i}")
        for i in range(8): fill.append(f"v_add_f32 v{MA+i}, 1.0, v{MA+i}")
        for i in range(8): fill.append(f"v_rcp_f32 v{MA+i}, v{MA+i}")
        for i in range(8): fill.append(f"v_mul_f32 v{MT+i}, v{MT+i}, v{MA+i}")
        for i in range(8): fill.append(f"v_cvt_pk_bf16_f32 v{MT+i}, v{MT+i}, v{MT+i}")
        for i in range(8): fill.append(f"v_lshlrev_b32 v{MT+i}, 16, v{MT+i}")
        for i in range(8):
            for j in range(4):
                src = MD + 4*i + j
                op = 'v_mul_f32' if i == 0 else 'v_fmac_f32'
                fill.append(f"v_lshlrev_b32 v{MX}, 16, v{src}")
                fill.append(f"v_and_b32 v{MX+1}, 0xffff0000, v{src}")
                fill.append(f"{op} v{MA+2*j}, v{MT+i}, v{MX}")
                fill.append(f"{op} v{MA+2*j+1}, v{MT+i}, v{MX+1}")
        for sw in ('16', '32'):
            for j in range(8): fill.append(f"v_mov_b32 v{MT+j}, v{MA+j}")
            for j in range(8): fill.append(f"v_permlane{sw}_swap_b32 v{MA+j}, v{MT+j}")
            for j in range(8): fill.append(f"v_add_f32 v{MA+j}, v{MA+j}, v{MT+j}")
        fill.append(f"""s_mov_b64 exec, 0xffff
        buffer_store_dwordx4 v[{MA}:{MA+3}], v18, s[12:15], s31 offen
        buffer_store_dwordx4 v[{MA+4}:{MA+7}], v18, s[12:15], s31 offen offset:16
        s_mov_b64 exec, -1""")
    FILL0 = int(os.environ.get('FILL0', '10')); ADD0 = 29
    BI = MD
    def accof(idx):
        f, i = divmod(idx, 4)
        if f % 2: i = 3 - i
        return f, ACC + 4*(4*f + i)
    for n in range(NSTEP):
        st, ks = divmod(n, 2)
        R = rd(n + 1) if n + 1 < NSTEP else []
        M = mfs(n)
        nm = len(M)
        bnd = (ks == 1 and n + 1 < NSTEP)
        if M32:
            plan = [0, 2, 2, 2, 2, 2, 2, 2, 2, 0, 0, 0] if bnd else [2, 2, 2, 2, 2, 2, 2, 2, 0, 0, 0, 0]
            bpos = 1
        else:
            plan = [0, 0, 0] + [1]*16 + [0]*5 if bnd else [1]*16 + [0]*8
            bpos = 3
        for i in range(nm):
            if bnd and i == bpos:
                need([t for t in lg if t[1] == n])
                k("s_barrier")
            need(M[i][0])
            k(M[i][1])
            for _ in range(plan[i]):
                if R:
                    t, x = R.pop(0); ds(t, x)
            for _ in range(1 if plan[i] else 2):
                if n >= FILL0 and fill: k(fill.pop(0))
            if FOLD and n == ADD0 - 1 and i >= 18:
                assert not fill
                f = i - 18
                if f < 4: ds(('P', -1, f), f"ds_read_b128 v[{BI+4*f}:{BI+4*f+3}], v19 offset:{(f>>1)*256 + (f&1)*64}")
                else: ds(('P', -1, f), f"ds_read_b32 v{BI+16+f-4}, v7 offset:{512 + (f&1)*64}")
            if FOLD and ADD0 <= n < ADD0 + 2:
                f, a = accof((i - 10) % 24)
                need([('P', -1, f)])
                for e in range(2*(n - ADD0), 2*(n - ADD0) + 2):
                    k(f"v_add_f32 v{a+e}, v{a+e}, v{BI + 4*f + e if f < 4 else BI + 16 + f - 4}")
        assert not R
    stamp(k, 2)
    k(f"""
    s_lshl_b32 s26, s17, 1
    s_add_u32 s26, s26, s23            ; head
    s_lshl_b32 s26, s26, 17
    s_lshl_b32 s27, s16, 2
    s_lshl_b32 s25, s19, 1
    s_add_u32 s27, s27, s25
    s_lshl_b32 s27, s27, 11
    s_add_u32 s26, s26, s27
    s_add_u32 s28, s26, {WS_Q}
    s_add_u32 s29, s26, {WS_K}
    s_add_u32 s30, s26, {WS_V}
    s_mov_b32 s34, {f32bits(QK_SCALE)}
    """)
    if M32:
        k("v_lshlrev_b32 v3, 4, v2            ; lane*16")
        k("s_nop 7")
        cnt = 0
        for seg in range(3):
            for ti in range(2):
                a = ACC + 16*(2*seg + ti)
                if seg == 0:
                    for e in range(16):
                        k(f"v_mul_f32 v{a+e}, s34, v{a+e}")
                for m in range(2):
                    d = 20 + 4*cnt; cnt += 1
                    for e in range(4):
                        k(f"v_cvt_pk_bf16_f32 v{d+e}, v{a+8*m+2*e}, v{a+8*m+2*e+1}")
                    k(f"buffer_store_dwordx4 v[{d}:{d+3}], v3, s[12:15], s{28+seg} offen offset:{ti*2048 + m*1024}")
    else:
        k(f"""
        v_and_b32 v5, 7, v3
        v_lshrrev_b32 v6, 3, v3
        v_lshl_add_u32 v5, v6, 4, v5       ; (n&7) + 16(n>>3)
        v_lshl_add_u32 v5, v4, 5, v5       ; + g*32
        v_lshlrev_b32 v5, 4, v5
        v_lshl_add_u32 v6, v4, 5, v3       ; g*32 + n
        v_lshlrev_b32 v6, 4, v6
        s_nop 4
        """)
        cnt = 0
        for seg in range(2):
            for i in range(4):
                a0 = ACC + 4*(4*(2*seg) + i); a1 = ACC + 4*(4*(2*seg+1) + i)
                if seg == 0:
                    for e in range(4):
                        k(f"v_mul_f32 v{a0+e}, s34, v{a0+e}")
                        k(f"v_mul_f32 v{a1+e}, s34, v{a1+e}")
                d = 20 + 4*cnt; cnt += 1
                k(f"v_cvt_pk_bf16_f32 v{d}, v{a0}, v{a0+1}")
                k(f"v_cvt_pk_bf16_f32 v{d+1}, v{a0+2}, v{a0+3}")
                k(f"v_cvt_pk_bf16_f32 v{d+2}, v{a1}, v{a1+1}")
                k(f"v_cvt_pk_bf16_f32 v{d+3}, v{a1+2}, v{a1+3}")
                k(f"buffer_store_dwordx4 v[{d}:{d+3}], v5, s[12:15], s{28+seg} offen offset:{(i>>1)*2048 + (i&1)*128}")
        for jj in range(2):
            for T in range(2):
                a0 = ACC + 4*(4*(4+jj) + 2*T); a1 = a0 + 4
                d = 20 + 4*cnt; cnt += 1
                k(f"v_cvt_pk_bf16_f32 v{d}, v{a0}, v{a0+1}")
                k(f"v_cvt_pk_bf16_f32 v{d+1}, v{a0+2}, v{a0+3}")
                k(f"v_cvt_pk_bf16_f32 v{d+2}, v{a1}, v{a1+1}")
                k(f"v_cvt_pk_bf16_f32 v{d+3}, v{a1+2}, v{a1+3}")
                k(f"buffer_store_dwordx4 v[{d}:{d+3}], v6, s[12:15], s30 offen offset:{T*2048 + jj*256}")
    if 'stamp' in FLAGS:
        k("s_waitcnt vmcnt(0)")
        stamp(k, 3)
        stamp_store(k, 4, 12, 2, 18, vt=196)
    k("s_endpgm")
    k.label("qkv_producer")
    k(f"""
    s_and_b32 s19, s18, 3              ; w
    v_lshrrev_b32 v3, 3, v2            ; l>>3
    s_lshl_b32 s23, s19, 3
    v_add_u32 v7, s23, v3              ; 8w + (l>>3)   (B row)
    v_lshrrev_b32 v4, 4, v2            ; l>>4
    s_and_b32 s24, s19, 1
    """)
    if M32:
        k("v_mov_b32 v3, v7")
    else:
        k(f"""
        s_lshl_b32 s23, s24, 4
        s_lshr_b32 s25, s19, 1
        s_lshl_b32 s25, s25, 3
        s_add_u32 s23, s23, s25
        v_add_u32 v3, s23, v3              ; token = (l>>3) + 16(w&1) + 8(w>>1)
        """)
    k(f"""
    s_lshl_b32 s24, s24, 2
    v_add_u32 v5, s24, v4              ; 4(w&1) + (l>>4)
    v_and_b32 v6, 7, v2
    v_xor_b32 v5, v5, v6
    v_lshlrev_b32 v5, 4, v5
    v_lshl_add_u32 v8, v3, 11, v5      ; vA
    s_mov_b32 s25, 6144
    v_mul_lo_u32 v9, v7, s25
    """)
    if M32:
        k(f"""
        v_lshrrev_b32 v5, 2, v2
        v_xor_b32 v5, v5, v4
        v_and_b32 v5, 1, v5                ; hd
        v_lshl_add_u32 v9, v5, 6, v9
        v_and_b32 v5, 3, v2
        v_lshl_add_u32 v9, v5, 4, v9       ; vB
        """)
    else:
        k(f"""
        v_and_b32 v5, 1, v4
        v_lshlrev_b32 v5, 1, v5
        v_xor_b32 v5, v5, v6
        v_xor_b32 v5, s24, v5              ; (l&7) ^ ((l>>4)&1)<<1 ^ (w&1)<<2
        v_lshl_add_u32 v9, v5, 4, v9       ; vB
        """)
    k(f"""
    s_lshl_b32 s25, s16, 18
    s_add_u32 s25, s25, {WS_H}
    s_lshl_b32 s26, s17, 7
    s_lshl_b32 s27, s19, 10            ; w*1024
    s_waitcnt lgkmcnt(0)
    """)
    LIN = 'q3ln' not in FLAGS
    srd(k, 8, 4, 1024*3072*2)
    srd(k, 12, 6, WS_SIZE)
    if LIN:
        k(f"""
        v_lshlrev_b32 v8, 4, v2
        v_add_u32 v8, s27, v8
        s_mul_i32 s26, s17, {16*24576}
        s_add_u32 s26, s26, {WS_WQ}
        """)
    vm = []
    def wait_tags(tags):
        idx = max(i for i, t in enumerate(vm) if t in tags)
        n = len(vm) - 1 - idx
        assert n <= 63
        k(f"s_waitcnt vmcnt({n})")
    def boff(i): return (i & 1)*32*6144 + (i >> 1)*2048
    def issue(s):
        for p in range(4):
            k(f"s_add_u32 m0, s27, {(s & 3)*A_SLOT + p*4096}")
            k(f"s_add_u32 s28, s25, {s*16384 + p*4096 if LIN else p*65536 + s*128}")
            k(f"buffer_load_dwordx4 v8, s[12:15], s28 offen lds")
        for i in range(6):
            k(f"s_add_u32 m0, s27, {B_BASE + (s & 3)*B_SLOT + i*4096}")
            if LIN:
                k(f"s_add_u32 s28, s26, {s*24576 + i*4096}")
                k(f"buffer_load_dwordx4 v8, s[12:15], s28 offen lds")
            else:
                k(f"s_add_u32 s28, s26, {s*393216 + boff(i)}")
                k(f"buffer_load_dwordx4 v9, s[8:11], s28 offen lds")
        vm.extend([('S', s)]*10)
    issue(0); issue(1); issue(2)
    if FOLD:
        k(f"""
        s_min_u32 s29, s19, 2
        s_mov_b32 s30, {8*12288}
        v_mul_lo_u32 v10, v4, s30
        v_and_b32 v11, 15, v2
        v_lshlrev_b32 v11, 4, v11
        v_add_u32 v10, v10, v11
        s_lshl_b32 s30, s29, 8
        v_add_u32 v11, s30, v11
        s_lshl_b32 s29, s29, 12
        s_lshl_b32 s30, s17, 8
        s_add_u32 s29, s29, s30
        s_add_u32 s29, s29, {WS_PB}
        """)
    def bload():
        for i in range(8):
            k(f"buffer_load_dwordx4 v[{32+4*i}:{35+4*i}], v10, s[12:15], s29 offen")
            k(f"s_add_u32 s29, s29, 12288")
        vm.extend([('B', 0)]*8)
    def bsum():
        st_ = 1
        while st_ < 8:
            for i in range(0, 8, 2*st_):
                for e in range(4):
                    k(f"v_add_f32 v{32+4*i+e}, v{32+4*i+e}, v{32+4*(i+st_)+e}")
            st_ *= 2
        for sw in ('16', '32'):
            for j in range(4):
                k(f"v_mov_b32 v{36+j}, v{32+j}")
            k("s_nop 1")
            for j in range(4):
                k(f"v_permlane{sw}_swap_b32 v{32+j}, v{36+j}")
            for j in range(4):
                k(f"v_add_f32 v{32+j}, v{32+j}, v{36+j}")
    for b in range(NST):
        wait_tags([('S', b)])
        if b == 9: stamp(k, 2, flag='pstamp')
        k("s_barrier")
        if b == 8: stamp(k, 0, flag='pstamp')
        if b == 9: stamp(k, 3, flag='pstamp')
        if b + 3 < NST: issue(b + 3)
        if b == 8: stamp(k, 1, flag='pstamp')
        if FOLD:
            if b == 6: bload()
            if b == 11: bsum()
            if b == 13:
                k("ds_write_b128 v11, v[32:35]")
                k("s_waitcnt lgkmcnt(0)")
    if 'pstamp' in FLAGS:
        stamp_store(k, 4, 12, 2, 18, vt=150, flag='pstamp')
    k.label("qkv_kernel_end")
    k("s_endpgm")
    finish(k, (256,1,1), (512,1,1), B_BASE + 4*B_SLOT, 252 if FOLD else (200 if 'stamp' in FLAGS else 196), 102 if FLAGS & {'stamp', 'pstamp'} else 48)

def gen_attn():
    k = K("attn_kernel")
    Q, NEGM, SA, SB, P, O, Lr, ONES = 8, 16, 32, 48, 64, 72, 88, 92
    KB = [96, 104]; VB = [112, 120]
    S = [SA, SB]
    SLOT = 32768
    k(f"""
    s_cmp_ge_u32 s2, 256
    s_cbranch_scc1 attn_kernel_end
    s_load_dwordx2 s[6:7], s[0:1], {KA_WS}
    s_load_dwordx4 s[36:39], s[0:1], {KA_WG}
    s_load_dwordx2 s[52:53], s[0:1], {KA_WD}
    s_load_dwordx2 s[54:55], s[0:1], {KA_WO}
    v_lshrrev_b32 v1, 6, v0
    v_and_b32 v6, 63, v0               ; lane
    s_and_b32 s20, s2, 7               ; x
    s_lshr_b32 s21, s2, 3              ; j
    v_readfirstlane_b32 s18, v1
    s_lshr_b32 s22, s21, 3
    s_lshl_b32 s22, s22, 3
    s_add_u32 s16, s20, s22            ; head
    s_and_b32 s17, s21, 7              ; qblock
    v_lshlrev_b32 v5, 4, v6            ; lane*16
    s_lshl_b32 s23, s16, 17            ; head*64*2048
    s_lshl_b32 s24, s17, 3
    s_add_u32 s24, s24, s18
    s_lshl_b32 s25, s24, 11
    s_add_u32 s25, s25, s23
    s_add_u32 s25, s25, {WS_Q}         ; Q soffset
    s_lshl_b32 s26, s18, 11            ; wave*2048
    s_add_u32 s26, s26, s23
    s_add_u32 s27, s26, {WS_V}
    s_add_u32 s26, s26, {WS_K}
    s_lshl_b32 s28, s18, 12
    s_waitcnt lgkmcnt(0)
    """)
    srd(k, 12, 6, WS_SIZE)
    PF = 128
    k(f"""
    s_lshl_b32 s56, s21, 3
    s_add_u32 s56, s56, s18
    s_and_b32 s57, s56, 127            ; kq8
    s_cmp_ge_u32 s56, 128
    s_cselect_b32 s36, s38, s36
    s_cselect_b32 s37, s39, s37
    s_cselect_b32 s58, 0x800000, 0
    """)
    srd(k, 40, 36, 1024*3584*2)
    srd(k, 44, 52, 3584*1024*2)
    srd(k, 48, 54, 1024*1024*2)
    k(f"""
    s_mul_i32 s59, s57, {8*7168}
    s_mul_i32 s60, s20, {7*128}
    s_add_u32 s59, s59, s60
    s_mul_i32 s60, s20, {7*4*32768}
    s_add_u32 s60, s60, s58
    s_lshl_b32 s57, s57, 8
    s_add_u32 s60, s60, s57
    s_add_u32 s60, s60, {WS_G}
    s_mul_i32 s61, s20, {28*32768}
    s_mul_i32 s62, s56, 3584
    s_add_u32 s61, s61, s62
    s_and_b32 s62, s20, 1
    s_lshl_b32 s62, s62, 10
    s_lshl_b32 s63, s56, 13
    s_add_u32 s62, s62, s63
    v_lshrrev_b32 v1, 3, v6            ; l>>3
    v_and_b32 v7, 7, v6
    s_mov_b32 s63, 7168
    v_mul_lo_u32 v{PF}, v1, s63
    v_lshl_add_u32 v{PF}, v7, 4, v{PF}
    v_lshrrev_b32 v{PF+1}, 1, v7
    v_lshlrev_b32 v{PF+1}, 15, v{PF+1}
    v_lshl_add_u32 v{PF+1}, v1, 5, v{PF+1}
    v_and_b32 v7, 1, v6
    v_lshl_add_u32 v{PF+1}, v7, 4, v{PF+1}
    v_lshlrev_b32 v{PF+2}, 3, v6                ; lane*8
    """)
    def side():
        l1, l2, l3 = k.newlabel("sj"), k.newlabel("sj"), k.newlabel("sj")
        k(f"""
        s_cmp_eq_u32 s33, 0
        s_cbranch_scc1 {l1}
        buffer_store_dwordx4 v[{PF+4}:{PF+7}], v{PF+1}, s[12:15], s60 offen {os.environ.get('SJST','sc1')}
        s_add_u32 s60, s60, {4*32768}
        """)
        k.label(l1)
        k(f"""
        s_cmp_eq_u32 s33, 7
        s_cbranch_scc1 {l3}
        buffer_load_dwordx4 v[{PF+4}:{PF+7}], v{PF}, s[40:43], s59 offen
        buffer_load_dwordx2 v[{PF+8}:{PF+9}], v{PF+2}, s[44:47], s61 offen
        s_add_u32 s59, s59, 128
        s_add_u32 s61, s61, 512
        s_cmp_ge_u32 s33, 4
        s_cbranch_scc1 {l3}
        buffer_load_dwordx4 v[{PF+12}:{PF+15}], v5, s[48:51], s62 offen
        s_add_u32 s62, s62, 2048
        """)
        k.label(l3)
    def dma(slot_sreg_or_imm):
        if isinstance(slot_sreg_or_imm, int):
            k(f"s_add_u32 m0, s28, {slot_sreg_or_imm}")
        else:
            k(f"s_add_u32 m0, s28, {slot_sreg_or_imm}")
        k("s_nop 0")
        k("buffer_load_dwordx4 v5, s[12:15], s26 offen lds")
        k("buffer_load_dwordx4 v5, s[12:15], s26 offen offset:1024 lds")
        k("s_add_u32 m0, m0, 2048")
        k("s_add_u32 s26, s26, 16384")
        k("buffer_load_dwordx4 v5, s[12:15], s27 offen lds")
        k("buffer_load_dwordx4 v5, s[12:15], s27 offen offset:1024 lds")
        k("s_add_u32 s27, s27, 16384")
    FOLD = not (FLAGS & {'q3ln', 'p_v2', 'p_v3', 'q_v1', 'q_v2'})
    if FOLD:
        k(f"""
        s_lshl_b32 s64, s2, 3
        s_add_u32 s64, s64, s18
        s_lshl_b32 s65, s64, 3
        s_add_u32 s65, s65, {WS_PM}
        s_lshl_b32 s64, s64, 2
        s_add_u32 s64, s64, {WS_MOD + 4096}
        v_and_b32 v1, 31, v6
        v_lshlrev_b32 v1, 14, v1
        v_lshrrev_b32 v7, 5, v6
        v_lshl_add_u32 v1, v7, 2, v1
        buffer_load_dword v{PF+10}, v1, s[12:15], s65 offen
        """)
    k(f"""
    buffer_load_dwordx4 v[{Q}:{Q+3}], v5, s[12:15], s25 offen
    buffer_load_dwordx4 v[{Q+4}:{Q+7}], v5, s[12:15], s25 offen offset:1024
    """)
    dma(0)
    dma(SLOT)
    k(f"""
    v_lshrrev_b32 v1, 2, v6
    v_xor_b32 v1, v1, v6
    v_and_b32 v1, 4, v1
    v_cmp_eq_u32 vcc, 0, v1
    v_mov_b32 v7, 0x3f803f80
    s_nop 1
    v_cndmask_b32 v{ONES}, 0, v7, vcc
    v_cndmask_b32 v{ONES+1}, 0, v7, vcc
    v_cndmask_b32 v{ONES+2}, 0, v7, vcc
    v_cndmask_b32 v{ONES+3}, 0, v7, vcc
    v_mov_b32 v2, v5
    v_add_u32 v3, {SLOT}, v5
    s_mov_b32 s30, 0
    s_mov_b32 s31, {SLOT}
    s_mov_b32 s32, {2*SLOT}
    s_mov_b32 s33, 0                   ; stage
    """)
    for i in range(16):
        k(f"v_mov_b32 v{O+i}, 0")
    for i in range(4):
        k(f"v_mov_b32 v{Lr+i}, 0")
    stamp(k, 0, flag='astamp')
    k(f"""
    s_waitcnt vmcnt(4)
    s_barrier
    """)
    stamp(k, 1, flag='astamp')
    k(f"""
    ds_read_b128 v[{KB[0]}:{KB[0]+3}], v2 offset:0
    ds_read_b128 v[{KB[0]+4}:{KB[0]+7}], v2 offset:1024
    ds_read_b128 v[{KB[1]}:{KB[1]+3}], v2 offset:4096
    ds_read_b128 v[{KB[1]+4}:{KB[1]+7}], v2 offset:{4096+1024}
    ds_read_b128 v[{VB[0]}:{VB[0]+3}], v2 offset:2048
    ds_read_b128 v[{VB[0]+4}:{VB[0]+7}], v2 offset:3072
    s_waitcnt lgkmcnt(4)
    v_mfma_f32_32x32x16_bf16 v[{SA}:{SA+15}], v[{KB[0]}:{KB[0]+3}], v[{Q}:{Q+3}], 0
    v_mfma_f32_32x32x16_bf16 v[{SA}:{SA+15}], v[{KB[0]+4}:{KB[0]+7}], v[{Q+4}:{Q+7}], v[{SA}:{SA+15}]
    """)
    if FOLD:
        a, t = PF+10, PF+11
        k(f"""
        v_add_f32_dpp v{t}, v{a}, v{a} quad_perm:[1,0,3,2] row_mask:0xf bank_mask:0xf
        s_nop 1
        v_add_f32_dpp v{a}, v{t}, v{t} quad_perm:[2,3,0,1] row_mask:0xf bank_mask:0xf
        s_nop 1
        v_add_f32_dpp v{t}, v{a}, v{a} row_half_mirror row_mask:0xf bank_mask:0xf
        s_nop 1
        v_add_f32_dpp v{a}, v{t}, v{t} row_mirror row_mask:0xf bank_mask:0xf
        s_nop 0
        v_mov_b32 v{t}, v{a}
        s_nop 1
        v_permlane16_swap_b32 v{a}, v{t}
        s_nop 0
        v_add_f32 v{a}, v{a}, v{t}
        v_mov_b32 v{t}, v{a}
        s_nop 1
        v_permlane32_swap_b32 v{a}, v{t}
        v_mov_b32 v1, 0
        v_cvt_pk_bf16_f32 v{a}, v{a}, v{t}
        s_mov_b64 exec, 1
        buffer_store_dword v{a}, v1, s[12:15], s64 offen
        s_mov_b64 exec, -1
        """)
    else:
        k("s_nop 15\ns_nop 3")
    def tile_max(src, d, t):
        k(f"v_max3_f32 v{d}, v{src}, v{src+1}, v{src+2}")
        for i in range(3, 15, 2):
            k(f"v_max3_f32 v{d}, v{d}, v{src+i}, v{src+i+1}")
        k(f"v_max_f32 v{d}, v{d}, v{src+15}")
        k(f"v_mov_b32 v{t}, v{d}")
        k("s_nop 1")
        k(f"v_permlane32_swap_b32 v{d}, v{t}")
        k("s_nop 0")
        k(f"v_max_f32 v{d}, v{d}, v{t}")
    tile_max(SA, 1, 7)
    for i in range(16):
        k(f"v_sub_f32 v{NEGM+i}, 0, v1")
    k(f"""
    s_nop 1
    v_mfma_f32_32x32x16_bf16 v[{SA}:{SA+15}], v[{KB[0]}:{KB[0]+3}], v[{Q}:{Q+3}], v[{NEGM}:{NEGM+15}]
    v_mfma_f32_32x32x16_bf16 v[{SA}:{SA+15}], v[{KB[0]+4}:{KB[0]+7}], v[{Q+4}:{Q+7}], v[{SA}:{SA+15}]
    s_nop 11
    """)
    if 'a_old' not in FLAGS:
        k("s_nop 7")
        k(f"v_exp_f32 v{SA}, v{SA}")
        k(f"v_exp_f32 v{SA+1}, v{SA+1}")
        if 'a_prio' in FLAGS:
            k("s_cmp_lt_u32 s18, 4")
            k("s_cbranch_scc1 attn_noprio")
            k("s_setprio 1")
            k.label("attn_noprio")
        k(".p2align 3")
        if 'a_mis' in FLAGS: k("s_nop 0")
    k.label("attn_loop")
    for i in range(8):
        c = i & 1; n = c ^ 1
        Sc, Sn = S[c], S[n]
        Kn, Kc = KB[n], KB[c]
        Vc, Vn = VB[c], VB[n]
        k2 = ("v2", (i+2)*4096) if i + 2 < 8 else ("v3", (i+2-8)*4096)
        v1_ = ("v2", (i+1)*4096) if i + 1 < 8 else ("v3", (i+1-8)*4096)
        if i == 6:
            lab = k.newlabel("nodma")
            k(f"""
            s_waitcnt vmcnt(0)
            s_barrier
            s_cmp_ge_u32 s33, 6
            s_cbranch_scc1 {lab}
            """)
            dma("s32")
            k.label(lab)
            if 'noside' not in FLAGS: side()
        if 'a_old' in FLAGS:
            k(f"""
            s_waitcnt lgkmcnt(2)
            v_mfma_f32_32x32x16_bf16 v[{Sn}:{Sn+15}], v[{Kn}:{Kn+3}], v[{Q}:{Q+3}], v[{NEGM}:{NEGM+15}]
            """)
            for e in range(0, 4):
                k(f"v_exp_f32 v{Sc+e}, v{Sc+e}")
            k(f"v_mfma_f32_32x32x16_bf16 v[{Sn}:{Sn+15}], v[{Kn+4}:{Kn+7}], v[{Q+4}:{Q+7}], v[{Sn}:{Sn+15}]")
            k(f"ds_read_b128 v[{Kc}:{Kc+3}], {k2[0]} offset:{k2[1]}")
            k(f"ds_read_b128 v[{Kc+4}:{Kc+7}], {k2[0]} offset:{k2[1]+1024}")
            for e in range(4, 8):
                k(f"v_exp_f32 v{Sc+e}, v{Sc+e}")
            k(f"ds_read_b128 v[{Vn}:{Vn+3}], {v1_[0]} offset:{v1_[1]+2048}")
            k(f"ds_read_b128 v[{Vn+4}:{Vn+7}], {v1_[0]} offset:{v1_[1]+3072}")
            for e in range(4):
                k(f"v_cvt_pk_bf16_f32 v{P+e}, v{Sc+2*e}, v{Sc+2*e+1}")
            for e in range(8, 12):
                k(f"v_exp_f32 v{Sc+e}, v{Sc+e}")
            k("s_waitcnt lgkmcnt(4)")
            k(f"v_mfma_f32_32x32x16_bf16 v[{O}:{O+15}], v[{Vc}:{Vc+3}], v[{P}:{P+3}], v[{O}:{O+15}]")
            for e in range(12, 16):
                k(f"v_exp_f32 v{Sc+e}, v{Sc+e}")
            k(f"v_mfma_f32_16x16x32_bf16 v[{Lr}:{Lr+3}], v[{ONES}:{ONES+3}], v[{P}:{P+3}], v[{Lr}:{Lr+3}]")
            for e in range(4, 8):
                k(f"v_cvt_pk_bf16_f32 v{P+e}, v{Sc+2*e}, v{Sc+2*e+1}")
            k("s_nop 1")
            k(f"v_mfma_f32_32x32x16_bf16 v[{O}:{O+15}], v[{Vc+4}:{Vc+7}], v[{P+4}:{P+7}], v[{O}:{O+15}]")
            k(f"v_mfma_f32_16x16x32_bf16 v[{Lr}:{Lr+3}], v[{ONES}:{ONES+3}], v[{P+4}:{P+7}], v[{Lr}:{Lr+3}]")
            continue
        if i == 6: k(".p2align 3")
        def ex(regs):
            for r in regs: k(f"v_exp_f32 v{r}, v{r}")
        k("s_waitcnt lgkmcnt(2)")
        ex([Sc+2])
        k(f"v_mfma_f32_32x32x16_bf16 v[{Sn}:{Sn+15}], v[{Kn}:{Kn+3}], v[{Q}:{Q+3}], v[{NEGM}:{NEGM+15}]")
        ex([Sc+3, Sc+4, Sc+5, Sc+6])
        k(f"v_mfma_f32_32x32x16_bf16 v[{Sn}:{Sn+15}], v[{Kn+4}:{Kn+7}], v[{Q+4}:{Q+7}], v[{Sn}:{Sn+15}]")
        k(f"ds_read_b128 v[{Kc}:{Kc+3}], {k2[0]} offset:{k2[1]}")
        k(f"ds_read_b128 v[{Kc+4}:{Kc+7}], {k2[0]} offset:{k2[1]+1024}")
        ex([Sc+7, Sc+8])
        k(f"ds_read_b128 v[{Vn}:{Vn+3}], {v1_[0]} offset:{v1_[1]+2048}")
        k(f"ds_read_b128 v[{Vn+4}:{Vn+7}], {v1_[0]} offset:{v1_[1]+3072}")
        for e in range(4):
            k(f"v_cvt_pk_bf16_f32 v{P+e}, v{Sc+2*e}, v{Sc+2*e+1}")
        ex([Sc+9, Sc+10, Sc+11])
        k("s_waitcnt lgkmcnt(4)")
        k(f"v_mfma_f32_32x32x16_bf16 v[{O}:{O+15}], v[{Vc}:{Vc+3}], v[{P}:{P+3}], v[{O}:{O+15}]")
        ex([Sc+12, Sc+13, Sc+14, Sc+15])
        k(f"v_mfma_f32_16x16x32_bf16 v[{Lr}:{Lr+3}], v[{ONES}:{ONES+3}], v[{P}:{P+3}], v[{Lr}:{Lr+3}]")
        for e in range(4, 8):
            k(f"v_cvt_pk_bf16_f32 v{P+e}, v{Sc+2*e}, v{Sc+2*e+1}")
        ex([Sn, Sn+1])
        k(f"v_mfma_f32_32x32x16_bf16 v[{O}:{O+15}], v[{Vc+4}:{Vc+7}], v[{P+4}:{P+7}], v[{O}:{O+15}]")
        k(f"v_mfma_f32_16x16x32_bf16 v[{Lr}:{Lr+3}], v[{ONES}:{ONES+3}], v[{P+4}:{P+7}], v[{Lr}:{Lr+3}]")
    if FLAGS & {'a_nomfma','a_noexp','a_nods','a_nosum','a_nocvt','a_nopv'}:
        i0 = k.lines.index("attn_loop:")
        body = k.lines[i0:]
        def keep(l):
            if 'a_nomfma' in FLAGS and 'v_mfma' in l: return False
            if 'a_noexp' in FLAGS and 'v_exp' in l: return False
            if 'a_nods' in FLAGS and 'ds_read' in l: return False
            if 'a_nosum' in FLAGS and '16x16x32' in l: return False
            if 'a_nocvt' in FLAGS and 'v_cvt_pk' in l: return False
            if 'a_nopv' in FLAGS and 'v_mfma_f32_32x32x16_bf16 v[72:' in l: return False
            return True
        k.lines[i0:] = [l for l in body if keep(l)]
    k(f"""
    s_mov_b32 s34, s30
    s_mov_b32 s30, s31
    s_mov_b32 s31, s32
    s_mov_b32 s32, s34
    v_mov_b32 v2, v3
    v_add_u32 v3, s31, v5
    s_add_u32 s33, s33, 1
    s_cmp_lt_u32 s33, 8
    s_cbranch_scc1 attn_loop
    s_waitcnt lgkmcnt(0)
    s_nop 15
    """)
    stamp(k, 2, flag='astamp')
    k(f"v_mul_f32 v1, 0, v{O}")
    for i in range(1, 16):
        k(f"v_fmac_f32 v1, 0, v{O+i}")
    k(f"""
    v_add_f32 v1, v1, v{Lr}
    s_mov_b32 s34, {0 if 'forcesafe' in FLAGS else 0x4e800000}          ; 2^30
    v_cmp_nlt_f32 vcc, v1, s34
    s_nop 1
    s_cmp_lg_u64 vcc, 0
    {';' if 'a_nosafe' in FLAGS else ''}s_cbranch_scc1 attn_safe
    """)
    k.label("attn_fin")
    k(f"""
    v_rcp_f32 v1, v{Lr}
    s_lshl_b32 s25, s24, 5
    s_add_u32 s25, s25, s16
    s_lshl_b32 s25, s25, 11
    s_add_u32 s25, s25, {WS_O}
    """)
    for i in range(16):
        k(f"v_mul_f32 v{O+i}, v{O+i}, v1")
    for e in range(8):
        k(f"v_cvt_pk_bf16_f32 v{P+e}, v{O+2*e}, v{O+2*e+1}")
    k(f"""
    buffer_store_dwordx4 v[{P}:{P+3}], v5, s[12:15], s25 offen
    buffer_store_dwordx4 v[{P+4}:{P+7}], v5, s[12:15], s25 offen offset:1024
    """)
    hx_reset(k, 18, 5, O)
    if 'astamp' in FLAGS:
        k("s_waitcnt vmcnt(0)")
        stamp(k, 3, flag='astamp')
        stamp_store(k, 4, 12, 2, 18, flag='astamp')
    k("s_endpgm")
    k.label("attn_safe")
    M = 2; AL = 3
    k(f"""
    s_add_u32 s26, s23, {WS_K}
    s_add_u32 s27, s23, {WS_V}
    s_mov_b32 s33, 0
    v_mov_b32 v{M}, 0xff7fffff
    """)
    for i in range(16):
        k(f"v_mov_b32 v{O+i}, 0")
    for i in range(4):
        k(f"v_mov_b32 v{Lr+i}, 0")
    k.label("attn_safe_loop")
    k(f"""
    buffer_load_dwordx4 v[{KB[0]}:{KB[0]+3}], v5, s[12:15], s26 offen
    buffer_load_dwordx4 v[{KB[0]+4}:{KB[0]+7}], v5, s[12:15], s26 offen offset:1024
    buffer_load_dwordx4 v[{VB[0]}:{VB[0]+3}], v5, s[12:15], s27 offen
    buffer_load_dwordx4 v[{VB[0]+4}:{VB[0]+7}], v5, s[12:15], s27 offen offset:1024
    s_add_u32 s26, s26, 2048
    s_add_u32 s27, s27, 2048
    s_waitcnt vmcnt(0)
    v_mfma_f32_32x32x16_bf16 v[{SA}:{SA+15}], v[{KB[0]}:{KB[0]+3}], v[{Q}:{Q+3}], 0
    v_mfma_f32_32x32x16_bf16 v[{SA}:{SA+15}], v[{KB[0]+4}:{KB[0]+7}], v[{Q+4}:{Q+7}], v[{SA}:{SA+15}]
    s_nop 15
    s_nop 3
    """)
    tile_max(SA, 1, 7)
    k(f"""
    v_max_f32 v1, v1, v{M}
    v_sub_f32 v{AL}, v{M}, v1
    v_exp_f32 v{AL}, v{AL}
    v_mov_b32 v{M}, v1
    """)
    for i in range(16):
        k(f"v_sub_f32 v{SA+i}, v{SA+i}, v1")
    for i in range(16):
        k(f"v_exp_f32 v{SA+i}, v{SA+i}")
    for i in range(16):
        k(f"v_mul_f32 v{O+i}, v{O+i}, v{AL}")
    for i in range(4):
        k(f"v_mul_f32 v{Lr+i}, v{Lr+i}, v{AL}")
    for e in range(8):
        k(f"v_cvt_pk_bf16_f32 v{P+e}, v{SA+2*e}, v{SA+2*e+1}")
    k(f"""
    s_nop 1
    v_mfma_f32_32x32x16_bf16 v[{O}:{O+15}], v[{VB[0]}:{VB[0]+3}], v[{P}:{P+3}], v[{O}:{O+15}]
    v_mfma_f32_16x16x32_bf16 v[{Lr}:{Lr+3}], v[{ONES}:{ONES+3}], v[{P}:{P+3}], v[{Lr}:{Lr+3}]
    v_mfma_f32_32x32x16_bf16 v[{O}:{O+15}], v[{VB[0]+4}:{VB[0]+7}], v[{P+4}:{P+7}], v[{O}:{O+15}]
    v_mfma_f32_16x16x32_bf16 v[{Lr}:{Lr+3}], v[{ONES}:{ONES+3}], v[{P+4}:{P+7}], v[{Lr}:{Lr+3}]
    s_nop 15
    s_nop 3
    s_add_u32 s33, s33, 1
    s_cmp_lt_u32 s33, 64
    s_cbranch_scc1 attn_safe_loop
    s_branch attn_fin
    """)
    k.label("attn_kernel_end")
    k("s_endpgm")
    finish(k, (256,1,1), (512,1,1), 3*SLOT, 256 if 'astamp' in FLAGS else 144, 102 if 'astamp' in FLAGS else 72)

def gen_attn4():
    k = K("attn_kernel")
    Q, NEGM, O, Lr, ONES, KB, VB = 8, 16, 72, 88, 92, 96, 104
    S = [32, 48]; P = [64, 112]
    GU, JUNK = 120, 124
    PMV = 127
    SLOT = 32768
    SMF = 'a_nosmf' not in FLAGS
    k(f"""
    s_cmp_ge_u32 s2, 256
    s_cbranch_scc1 attn_kernel_end
    """)
    stamp(k, 0, flag='astamp')
    k(f"""
    s_load_dwordx2 s[6:7], s[0:1], {KA_WS}
    s_load_dwordx4 s[36:39], s[0:1], {KA_WG}
    s_load_dwordx2 s[52:53], s[0:1], {KA_WD}
    s_load_dwordx2 s[54:55], s[0:1], {KA_WO}
    v_lshrrev_b32 v1, 6, v0
    v_and_b32 v6, 63, v0               ; lane
    s_and_b32 s20, s2, 7               ; x
    s_lshr_b32 s21, s2, 3              ; j
    v_readfirstlane_b32 s18, v1
    s_lshr_b32 s22, s21, 3
    s_lshl_b32 s22, s22, 3
    s_add_u32 s16, s20, s22            ; head
    s_and_b32 s17, s21, 7              ; qblock
    v_lshlrev_b32 v5, 4, v6            ; lane*16
    s_and_b32 s19, s18, 7              ; q tile
    s_lshr_b32 s29, s18, 3             ; kh
    s_lshl_b32 s23, s16, 17            ; head*64*2048
    s_lshl_b32 s24, s17, 3
    s_add_u32 s24, s24, s19            ; Tq
    s_lshl_b32 s25, s24, 11
    s_add_u32 s25, s25, s23
    s_add_u32 s25, s25, {WS_Q}         ; Q soffset
    s_lshr_b32 s26, s18, 1
    s_lshl_b32 s26, s26, 11            ; tile*2048
    s_add_u32 s26, s26, s23
    s_and_b32 s27, s18, 1
    s_mul_i32 s27, s27, {WS_V - WS_K}
    s_add_u32 s26, s26, s27
    s_add_u32 s26, s26, {WS_K}
    s_lshl_b32 s28, s18, 11
    s_waitcnt lgkmcnt(0)
    """)
    srd(k, 12, 6, WS_SIZE)
    def fst():
        if 'fstamp' not in FLAGS: return
        k("""
        s_memtime s[70:71]
        s_waitcnt lgkmcnt(0)
        v_mov_b32 v126, s70
        v_mov_b32 v125, 0
        s_mov_b64 exec, 1
        buffer_store_dword v126, v125, s[12:15], s72 offen
        s_mov_b64 exec, -1
        s_add_u32 s72, s72, 4
        """)
    if 'fstamp' in FLAGS:
        k(f"""
        s_lshl_b32 s72, s2, 4
        s_add_u32 s72, s72, s18
        s_lshl_b32 s72, s72, 7
        s_add_u32 s72, s72, {WS_STAMP}
        """)
        fst()
    def dma(slot):
        k(f"s_add_u32 m0, s28, {slot}")
        k("s_nop 0")
        k("buffer_load_dwordx4 v5, s[12:15], s26 offen lds")
        k("buffer_load_dwordx4 v5, s[12:15], s26 offen offset:1024 lds")
        k("s_add_u32 s26, s26, 16384")
    k(f"""
    buffer_load_dwordx4 v[{Q}:{Q+3}], v5, s[12:15], s25 offen
    buffer_load_dwordx4 v[{Q+4}:{Q+7}], v5, s[12:15], s25 offen offset:1024
    """)
    dma(0)
    k(f"""
    s_lshl_b32 s56, s21, 3
    s_add_u32 s56, s56, s19
    s_and_b32 s57, s56, 127            ; kq8
    s_cmp_ge_u32 s56, 128
    s_cselect_b32 s36, s38, s36
    s_cselect_b32 s37, s39, s37
    s_cselect_b32 s58, 0x800000, 0
    """)
    srd(k, 40, 36, 1024*3584*2)
    srd(k, 44, 52, 3584*1024*2)
    srd(k, 48, 54, 1024*1024*2)
    k(f"""
    s_mul_i32 s59, s57, {8*7168}
    s_mul_i32 s60, s20, {7*128}
    s_add_u32 s59, s59, s60
    s_lshl_b32 s60, s29, 7
    s_add_u32 s59, s59, s60
    s_mul_i32 s60, s20, {7*4*32768}
    s_add_u32 s60, s60, s58
    s_lshl_b32 s57, s57, 8
    s_add_u32 s60, s60, s57
    s_lshl_b32 s57, s29, 17
    s_add_u32 s60, s60, s57
    s_add_u32 s60, s60, {WS_G}
    s_mul_i32 s61, s20, {28*32768}
    s_mul_i32 s62, s56, 3584
    s_add_u32 s61, s61, s62
    s_lshl_b32 s62, s29, 9
    s_add_u32 s61, s61, s62
    s_and_b32 s62, s20, 1
    s_lshl_b32 s62, s62, 10
    s_lshl_b32 s63, s56, 13
    s_add_u32 s62, s62, s63
    s_lshl_b32 s63, s29, 11
    s_add_u32 s62, s62, s63
    v_lshrrev_b32 v2, 3, v6            ; l>>3
    v_and_b32 v7, 7, v6
    s_mov_b32 s63, 7168
    v_mul_lo_u32 v0, v2, s63
    v_lshl_add_u32 v0, v7, 4, v0
    v_lshrrev_b32 v1, 1, v7
    v_lshlrev_b32 v1, 15, v1
    v_lshl_add_u32 v1, v2, 5, v1
    v_and_b32 v7, 1, v6
    v_lshl_add_u32 v1, v7, 4, v1
    """)
    k(f"""
    s_lshl_b32 s64, s2, 3
    s_add_u32 s64, s64, s19
    s_lshl_b32 s65, s64, 3
    s_add_u32 s65, s65, {WS_PM}
    s_lshl_b32 s64, s64, 2
    s_add_u32 s64, s64, {WS_MOD + 4096}
    v_and_b32 v2, 31, v6
    v_lshlrev_b32 v2, 14, v2
    v_lshrrev_b32 v7, 5, v6
    v_lshl_add_u32 v2, v7, 2, v2
    """)
    PRO = os.environ.get('APRO', 'b')
    if PRO == 'b':
        k("s_barrier")
    dma(SLOT)
    k(f"v_mov_b32 v{PMV}, v2")
    if SMF:
        k(f"""
        v_and_b32 v2, 4, v6
        v_cmp_eq_u32 vcc, 0, v2
        v_mov_b32 v7, 0x3f803f80
        v_and_b32 v2, 2, v6
        v_cndmask_b32 v{ONES}, 0, v7, vcc
        v_cndmask_b32 v{ONES+1}, 0, v7, vcc
        v_cndmask_b32 v{ONES+2}, v7, 0, vcc
        v_cndmask_b32 v{ONES+3}, v7, 0, vcc
        v_cmp_eq_u32 vcc, 0, v2
        v_mov_b32 v2, 0xeeeeeeee
        v_mov_b32 v7, 0x44444444
        s_nop 0
        v_cndmask_b32 v7, v2, v7, vcc
        """)
    else:
        k(f"""
        v_lshrrev_b32 v2, 2, v6
        v_xor_b32 v2, v2, v6
        v_and_b32 v2, 4, v2
        v_cmp_eq_u32 vcc, 0, v2
        v_mov_b32 v7, 0x3f803f80
        s_nop 1
        """)
        for i in range(4): k(f"v_cndmask_b32 v{ONES+i}, 0, v7, vcc")
    k(f"""
    v_lshlrev_b32 v6, 3, v6            ; lane*8
    s_lshl_b32 s30, s29, 14
    s_add_u32 s31, s30, {SLOT}         ; slot B
    s_add_u32 s32, s30, {2*SLOT}       ; slot C
    s_add_u32 s35, s30, {5*SLOT}
    v_add_u32 v2, s30, v5
    v_add_u32 v3, s31, v5
    v_add_u32 v4, s32, v5
    s_mov_b32 s33, 0                   ; iteration
    """)
    for i in range(16): k(f"v_mov_b32 v{O+i}, 0")
    for i in range(4): k(f"v_mov_b32 v{Lr+i}, 0")
    for i in range(8): k(f"v_mov_b32 v{P[1]+i}, 0")
    for i in range(8): k(f"v_mov_b32 v{VB+i}, 0")
    k("s_waitcnt vmcnt(2)")
    k("s_barrier")
    if 'a_noprio' not in FLAGS: k("s_setprio 2")
    fst()
    stamp(k, 1, flag='astamp')
    SA = S[0]
    T0 = P[0]
    k(f"""
    ds_read_b128 v[{KB}:{KB+3}], v2 offset:0
    ds_read_b128 v[{KB+4}:{KB+7}], v2 offset:1024
    s_waitcnt lgkmcnt(0)
    v_mfma_f32_32x32x16_bf16 v[{SA}:{SA+15}], v[{KB}:{KB+3}], v[{Q}:{Q+3}], 0
    v_mfma_f32_32x32x16_bf16 v[{SA}:{SA+15}], v[{KB+4}:{KB+7}], v[{Q+4}:{Q+7}], v[{SA}:{SA+15}]
    ds_read_b128 v[{KB}:{KB+3}], v2 offset:4096
    ds_read_b128 v[{KB+4}:{KB+7}], v2 offset:{4096+1024}
    """)
    dma(2*SLOT)
    k("s_nop 12")
    def tile_max(src, d, t):
        k(f"v_max3_f32 v{d}, v{src}, v{src+1}, v{src+2}")
        for i in range(3, 15, 2):
            k(f"v_max3_f32 v{d}, v{d}, v{src+i}, v{src+i+1}")
        k(f"v_max_f32 v{d}, v{d}, v{src+15}")
        k(f"v_mov_b32 v{t}, v{d}")
        k("s_nop 1")
        k(f"v_permlane32_swap_b32 v{d}, v{t}")
        k("s_nop 0")
        k(f"v_max_f32 v{d}, v{d}, v{t}")
    tile_max(SA, T0, T0+1)
    for i in range(16):
        k(f"v_sub_f32 v{NEGM+i}, 0, v{T0}")
        k(f"v_sub_f32 v{SA+i}, v{SA+i}, v{T0}")
    k("s_waitcnt lgkmcnt(0)")
    if 'a_prio' in FLAGS:
        k("s_lshr_b32 s34, s18, 2")
        k("s_cmp_eq_u32 s34, 1\ns_cbranch_scc0 attn_p1\ns_setprio 1"); k.label("attn_p1")
        k("s_cmp_eq_u32 s34, 2\ns_cbranch_scc0 attn_p2\ns_setprio 2"); k.label("attn_p2")
        k("s_cmp_eq_u32 s34, 3\ns_cbranch_scc0 attn_p3\ns_setprio 3"); k.label("attn_p3")
    fst()
    k(".p2align 3")
    def M32(d, a, b, c): return f"v_mfma_f32_32x32x16_bf16 v[{d}:{d+15}], v[{a}:{a+3}], v[{b}:{b+3}], v[{c}:{c+15}]"
    def M16(d, a, b): return f"v_mfma_f32_16x16x32_bf16 v[{d}:{d+3}], v[{a}:{a+3}], v[{b}:{b+3}], v[{d}:{d+3}]"
    def SM(p): return f"v_smfmac_f32_16x16x64_bf16 v[{Lr}:{Lr+3}], v[{ONES}:{ONES+3}], v[{p}:{p+7}], v7"
    def DS(d, a, off): return f"ds_read_b128 v[{d}:{d+3}], {a} offset:{off}"
    PAT = os.environ.get('APAT', 'eeee,xxeeecc,ecece,xxeceec,eeecc' if SMF else 'eee,xxeee,ecec,ec,eeecxx,eceececc').split(',')
    def phase(Sx, Px, mf, extra):
        e = c = 0; extra = list(extra); last = None
        assert len(mf) == len(PAT)
        for m, pat in zip(mf, PAT):
            k(m); last = 'm'
            for ch in pat:
                if ch == 'e': k(f"v_exp_f32 v{Sx+e}, v{Sx+e}"); e += 1
                elif ch == 'c':
                    assert 2*c+1 < e - (1 if last == 'e' else 0), (c, e)
                    k(f"v_cvt_pk_bf16_f32 v{Px+c}, v{Sx+2*c}, v{Sx+2*c+1}"); c += 1
                elif ch == 'x': k(extra.pop(0))
                last = ch
        assert e == 16 and c == 8 and not extra
    def addr(j):
        return (("v2", "v3", "v4")[j >> 2], (j & 3)*4096)
    def side():
        l1, l3 = k.newlabel("sj"), k.newlabel("sj")
        k(f"""
        s_cmp_eq_u32 s33, 0
        s_cbranch_scc1 {l1}
        buffer_store_dwordx4 v[{GU}:{GU+3}], v1, s[12:15], s60 offen {os.environ.get('SJST','sc1')}
        s_add_u32 s60, s60, {8*32768}
        """)
        k.label(l1)
        k(f"""
        s_lshl_b32 s34, s33, 1
        s_add_u32 s34, s34, s29
        s_cmp_eq_u32 s34, 7
        s_cbranch_scc1 {l3}
        buffer_load_dwordx4 v[{GU}:{GU+3}], v0, s[40:43], s59 offen
        buffer_load_dwordx2 v[{JUNK}:{JUNK+1}], v6, s[44:47], s61 offen
        s_add_u32 s59, s59, 256
        s_add_u32 s61, s61, 1024
        s_cmp_ge_u32 s33, 2
        s_cbranch_scc1 {l3}
        buffer_load_dwordx2 v[{JUNK}:{JUNK+1}], v5, s[48:51], s62 offen
        s_add_u32 s62, s62, 4096
        """)
        k.label(l3)
    k.label("attn_loop")
    for i in range(8):
        c = i & 1; n = c ^ 1
        if i == 2:
            lw, lw2, lnd, lnd2, lpm = [k.newlabel(x) for x in ("w", "w", "nd", "nd", "pm")]
            fst()
            k("s_waitcnt vmcnt(0)")
            fst()
            k("s_barrier")
            if 'a_noprio' not in FLAGS: k("s_setprio 3")
            fst()
            k(f"""
            s_cmp_eq_u32 s33, 0
            s_cbranch_scc0 {lw}
            """)
            dma(3*SLOT); dma(4*SLOT)
            k(f"""
            s_cmp_eq_u32 s29, 0
            s_cbranch_scc1 {lnd2}
            buffer_load_dword v{PMV}, v{PMV}, s[12:15], s65 offen
            s_branch {lnd2}
            """)
            k.label(lw)
            k(f"""
            s_cmp_eq_u32 s33, 1
            s_cbranch_scc0 {lnd}
            """)
            dma(0)
            dma(SLOT)
            a, t = PMV, JUNK+2
            k(f"""
            s_cmp_eq_u32 s29, 0
            s_cbranch_scc1 {lnd2}
            v_add_f32_dpp v{t}, v{a}, v{a} quad_perm:[1,0,3,2] row_mask:0xf bank_mask:0xf
            s_nop 1
            v_add_f32_dpp v{a}, v{t}, v{t} quad_perm:[2,3,0,1] row_mask:0xf bank_mask:0xf
            s_nop 1
            v_add_f32_dpp v{t}, v{a}, v{a} row_half_mirror row_mask:0xf bank_mask:0xf
            s_nop 1
            v_add_f32_dpp v{a}, v{t}, v{t} row_mirror row_mask:0xf bank_mask:0xf
            s_nop 0
            v_mov_b32 v{t}, v{a}
            s_nop 1
            v_permlane16_swap_b32 v{a}, v{t}
            s_nop 0
            v_add_f32 v{a}, v{a}, v{t}
            v_mov_b32 v{t}, v{a}
            s_nop 1
            v_permlane32_swap_b32 v{a}, v{t}
            s_nop 0
            v_cvt_pk_bf16_f32 v{a}, v{a}, v{t}
            v_mov_b32 v{t}, 0
            s_mov_b64 exec, 1
            buffer_store_dword v{a}, v{t}, s[12:15], s64 offen
            s_mov_b64 exec, -1
            s_branch {lnd2}
            """)
            k.label(lnd)
            k(f"""
            s_cmp_eq_u32 s33, 2
            s_cbranch_scc0 {lnd2}
            """)
            dma(2*SLOT)
            k.label(lnd2)
            if 'noside' not in FLAGS: side()
            fst()
            k(".p2align 3")
        if 'a_noprio' not in FLAGS:
            PR = {2: 3, 4: 2, 6: 1, 0: 0}
            if 'a_prio2' in FLAGS: PR = {2: 3, 5: 2, 7: 1, 1: 0}
            if 'a_prio3' in FLAGS: PR = {2: 3, 6: 2, 0: 1, 1: 0}
            if i in PR and i != 2: k(f"s_setprio {PR[i]}\ns_nop 0")
        ka = addr(i+2); va = addr(i)
        ex = [DS(KB, ka[0], ka[1]), DS(KB+4, ka[0], ka[1]+1024), DS(VB, va[0], va[1]+2048), DS(VB+4, va[0], va[1]+3072)]
        mS = ["s_waitcnt lgkmcnt(2)\n" + M32(S[n], KB, Q, NEGM), M32(S[n], KB+4, Q+4, S[n])]
        if SMF:
            mP = ["s_waitcnt lgkmcnt(2)\n" + M32(O, VB, P[n], O), M32(O, VB+4, P[n]+4, O), SM(P[n])]
        else:
            mP = ["s_waitcnt lgkmcnt(2)\n" + M32(O, VB, P[n], O), M16(Lr, ONES, P[n]), M32(O, VB+4, P[n]+4, O), M16(Lr, ONES, P[n]+4)]
        phase(S[c], P[c], mS + mP, ex)
    k(f"""
    s_mov_b32 s30, s32
    s_add_u32 s31, s32, {SLOT}
    s_cmp_ge_u32 s31, s35
    s_cselect_b32 s34, {5*SLOT}, 0
    s_sub_u32 s31, s31, s34
    s_add_u32 s32, s31, {SLOT}
    s_cmp_ge_u32 s32, s35
    s_cselect_b32 s34, {5*SLOT}, 0
    s_sub_u32 s32, s32, s34
    v_mov_b32 v2, v4
    v_add_u32 v3, s31, v5
    v_add_u32 v4, s32, v5
    s_add_u32 s33, s33, 1
    s_cmp_lt_u32 s33, 4
    s_cbranch_scc1 attn_loop
    s_waitcnt lgkmcnt(0)
    """)
    k(M32(O, VB, P[1], O)); k(M32(O, VB+4, P[1]+4, O))
    if SMF: k(SM(P[1]))
    else: k(M16(Lr, ONES, P[1])); k(M16(Lr, ONES, P[1]+4))
    if 'noside' not in FLAGS:
        k(f"""
        s_cmp_lg_u32 s29, 0
        s_cbranch_scc1 attn_nost
        s_waitcnt vmcnt(0)
        buffer_store_dwordx4 v[{GU}:{GU+3}], v1, s[12:15], s60 offen {os.environ.get('SJST','sc1')}
        """)
        k.label("attn_nost")
    k(f"""
    s_mul_i32 s34, s18, 3072
    s_add_u32 s34, s34, {3*SLOT}
    s_xor_b32 s35, s18, 8
    s_mul_i32 s35, s35, 3072
    s_add_u32 s35, s35, {3*SLOT}
    v_add_u32 v2, s34, v5
    v_add_u32 v3, s35, v5
    s_nop 11
    """)
    stamp(k, 2, flag='astamp')
    fst()
    T = S[0]
    if SMF: k(f"v_add_f32 v{Lr}, v{Lr}, v{Lr+2}")
    k(f"v_mul_f32 v{T}, 0, v{O}")
    for i in range(1, 16):
        k(f"v_fmac_f32 v{T}, 0, v{O+i}")
    k(f"""
    v_add_f32 v{T}, v{T}, v{Lr}
    s_mov_b32 s34, {0 if 'forcesafe' in FLAGS else 0x4e800000}          ; 2^30
    v_cmp_nlt_f32 vcc, v{T}, s34
    s_nop 1
    s_cmp_lg_u64 vcc, 0
    {';' if 'a_nosafe' in FLAGS else ''}s_cbranch_scc1 attn_safe
    """)
    k.label("attn_fin")
    X = S[1]
    k(f"""
    v_mov_b32 v{Lr+1}, v{NEGM}
    s_cmp_lg_u32 s29, 0
    s_cbranch_scc1 attn_x1
    ds_write_b128 v2, v[{O+8}:{O+11}]
    ds_write_b128 v2, v[{O+12}:{O+15}] offset:1024
    s_branch attn_x2
    """)
    k.label("attn_x1")
    k(f"""
    ds_write_b128 v2, v[{O}:{O+3}]
    ds_write_b128 v2, v[{O+4}:{O+7}] offset:1024
    """)
    for i in range(8): k(f"v_mov_b32 v{O+i}, v{O+8+i}")
    k.label("attn_x2")
    k(f"""
    ds_write_b64 v2, v[{Lr}:{Lr+1}] offset:2048
    s_lshl_b32 s25, s24, 5
    s_add_u32 s25, s25, s16
    s_lshl_b32 s25, s25, 11
    s_lshl_b32 s34, s29, 10
    s_add_u32 s25, s25, s34
    s_add_u32 s25, s25, {WS_O}
    s_waitcnt lgkmcnt(0)
    s_barrier
    ds_read_b64 v[{X+8}:{X+9}], v3 offset:2048
    ds_read_b128 v[{X}:{X+3}], v3
    ds_read_b128 v[{X+4}:{X+7}], v3 offset:1024
    s_waitcnt lgkmcnt(2)
    v_min_f32 v{T}, v{NEGM}, v{X+9}          ; -m
    v_sub_f32 v{T+1}, v{T}, v{NEGM}          ; m_self - m
    v_sub_f32 v{T+2}, v{T}, v{X+9}           ; m_other - m
    v_exp_f32 v{T+1}, v{T+1}
    v_exp_f32 v{T+2}, v{T+2}
    s_nop 0
    v_mul_f32 v{T+3}, v{Lr}, v{T+1}
    v_fmac_f32 v{T+3}, v{X+8}, v{T+2}
    v_rcp_f32 v{T+3}, v{T+3}
    s_nop 0
    v_mul_f32 v{T+1}, v{T+1}, v{T+3}
    v_mul_f32 v{T+2}, v{T+2}, v{T+3}
    s_waitcnt lgkmcnt(0)
    """)
    for i in range(8): k(f"v_mul_f32 v{O+i}, v{O+i}, v{T+1}")
    for i in range(8): k(f"v_fmac_f32 v{O+i}, v{X+i}, v{T+2}")
    for e in range(4): k(f"v_cvt_pk_bf16_f32 v{P[0]+e}, v{O+2*e}, v{O+2*e+1}")
    k(f"buffer_store_dwordx4 v[{P[0]}:{P[0]+3}], v5, s[12:15], s25 offen")
    hx_reset(k, 18, 5, S[0])
    fst()
    if 'astamp' in FLAGS:
        k("s_waitcnt vmcnt(0)")
        stamp(k, 3, flag='astamp')
        k("s_lshr_b32 s34, s18, 1")
        stamp_store(k, 4, 12, 2, 34, vt=120, flag='astamp')
    k("s_endpgm")
    k.label("attn_safe")
    M = P[1]; AL = P[1]+1; T1 = P[1]+2; T2 = P[1]+3; L16 = P[1]+4
    PP = P[0]
    k(f"""
    s_lshl_b32 s26, s29, 13
    s_add_u32 s26, s26, s23
    s_add_u32 s27, s26, {WS_V}
    s_add_u32 s26, s26, {WS_K}
    s_mov_b32 s33, 0
    v_mov_b32 v{M}, 0xff7fffff
    """)
    for i in range(16): k(f"v_mov_b32 v{O+i}, 0")
    for i in range(4): k(f"v_mov_b32 v{Lr+i}, 0")
    k.label("attn_safe_loop")
    k(f"""
    buffer_load_dwordx4 v[{KB}:{KB+3}], v5, s[12:15], s26 offen
    buffer_load_dwordx4 v[{KB+4}:{KB+7}], v5, s[12:15], s26 offen offset:1024
    buffer_load_dwordx4 v[{VB}:{VB+3}], v5, s[12:15], s27 offen
    buffer_load_dwordx4 v[{VB+4}:{VB+7}], v5, s[12:15], s27 offen offset:1024
    s_and_b32 s34, s33, 3
    s_cmp_eq_u32 s34, 3
    s_cselect_b32 s34, 5, 1
    s_lshl_b32 s34, s34, 11
    s_add_u32 s26, s26, s34
    s_add_u32 s27, s27, s34
    s_waitcnt vmcnt(0)
    v_mfma_f32_32x32x16_bf16 v[{SA}:{SA+15}], v[{KB}:{KB+3}], v[{Q}:{Q+3}], 0
    v_mfma_f32_32x32x16_bf16 v[{SA}:{SA+15}], v[{KB+4}:{KB+7}], v[{Q+4}:{Q+7}], v[{SA}:{SA+15}]
    s_nop 15
    s_nop 3
    """)
    tile_max(SA, T1, T2)
    k(f"""
    v_max_f32 v{T1}, v{T1}, v{M}
    v_sub_f32 v{AL}, v{M}, v{T1}
    v_exp_f32 v{AL}, v{AL}
    v_mov_b32 v{M}, v{T1}
    """)
    for i in range(16): k(f"v_sub_f32 v{SA+i}, v{SA+i}, v{T1}")
    for i in range(16): k(f"v_exp_f32 v{SA+i}, v{SA+i}")
    for i in range(16): k(f"v_mul_f32 v{O+i}, v{O+i}, v{AL}")
    for i in range(4): k(f"v_mul_f32 v{Lr+i}, v{Lr+i}, v{AL}")
    for e in range(8): k(f"v_cvt_pk_bf16_f32 v{PP+e}, v{SA+2*e}, v{SA+2*e+1}")
    k("s_nop 1")
    k(M32(O, VB, PP, O)); k(M32(O, VB+4, PP+4, O))
    if SMF: k(SM(PP))
    else: k(M16(Lr, ONES, PP)); k(M16(Lr, ONES, PP+4))
    k(f"""
    s_nop 15
    s_nop 3
    s_add_u32 s33, s33, 1
    s_cmp_lt_u32 s33, 32
    s_cbranch_scc1 attn_safe_loop
    v_sub_f32 v{NEGM}, 0, v{M}
    """)
    if SMF: k(f"v_add_f32 v{Lr}, v{Lr}, v{Lr+2}")
    k("s_branch attn_fin")
    k.label("attn_kernel_end")
    k("s_endpgm")
    finish(k, (256,1,1), (1024,1,1), 5*SLOT, 128, 102 if FLAGS & {'astamp', 'fstamp'} else 72)

def gen_wo():
    k = K("wo_kernel")
    NST, R = 16, 6
    SLOT = 24576
    WOFF = 8192
    k(f"""
    s_cmp_ge_u32 s2, 256
    s_cbranch_scc1 wo_kernel_end
    s_load_dwordx2 s[4:5], s[0:1], {KA_WO}
    s_load_dwordx2 s[6:7], s[0:1], {KA_WS}
    s_load_dwordx2 s[36:37], s[0:1], {KA_X}
    s_load_dwordx2 s[38:39], s[0:1], {KA_WR}
    v_lshrrev_b32 v1, 6, v0
    v_and_b32 v2, 63, v0               ; lane
    s_and_b32 s20, s2, 7               ; x
    s_lshr_b32 s21, s2, 3              ; j
    v_readfirstlane_b32 s18, v1
    s_lshr_b32 s16, s20, 1
    s_lshl_b32 s16, s16, 3
    s_and_b32 s22, s21, 7
    s_add_u32 s16, s16, s22            ; bm (0..31)
    s_and_b32 s17, s20, 1
    s_lshl_b32 s17, s17, 2
    s_lshr_b32 s22, s21, 3
    s_add_u32 s17, s17, s22            ; bn (0..7)
    s_waitcnt lgkmcnt(0)
    """)
    srd(k, 8, 4, 1024*1024*2)
    srd(k, 12, 6, WS_SIZE)
    k(f"""
    s_cmp_ge_u32 s18, 4
    s_cbranch_scc1 wo_producer
    """)
    srd(k, 40, 36, 2048*1024*2)
    srd(k, 44, 38, 2048)
    XR, GA, CB, WR = 128, 144, 152, 160
    k(f"""
    v_and_b32 v3, 31, v2               ; tok
    v_lshrrev_b32 v4, 5, v2            ; hh
    v_lshlrev_b32 v5, 11, v3
    v_lshl_add_u32 v5, v4, 3, v5
    s_lshl_b32 s24, s16, 17            ; bm*64*2048
    s_lshl_b32 s25, s17, 8             ; bn*256
    s_lshl_b32 s26, s18, 6             ; w*64
    s_add_u32 s25, s25, s26
    s_add_u32 s26, s24, s25
    s_add_u32 s27, s26, 65536          ; tt=1
    v_lshlrev_b32 v6, 3, v4            ; hh*8
    s_add_u32 s28, s25, {WS_MOD + 2*2048}   ; ga
    s_add_u32 s29, s25, {WS_MOD + 4*2048}   ; cb
    """)
    for tt in range(2):
        for q in range(4):
            r = XR + 8*tt + 2*q
            k(f"buffer_load_dwordx2 v[{r}:{r+1}], v5, s[40:43], s{26+tt} offen offset:{16*q}")
    for q in range(4):
        k(f"buffer_load_dwordx2 v[{GA+2*q}:{GA+2*q+1}], v6, s[12:15], s28 offen offset:{16*q}")
        k(f"buffer_load_dwordx2 v[{CB+2*q}:{CB+2*q+1}], v6, s[12:15], s29 offen offset:{16*q}")
        k(f"buffer_load_dwordx2 v[{WR+2*q}:{WR+2*q+1}], v6, s[44:47], s25 offen offset:{16*q}")
    k(f"""
    v_lshlrev_b32 v8, 4, v2
    v_add_u32 v9, {2*SLOT}, v8
    v_add_u32 v10, {4*SLOT}, v8
    v_lshrrev_b32 v7, 2, v2
    v_and_b32 v7, 3, v7                ; r
    v_lshl_add_u32 v11, v4, 2, v7      ; 4hh + r
    v_lshlrev_b32 v11, 8, v11          ; *256
    v_xor_b32 v7, s18, v7              ; w ^ r
    v_lshl_add_u32 v11, v7, 6, v11
    v_lshrrev_b32 v7, 4, v2
    v_and_b32 v7, 1, v7                ; ng
    v_lshl_add_u32 v11, v7, 5, v11
    v_and_b32 v7, 3, v2
    v_lshl_add_u32 v11, v7, 3, v11
    v_add_u32 v11, {WOFF}, v11
    v_add_u32 v12, {2*SLOT}, v11
    v_add_u32 v13, {4*SLOT}, v11
    """)
    ACC = 16
    SETS = [48, 96 - 0]
    SETS = [48, 176]
    for i in range(32):
        k(f"v_mov_b32 v{ACC+i}, 0")
    def reads(st, s):
        S = SETS[st]; slot = s % R
        r = []
        for ks in range(4):
            b = S + 12*ks
            base = (slot & 1)*SLOT
            r.append(f"ds_read_b64_tr_b16 v[{b+8}:{b+9}], v{11+(slot>>1)} offset:{base + ks*4096}")
            r.append(f"ds_read_b64_tr_b16 v[{b+10}:{b+11}], v{11+(slot>>1)} offset:{base + ks*4096 + 2048}")
            r.append(f"ds_read_b128 v[{b}:{b+3}], v{8+(slot>>1)} offset:{base + ks*1024}")
            r.append(f"ds_read_b128 v[{b+4}:{b+7}], v{8+(slot>>1)} offset:{base + 4096 + ks*1024}")
        return r
    def mfmas(st):
        S = SETS[st]; r = []
        for ks in range(4):
            b = S + 12*ks
            for tt in range(2):
                a = ACC + 16*tt
                r.append(f"v_mfma_f32_32x32x16_bf16 v[{a}:{a+15}], v[{b+8}:{b+11}], v[{b+4*tt}:{b+4*tt+3}], v[{a}:{a+15}]")
        return r
    k("s_barrier")
    for r in reads(0, 0):
        k(r)
    for s in range(NST):
        m = mfmas(s & 1)
        k("s_waitcnt lgkmcnt(0)")
        k(m[0])
        if s + 1 < NST:
            k("s_barrier")
            rd = reads((s + 1) & 1, s + 1)
        else:
            rd = []
        for i in range(1, 8):
            for r in rd[(i-1)*3:(i-1)*3+3]:
                k(r)
            k(m[i])
    U = 48; G = 64; T = 80; ST = 84
    k("s_waitcnt vmcnt(0)")
    for j in range(8):
        unpack_bf16(k, GA+j, G+2*j)
        unpack_bf16(k, CB+j, U+2*j)
        k(f"v_add_f32 v{U+2*j}, 1.0, v{U+2*j}")
        k(f"v_add_f32 v{U+2*j+1}, 1.0, v{U+2*j+1}")
        round_bf16_pair(k, U+2*j, U+2*j+1, T)
        unpack_bf16(k, WR+j, T)
        k(f"v_mul_f32 v{U+2*j}, v{U+2*j}, v{T}")
        k(f"v_mul_f32 v{U+2*j+1}, v{U+2*j+1}, v{T+1}")
    k(f"""
    v_lshlrev_b32 v5, 11, v3
    v_lshl_add_u32 v5, v4, 4, v5
    s_add_u32 s26, s26, {WS_X1}
    s_add_u32 s27, s27, {WS_X1}
    """)
    for tt in range(2):
        a = ACC + 16*tt
        s1, s2_, s3 = ST + 3*tt, ST + 3*tt + 1, ST + 3*tt + 2
        for j in range(8):
            x0, x1 = a + 2*j, a + 2*j + 1
            round_bf16_pair(k, x0, x1, T)
            k(f"v_mul_f32 v{x0}, v{x0}, v{G+2*j}")
            k(f"v_mul_f32 v{x1}, v{x1}, v{G+2*j+1}")
            round_bf16_pair(k, x0, x1, T)
            unpack_bf16(k, XR + 8*tt + j, T)
            k(f"v_add_f32 v{x0}, v{x0}, v{T}")
            k(f"v_add_f32 v{x1}, v{x1}, v{T+1}")
            d = XR + 8*tt + j
            k(f"v_cvt_pk_bf16_f32 v{d}, v{x0}, v{x1}")
            k(f"v_lshlrev_b32 v{x0}, 16, v{d}")
            k(f"v_and_b32 v{x1}, 0xffff0000, v{d}")
            if j == 0:
                k(f"v_add_f32 v{s1}, v{x0}, v{x1}")
                k(f"v_mul_f32 v{s2_}, v{x0}, v{x0}")
                k(f"v_mul_f32 v{s3}, v{x0}, v{U+2*j}")
            else:
                k(f"v_add_f32 v{s1}, v{s1}, v{x0}")
                k(f"v_add_f32 v{s1}, v{s1}, v{x1}")
                k(f"v_fmac_f32 v{s2_}, v{x0}, v{x0}")
                k(f"v_fmac_f32 v{s3}, v{x0}, v{U+2*j}")
            k(f"v_fmac_f32 v{s2_}, v{x1}, v{x1}")
            k(f"v_fmac_f32 v{s3}, v{x1}, v{U+2*j+1}")
        for q in (0, 2):
            d = XR + 8*tt + 2*q
            k("s_nop 1")
            k(f"v_permlane32_swap_b32 v{d}, v{d+2}")
            k(f"v_permlane32_swap_b32 v{d+1}, v{d+3}")
            k(f"buffer_store_dwordx4 v[{d}:{d+3}], v5, s[12:15], s{26+tt} offen offset:{16*q}")
    k(f"""
    v_lshlrev_b32 v5, 2, v2            ; lane*4
    s_lshl_b32 s26, s16, 8
    s_add_u32 s26, s26, {WS_STAT}
    s_add_u32 s27, s26, 8192
    s_add_u32 s28, s26, 16384
    s_nop 1
    """)
    for i in range(3):
        k(f"v_permlane32_swap_b32 v{ST+i}, v{ST+3+i}")
    k("s_nop 0")
    for i in range(3):
        k(f"v_add_f32 v{ST+i}, v{ST+i}, v{ST+3+i}")
    for i in range(3):
        k(f"buffer_atomic_add_f32 v{ST+i}, v5, s[12:15], s{26+i} offen")
    k("s_endpgm")
    k.label("wo_producer")
    k(f"""
    s_sub_u32 s19, s18, 4              ; w
    v_lshlrev_b32 v8, 4, v2            ; o: lane*16
    v_lshrrev_b32 v3, 4, v2
    s_lshl_b32 s23, s19, 2
    v_add_u32 v4, s23, v3              ; 4w + row
    v_lshlrev_b32 v9, 11, v4
    v_lshrrev_b32 v5, 2, v2
    v_xor_b32 v5, v5, v3
    v_and_b32 v5, 3, v5
    v_lshl_add_u32 v9, v5, 6, v9
    v_and_b32 v5, 3, v2
    v_lshl_add_u32 v9, v5, 4, v9       ; vW
    s_lshl_b32 s25, s16, 1
    s_lshr_b32 s24, s19, 1
    s_add_u32 s25, s25, s24            ; T = 2bm + (w>>1)
    s_lshl_b32 s25, s25, 16
    s_and_b32 s24, s19, 1
    s_lshl_b32 s24, s24, 11
    s_add_u32 s25, s25, s24
    s_add_u32 s25, s25, {WS_O}
    s_lshl_b32 s26, s17, 8
    s_lshl_b32 s27, s19, 11
    s_lshl_b32 s29, s19, 10
    """)
    def issue(s):
        slot = s % R
        k(f"s_add_u32 m0, s27, {slot*SLOT}")
        k(f"s_add_u32 s28, s25, {s*4096}")
        k(f"buffer_load_dwordx4 v8, s[12:15], s28 offen lds")
        k(f"buffer_load_dwordx4 v8, s[12:15], s28 offen offset:1024 lds")
        for i in range(4):
            k(f"s_add_u32 m0, s29, {slot*SLOT + WOFF + i*4096}")
            k(f"s_add_u32 s28, s26, {(s*64 + i*16)*2048}")
            k(f"buffer_load_dwordx4 v9, s[8:11], s28 offen lds")
    for s in range(R):
        issue(s)
    issued = R
    for b in range(NST):
        k(f"s_waitcnt vmcnt({6*(issued - b - 1)})")
        k("s_barrier")
        if b >= 1 and b - 1 + R < NST:
            issue(b - 1 + R)
            issued += 1
    k.label("wo_kernel_end")
    k("s_endpgm")
    finish(k, (256,1,1), (512,1,1), R*SLOT, 224, 48)

def wave_red_u32max(k, v, t):
    k(f"""
    s_nop 1
    v_max_u32_dpp v{t}, v{v}, v{v} quad_perm:[1,0,3,2] row_mask:0xf bank_mask:0xf
    s_nop 1
    v_max_u32_dpp v{v}, v{t}, v{t} quad_perm:[2,3,0,1] row_mask:0xf bank_mask:0xf
    s_nop 1
    v_max_u32_dpp v{t}, v{v}, v{v} row_half_mirror row_mask:0xf bank_mask:0xf
    s_nop 1
    v_max_u32_dpp v{v}, v{t}, v{t} row_mirror row_mask:0xf bank_mask:0xf
    s_nop 0
    v_mov_b32 v{t}, v{v}
    s_nop 1
    v_permlane16_swap_b32 v{v}, v{t}
    s_nop 0
    v_max_u32 v{v}, v{v}, v{t}
    v_mov_b32 v{t}, v{v}
    s_nop 1
    v_permlane32_swap_b32 v{v}, v{t}
    s_nop 0
    v_max_u32 v{v}, v{v}, v{t}
    """)

def round_bf16(k, a):
    k(f"v_cvt_pk_bf16_f32 v{a}, v{a}, v{a}")
    k(f"v_lshlrev_b32 v{a}, 16, v{a}")

NGEMV = 224
def gen_moe():
    k = K("moe_kernel")
    k(f"""
    s_cmp_ge_u32 s2, {NGEMV + 256}
    s_cbranch_scc1 moe_kernel_end
    s_load_dwordx2 s[6:7], s[0:1], {KA_WS}
    s_load_dwordx2 s[36:37], s[0:1], {KA_WG}
    s_load_dwordx2 s[38:39], s[0:1], {KA_WU}
    s_load_dwordx2 s[40:41], s[0:1], {KA_WD}
    s_load_dwordx2 s[42:43], s[0:1], {KA_WR}
    s_load_dwordx2 s[44:45], s[0:1], {KA_OUT}
    v_lshrrev_b32 v1, 6, v0
    v_and_b32 v2, 63, v0               ; lane
    s_nop 0
    v_readfirstlane_b32 s18, v1
    v_lshlrev_b32 v4, 4, v2            ; lane*16
    s_waitcnt lgkmcnt(0)
    """)
    srd(k, 12, 6, WS_SIZE)
    k(f"""
    s_cmp_ge_u32 s2, {NGEMV}
    s_cbranch_scc1 {'moe_kernel_end' if 'noln2' in FLAGS else 'moe_ln2'}
    """)
    if 'nogemv' in FLAGS: k("s_endpgm")
    stamp(k, 0, 72, 'mstamp')
    srd(k, 48, 36, 1024*3584*2)
    srd(k, 52, 38, 1024*3584*2)
    srd(k, 56, 40, 3584*1024*2)
    srd(k, 60, 42, 2048)
    GW, UW, DW, STT = 64, 80, 96, 112
    k(f"""
    s_and_b32 s69, s2, 7
    s_mul_i32 s69, s69, 28
    s_lshr_b32 s24, s2, 3
    s_add_u32 s69, s69, s24
    v_lshlrev_b32 v5, 4, v0            ; t*16
    s_mov_b32 s20, {WS_STAT}
    s_mov_b32 s21, {WS_STAT + 8192}
    s_mov_b32 s22, {WS_STAT + 16384}
    buffer_load_dwordx4 v[{STT}:{STT+3}], v5, s[12:15], s20 offen
    buffer_load_dwordx4 v[{STT+4}:{STT+7}], v5, s[12:15], s21 offen
    buffer_load_dwordx4 v[{STT+8}:{STT+11}], v5, s[12:15], s22 offen
    v_lshlrev_b32 v6, 2, v0            ; t*4
    s_mov_b32 s23, {WS_MOD + 4*2048}
    buffer_load_dword v8, v6, s[12:15], s23 offen
    buffer_load_dword v9, v6, s[60:63], 0 offen       ; w_r pair
    v_lshlrev_b32 v7, 4, v0
    s_lshl_b32 s24, s69, 15            ; cg*32768
    s_add_u32 s24, s24, {WS_G}
    s_add_u32 s25, s24, 0x800000
    s_add_u32 s26, s24, 16384
    s_add_u32 s27, s25, 16384
    """)
    for i in range(4):
        k(f"buffer_load_dwordx4 v[{GW+4*i}:{GW+4*i+3}], v7, s[12:15], s{24+2*(i>>1)} offen{' offset:%d' % 0 if False else ''}" if not (i & 1) else f"buffer_load_dwordx4 v[{GW+4*i}:{GW+4*i+3}], v10, s[12:15], s{24+2*(i>>1)} offen")
        k(f"buffer_load_dwordx4 v[{UW+4*i}:{UW+4*i+3}], v7, s[12:15], s{25+2*(i>>1)} offen" if not (i & 1) else f"buffer_load_dwordx4 v[{UW+4*i}:{UW+4*i+3}], v10, s[12:15], s{25+2*(i>>1)} offen")
        if i == 0: k("v_add_u32 v10, 8192, v7")
    k(f"""
    v_lshrrev_b32 v10, 7, v0           ; fq
    v_and_b32 v11, 127, v0             ; dg
    v_lshlrev_b32 v11, 4, v11
    v_lshl_add_u32 v124, v10, 13, v11
    s_lshl_b32 s28, s69, 15            ; cg*32768
    s_add_u32 s29, s28, 4096
    s_mov_b32 s19, {WS_MOD + 3*2048}
    buffer_load_dwordx4 v[40:43], v4, s[12:15], s19 offen
    buffer_load_dwordx4 v[44:47], v4, s[12:15], s19 offen offset:1024
    buffer_load_dwordx4 v[48:51], v4, s[12:15], s23 offen
    buffer_load_dwordx4 v[52:55], v4, s[12:15], s23 offen offset:1024
    buffer_load_dwordx4 v[56:59], v4, s[60:63], 0 offen
    buffer_load_dwordx4 v[60:63], v4, s[60:63], 0 offen offset:1024
    s_waitcnt vmcnt(14)
    """)
    stamp(k, 1, 72, 'mstamp')
    unpack_bf16(k, 8, 12)
    k("v_add_f32 v12, 1.0, v12")
    k("v_add_f32 v13, 1.0, v13")
    round_bf16_pair(k, 12, 13, 14)
    unpack_bf16(k, 9, 14)
    k("v_mul_f32 v12, v12, v14")
    k("v_fmac_f32 v12, v13, v15")
    wave_sum(k, 12, 13)
    k(f"""
    s_lshl_b32 s30, s18, 2
    v_mov_b32 v13, s30
    ds_write_b32 v13, v12 offset:0
    s_waitcnt lgkmcnt(0)
    s_barrier
    v_mov_b32 v13, 0
    ds_read_b128 v[16:19], v13 offset:0
    ds_read_b128 v[20:23], v13 offset:16
    s_waitcnt lgkmcnt(0)
    v_add_f32 v12, v16, v17
    v_add_f32 v12, v12, v18
    v_add_f32 v12, v12, v19
    v_add_f32 v12, v12, v20
    v_add_f32 v12, v12, v21
    v_add_f32 v12, v12, v22
    v_add_f32 v12, v12, v23            ; U
    v_lshlrev_b32 v24, 2, v0           ; token0 = 4t
    v_sub_u32 v24, 2047, v24           ; 2047 - token0
    v_mov_b32 v25, 0
    """)
    for i in range(4):
        S1, S2, S3 = STT + i, STT + 4 + i, STT + 8 + i
        k(f"""
        v_mul_f32 v16, 0x3a800000, v{S1}        ; mean
        v_mul_f32 v17, 0x3a800000, v{S2}
        v_fma_f32 v17, -v16, v16, v17           ; var
        v_max_f32 v17, 0, v17
        """)
        round_bf16_pair(k, 16, 17, 18)
        k("v_add_f32 v17, 0x3727c5ac, v17")
        round_bf16(k, 17)
        k("v_sqrt_f32 v17, v17")
        k("s_nop 0")
        round_bf16(k, 17)
        k(f"""
        v_rcp_f32 v17, v17
        v_fma_f32 v18, -v16, v12, v{S3}
        s_nop 0
        v_mul_f32 v18, v18, v17
        v_ashrrev_i32 v19, 31, v18
        v_or_b32 v19, 0x80000000, v19
        v_xor_b32 v18, v18, v19                 ; monotonic u32
        v_and_b32 v18, 0xfffff800, v18
        v_subrev_u32 v19, {i}, v24              ; 2047 - token
        v_or_b32 v18, v18, v19
        v_max_u32 v25, v25, v18
        """)
    wave_red_u32max(k, 25, 26)
    k(f"""
    v_mov_b32 v13, s30
    ds_write_b32 v13, v25 offset:64
    s_waitcnt lgkmcnt(0)
    s_barrier
    v_mov_b32 v13, 0
    ds_read_b128 v[16:19], v13 offset:64
    ds_read_b128 v[20:23], v13 offset:80
    s_waitcnt lgkmcnt(0)
    v_max3_u32 v25, v16, v17, v18
    v_max3_u32 v25, v25, v19, v20
    v_max3_u32 v25, v25, v21, v22
    v_max_u32 v25, v25, v23
    v_and_b32 v25, 0x7ff, v25
    v_sub_u32 v25, 2047, v25           ; sel
    s_nop 0
    v_readfirstlane_b32 s68, v25
    v_lshl_add_u32 v3, v25, 11, v4
    s_mov_b32 s31, {WS_X1}
    s_cmp_lg_u32 s18, 0
    s_cbranch_scc1 moe_norow
    buffer_load_dwordx4 v[8:11], v3, s[12:15], s31 offen
    buffer_load_dwordx4 v[12:15], v3, s[12:15], s31 offen offset:1024
moe_norow:
    buffer_load_dwordx4 v[{DW}:{DW+3}], v124, s[56:59], s28 offen
    buffer_load_dwordx4 v[{DW+4}:{DW+7}], v124, s[56:59], s28 offen offset:2048
    buffer_load_dwordx4 v[{DW+8}:{DW+11}], v124, s[56:59], s29 offen
    buffer_load_dwordx4 v[{DW+12}:{DW+15}], v124, s[56:59], s29 offen offset:2048
    s_cbranch_scc1 moe_wait_h2
    s_waitcnt vmcnt(4)
    """)
    for j in range(8):
        unpack_bf16(k, 8+j, 16+2*j)
    ln_core(k, 16, 32)
    modulate(k, 16, 48, 40, 32)
    for j in range(0, 16, 2):
        round_bf16_pair(k, 16+j, 17+j, 32)
    k(f"""
    v_lshlrev_b32 v33, 5, v2
    ds_write_b128 v33, v[16:19] offset:1024
    ds_write_b128 v33, v[20:23] offset:1040
    ds_write_b128 v33, v[24:27] offset:{1024+2048}
    ds_write_b128 v33, v[28:31] offset:{1040+2048}
    s_cmp_lg_u32 s2, 0
    s_cbranch_scc1 moe_wait_h2
    """)
    for j in range(8):
        unpack_bf16(k, 56+j, 34)
        if j == 0:
            k(f"v_mul_f32 v32, v16, v34")
        else:
            k(f"v_fmac_f32 v32, v{16+2*j}, v34")
        k(f"v_fmac_f32 v32, v{17+2*j}, v35")
    wave_sum(k, 32, 33)
    round_bf16(k, 32)
    k(f"""
    v_mul_f32 v33, 0xbfb8aa3b, v32
    v_exp_f32 v33, v33
    s_nop 0
    v_add_f32 v33, 1.0, v33
    v_rcp_f32 v33, v33
    s_nop 0
    """)
    round_bf16(k, 33)
    k(f"""
    v_mov_b32 v32, s68
    v_mov_b32 v34, 0
    s_mov_b32 s31, {WS_SEL}
    buffer_store_dwordx2 v[32:33], v34, s[12:15], s31 offen
    buffer_store_dwordx4 v[8:11], v4, s[12:15], s31 offen offset:2048
    buffer_store_dwordx4 v[12:15], v4, s[12:15], s31 offen offset:3072
    """)
    for j in range(8):
        k(f"v_cvt_pk_bf16_f32 v{40+j}, v{16+2*j}, v{17+2*j}")
    k(f"""
    s_add_u32 s31, s31, 4096
    buffer_store_dwordx4 v[40:43], v4, s[12:15], s31 offen
    buffer_store_dwordx4 v[44:47], v4, s[12:15], s31 offen offset:1024
    """)
    k.label("moe_wait_h2")
    stamp(k, 2, 72, 'mstamp')
    k(f"""
    s_waitcnt lgkmcnt(0)
    s_barrier
    """)
    stamp(k, 3, 72, 'mstamp')
    k(f"""
    v_lshrrev_b32 v13, 1, v0
    v_lshlrev_b32 v13, 2, v13          ; kr*4
    ds_read_b32 v8, v13 offset:1024
    ds_read_b32 v9, v13 offset:2048
    ds_read_b32 v10, v13 offset:3072
    ds_read_b32 v11, v13 offset:4096
    s_waitcnt vmcnt(4) lgkmcnt(0)
    """)
    stamp(k, 4, 72, 'mstamp')
    AC = 16
    for mi, W in enumerate((GW, UW)):
        for i in range(4):
            for j in range(4):
                unpack_bf16(k, W + 4*i + j, 12)
                a = AC + 8*mi + 2*j
                if i == 0:
                    k(f"v_mul_f32 v{a}, v{8+i}, v12")
                    k(f"v_mul_f32 v{a+1}, v{8+i}, v13")
                else:
                    k(f"v_fmac_f32 v{a}, v{8+i}, v12")
                    k(f"v_fmac_f32 v{a+1}, v{8+i}, v13")
    TM = 32
    k("s_nop 1")
    for j in range(16):
        k(f"v_add_f32_dpp v{TM+j}, v{AC+j}, v{AC+j} quad_perm:[2,3,0,1] row_mask:0xf bank_mask:0xf")
    for j in range(16):
        k(f"v_add_f32_dpp v{AC+j}, v{TM+j}, v{TM+j} row_ror:4 row_mask:0xf bank_mask:0xf")
    for j in range(16):
        k(f"v_add_f32_dpp v{TM+j}, v{AC+j}, v{AC+j} row_ror:8 row_mask:0xf bank_mask:0xf")
    for j in range(16):
        k(f"v_mov_b32 v{AC+j}, v{TM+j}")
    k("s_nop 1")
    for j in range(16):
        k(f"v_permlane16_swap_b32 v{AC+j}, v{TM+j}")
    for j in range(16):
        k(f"v_add_f32 v{AC+j}, v{AC+j}, v{TM+j}")
    for j in range(16):
        k(f"v_mov_b32 v{TM+j}, v{AC+j}")
    k("s_nop 1")
    for j in range(16):
        k(f"v_permlane32_swap_b32 v{AC+j}, v{TM+j}")
    for j in range(16):
        k(f"v_add_f32 v{AC+j}, v{AC+j}, v{TM+j}")
    k(f"""
    s_lshl_b32 s30, s18, 7
    v_lshlrev_b32 v13, 5, v2
    v_add_u32 v13, s30, v13
    v_cmp_gt_u32 vcc, 2, v2
    s_and_saveexec_b64 s[32:33], vcc
    ds_write_b128 v13, v[16:19] offset:6144
    ds_write_b128 v13, v[20:23] offset:6160
    ds_write_b128 v13, v[24:27] offset:{6144+64}
    ds_write_b128 v13, v[28:31] offset:{6160+64}
    s_mov_b64 exec, s[32:33]
    s_waitcnt lgkmcnt(0)
    s_barrier
    v_and_b32 v13, 31, v2
    v_lshlrev_b32 v13, 2, v13
    """)
    for w in range(8):
        k(f"ds_read_b32 v{16+w}, v13 offset:{6144 + 128*w}")
    k("s_waitcnt lgkmcnt(0)")
    for w in range(1, 8):
        k(f"v_add_f32 v16, v16, v{16+w}")
    round_bf16(k, 16)
    k(f"""
    v_mul_f32 v17, 0xbfb8aa3b, v16
    v_exp_f32 v17, v17
    s_nop 0
    v_add_f32 v17, 1.0, v17
    v_rcp_f32 v17, v17
    s_nop 0
    v_mul_f32 v17, v16, v17
    """)
    round_bf16(k, 17)
    k(f"""
    v_mov_b32 v18, v16
    s_nop 1
    v_permlane16_swap_b32 v16, v18
    s_nop 0
    v_mul_f32 v17, v17, v18
    """)
    round_bf16(k, 17)
    k(f"""
    s_lshr_b32 s30, s18, 1
    s_lshl_b32 s30, s30, 2
    s_add_u32 s31, s30, 1
    s_add_u32 s34, s30, 2
    s_add_u32 s35, s30, 3
    s_nop 0
    v_readlane_b32 s64, v17, s30
    v_readlane_b32 s65, v17, s31
    v_readlane_b32 s66, v17, s34
    v_readlane_b32 s67, v17, s35
    s_waitcnt vmcnt(0)
    """)
    for i in range(4):
        for j in range(4):
            unpack_bf16(k, DW + 4*i + j, 12)
            a = AC + 2*j
            if i == 0:
                k(f"v_mul_f32 v{a}, s{64+i}, v12")
                k(f"v_mul_f32 v{a+1}, s{64+i}, v13")
            else:
                k(f"v_fmac_f32 v{a}, s{64+i}, v12")
                k(f"v_fmac_f32 v{a+1}, s{64+i}, v13")
    k(f"""
    v_lshlrev_b32 v13, 5, v0
    ds_write_b128 v13, v[16:19] offset:8192
    ds_write_b128 v13, v[20:23] offset:8208
    s_waitcnt lgkmcnt(0)
    s_barrier
    v_lshlrev_b32 v13, 3, v0           ; t*8
    ds_read_b64 v[16:17], v13 offset:8192
    ds_read_b64 v[18:19], v13 offset:{8192+4096}
    ds_read_b64 v[20:21], v13 offset:{8192+8192}
    ds_read_b64 v[22:23], v13 offset:{8192+12288}
    s_lshl_b32 s30, s2, 12
    s_add_u32 s30, s30, {WS_Y}
    s_waitcnt lgkmcnt(0)
    v_add_f32 v16, v16, v18
    v_add_f32 v17, v17, v19
    v_add_f32 v20, v20, v22
    v_add_f32 v21, v21, v23
    v_add_f32 v16, v16, v20
    v_add_f32 v17, v17, v21
    buffer_store_dwordx2 v[16:17], v13, s[12:15], s30 offen
    """)
    stamp(k, 5, 72, 'mstamp')
    if 'mstamp' in FLAGS:
        k("s_waitcnt vmcnt(0)")
        stamp(k, 6, 72, 'mstamp')
        stamp_store(k, 7, 12, 2, 18, 72, 120, 'mstamp')
    k("s_endpgm")
    k.label("moe_ln2")
    srd(k, 48, 44, 2048*1024*2)
    k(f"""
    s_sub_u32 s20, s2, {NGEMV}
    s_lshl_b32 s20, s20, 3
    s_add_u32 s20, s20, s18            ; row
    s_lshl_b32 s20, s20, 11
    s_add_u32 s21, s20, {WS_X1}
    s_mov_b32 s23, {WS_MOD + 4*2048}
    buffer_load_dwordx4 v[8:11], v4, s[12:15], s21 offen
    buffer_load_dwordx4 v[12:15], v4, s[12:15], s21 offen offset:1024
    s_mov_b32 s19, {WS_MOD + 3*2048}
    buffer_load_dwordx4 v[40:43], v4, s[12:15], s19 offen
    buffer_load_dwordx4 v[44:47], v4, s[12:15], s19 offen offset:1024
    buffer_load_dwordx4 v[48:51], v4, s[12:15], s23 offen
    buffer_load_dwordx4 v[52:55], v4, s[12:15], s23 offen offset:1024
    buffer_load_dwordx4 v[56:59], v4, s[12:15], s23 offen offset:2048
    buffer_load_dwordx4 v[60:63], v4, s[12:15], s23 offen offset:3072
    s_waitcnt vmcnt(6)
    """)
    for j in range(8):
        unpack_bf16(k, 8+j, 16+2*j)
    ln_core(k, 16, 32)
    k("s_waitcnt vmcnt(0)")
    modulate(k, 16, 48, 40, 32)
    for j in range(8):
        a, b = 16+2*j, 17+2*j
        round_bf16_pair(k, a, b, 32)
        unpack_bf16(k, 56+j, 32)
        k(f"v_mul_f32 v{a}, v{a}, v32")
        k(f"v_mul_f32 v{b}, v{b}, v33")
        round_bf16_pair(k, a, b, 32)
        unpack_bf16(k, 8+j, 32)
        k(f"v_add_f32 v{a}, v{a}, v32")
        k(f"v_add_f32 v{b}, v{b}, v33")
        k(f"v_cvt_pk_bf16_f32 v{8+j}, v{a}, v{b}")
    k(f"""
    buffer_store_dwordx4 v[8:11], v4, s[48:51], s20 offen
    buffer_store_dwordx4 v[12:15], v4, s[48:51], s20 offen offset:1024
    """)
    k.label("moe_kernel_end")
    k("s_endpgm")
    finish(k, (NGEMV + 256,1,1), (512,1,1), 8192 + 16384, 128, 102 if 'mstamp' in FLAGS else 72)

def gen_fin():
    k = K("fin_kernel")
    k(f"""
    s_cmp_ge_u32 s2, 32
    s_cbranch_scc1 fin_kernel_end
    s_load_dwordx2 s[6:7], s[0:1], {KA_WS}
    s_load_dwordx2 s[44:45], s[0:1], {KA_OUT}
    v_and_b32 v1, 31, v0               ; col
    v_lshrrev_b32 v2, 5, v0            ; pg
    v_lshlrev_b32 v3, 2, v1
    v_lshl_add_u32 v3, v2, 12, v3
    s_lshl_b32 s20, s2, 7
    s_add_u32 s20, s20, {WS_Y}
    s_lshl_b32 s22, s2, 6
    v_lshlrev_b32 v4, 1, v1
    v_add_u32 v4, s22, v4
    v_mov_b32 v5, 0
    s_waitcnt lgkmcnt(0)
    """)
    srd(k, 12, 6, WS_SIZE)
    srd(k, 48, 44, 2048*1024*2)
    k(f"""
    s_mov_b32 s23, {WS_SEL}
    s_mov_b32 s24, {WS_SEL + 4096}
    s_mov_b32 s25, {WS_MOD + 5*2048}
    buffer_load_dwordx2 v[6:7], v5, s[12:15], s23 offen
    buffer_load_ushort v8, v4, s[12:15], s23 offen offset:2048     ; x1
    buffer_load_ushort v9, v4, s[12:15], s24 offen                 ; h2
    buffer_load_ushort v10, v4, s[12:15], s25 offen                ; gb
    """)
    for i in range(28):
        k(f"buffer_load_dword v{16+i}, v3, s[12:15], s20 offen")
        k(f"s_add_u32 s20, s20, 32768")
    k("s_waitcnt vmcnt(0)")
    for i in range(1, 28):
        k(f"v_add_f32 v16, v16, v{16+i}")
    k(f"""
    v_lshlrev_b32 v11, 2, v0
    ds_write_b32 v11, v16
    s_waitcnt lgkmcnt(0)
    s_barrier
    v_lshlrev_b32 v11, 2, v1
    """)
    for w in range(8):
        k(f"ds_read_b32 v{16+w}, v11 offset:{128*w}")
    k("s_waitcnt lgkmcnt(0)")
    for w in range(1, 8):
        k(f"v_add_f32 v16, v16, v{16+w}")
    round_bf16(k, 16)
    k("v_mul_f32 v16, v16, v7")
    round_bf16(k, 16)
    k("v_lshlrev_b32 v9, 16, v9")
    k("v_add_f32 v16, v16, v9")
    round_bf16(k, 16)
    k("v_lshlrev_b32 v10, 16, v10")
    k("v_mul_f32 v16, v16, v10")
    round_bf16(k, 16)
    k(f"""
    v_lshlrev_b32 v8, 16, v8
    v_add_f32 v16, v16, v8
    v_cvt_pk_bf16_f32 v16, v16, v16
    v_and_b32 v6, 0x7ff, v6
    v_lshl_add_u32 v4, v6, 11, v4
    v_cmp_gt_u32 vcc, 32, v0
    s_and_saveexec_b64 s[28:29], vcc
    buffer_store_short v16, v4, s[48:51], 0 offen
    """)
    k.label("fin_kernel_end")
    k("s_endpgm")
    finish(k, (32,1,1), (256,1,1), 1024, 48, 56)

WS_HX  = 0x1900000
WS_YP  = WS_HX
WS_H1  = WS_HX + 0xE0000
WS_ROW = WS_HX + 0x120000
WS_KEY = WS_HX + 0x140000
HX_SIZE = 0x180000
def gen_tail():
    k = K("tail_kernel")
    NST, R = 16, 6
    SLOT = 24576
    WOFF = 8192
    TS = 'tstamp'
    L_X1 = SLOT
    L_ST = 2*SLOT
    L_MR = 2*SLOT + 8192
    L_WT = L_MR + 512
    L_H  = L_MR + 1024
    L_GU = L_H + 2048
    L_RD = L_GU + 512
    k(f"""
    s_cmp_ge_u32 s2, 256
    s_cbranch_scc1 tail_kernel_end
    """)
    stamp(k, 0, 72, TS)
    k(f"""
    s_load_dwordx2 s[4:5], s[0:1], {KA_WO}
    s_load_dwordx2 s[6:7], s[0:1], {KA_WS}
    s_load_dwordx2 s[36:37], s[0:1], {KA_X}
    s_load_dwordx2 s[38:39], s[0:1], {KA_WR}
    s_load_dwordx2 s[60:61], s[0:1], {KA_WD}
    s_load_dwordx2 s[62:63], s[0:1], {KA_OUT}
    v_lshrrev_b32 v1, 6, v0
    v_and_b32 v2, 63, v0               ; lane
    s_and_b32 s20, s2, 7               ; x
    s_lshr_b32 s21, s2, 3              ; j
    v_readfirstlane_b32 s18, v1
    s_lshr_b32 s16, s20, 1
    s_lshl_b32 s16, s16, 3
    s_and_b32 s22, s21, 7
    s_add_u32 s16, s16, s22            ; bm (0..31)
    s_and_b32 s17, s20, 1
    s_lshl_b32 s17, s17, 2
    s_lshr_b32 s22, s21, 3
    s_add_u32 s17, s17, s22            ; bn (0..7)
    s_mov_b32 s70, 0x40000
    s_mul_i32 s64, s20, 28
    s_add_u32 s64, s64, s21
    s_cmp_ge_u32 s21, 28
    s_cselect_b32 s65, 1, 0
    s_cselect_b32 s64, 0, s64
    s_waitcnt lgkmcnt(0)
    """)
    srd(k, 8, 4, 1024*1024*2)
    srd(k, 12, 6, WS_SIZE)
    srd(k, 44, 38, 2048)
    srd(k, 48, 62, 2048*1024*2)
    srd(k, 52, 60, 3584*1024*2)
    k(f"""
    s_cmp_eq_u32 s65, 0
    s_cselect_b32 s54, s54, 0
    v_lshrrev_b32 v7, 4, v2
    v_and_b32 v15, 15, v2
    v_lshlrev_b32 v15, 4, v15
    v_lshl_add_u32 v15, v7, 11, v15    ; g*2048 + n*16
    s_lshl_b32 s66, s64, 15
    s_lshl_b32 s67, s18, 8
    s_add_u32 s66, s66, s67
    s_add_u32 s67, s66, 8192
    s_add_u32 s68, s66, 16384
    s_add_u32 s69, s66, 24576
    s_cmp_ge_u32 s18, 4
    s_cbranch_scc1 tail_producer
    """)
    DW = 232
    def dw_loads():
        for jj in range(4):
            k(f"buffer_load_dwordx4 v[{DW+4*jj}:{DW+4*jj+3}], v15, s[52:55], s{66+jj} offen")
    srd(k, 40, 36, 2048*1024*2)
    X, G, U, C1P, SBP, GBP, WRR = 144, 176, 192, 208, 216, 224, 248
    XR, GA, CB = X + 16, G + 8, U + 8
    k(f"""
    v_and_b32 v3, 31, v2               ; tok
    v_lshrrev_b32 v4, 5, v2            ; hh
    v_lshlrev_b32 v5, 11, v3
    v_lshl_add_u32 v5, v4, 3, v5
    s_lshl_b32 s24, s16, 17            ; bm*64*2048
    s_lshl_b32 s25, s17, 8             ; bn*256
    s_lshl_b32 s26, s18, 6             ; w*64
    s_add_u32 s25, s25, s26
    s_add_u32 s26, s24, s25
    s_add_u32 s27, s26, 65536          ; tt=1
    v_lshlrev_b32 v6, 3, v4            ; hh*8
    s_add_u32 s28, s25, {WS_MOD + 2*2048}
    s_add_u32 s29, s25, {WS_MOD + 4*2048}
    v_lshlrev_b32 v8, 4, v2
    v_add_u32 v9, {2*SLOT}, v8
    v_add_u32 v10, {4*SLOT}, v8
    v_lshrrev_b32 v7, 2, v2
    v_and_b32 v7, 3, v7                ; r
    v_lshl_add_u32 v11, v4, 2, v7      ; 4hh + r
    v_lshlrev_b32 v11, 8, v11          ; *256
    v_xor_b32 v7, s18, v7              ; w ^ r
    v_lshl_add_u32 v11, v7, 6, v11
    v_lshrrev_b32 v7, 4, v2
    v_and_b32 v7, 1, v7                ; ng
    v_lshl_add_u32 v11, v7, 5, v11
    v_and_b32 v7, 3, v2
    v_lshl_add_u32 v11, v7, 3, v11
    v_add_u32 v11, {WOFF}, v11
    v_add_u32 v12, {2*SLOT}, v11
    v_add_u32 v13, {4*SLOT}, v11
    """)
    def param_loads():
        for tt in range(2):
            for q in range(4):
                r = XR + 8*tt + 2*q
                k(f"buffer_load_dwordx2 v[{r}:{r+1}], v5, s[40:43], s{26+tt} offen offset:{16*q}")
        for q in range(4):
            k(f"buffer_load_dwordx2 v[{GA+2*q}:{GA+2*q+1}], v6, s[12:15], s28 offen offset:{16*q}")
            k(f"buffer_load_dwordx2 v[{CB+2*q}:{CB+2*q+1}], v6, s[12:15], s29 offen offset:{16*q}")
            k(f"buffer_load_dwordx2 v[{WRR+2*q}:{WRR+2*q+1}], v6, s[44:47], s25 offen offset:{16*q}")
            k(f"buffer_load_dwordx2 v[{SBP+2*q}:{SBP+2*q+1}], v6, s[12:15], s28 offen offset:{2048+16*q}")
            k(f"buffer_load_dwordx2 v[{GBP+2*q}:{GBP+2*q+1}], v6, s[12:15], s29 offen offset:{2048+16*q}")
    PL = int(os.environ.get('TPL', '2'))
    if PL < 0: param_loads()
    ACC = 16
    SETS = [48, 96]
    for i in range(32):
        k(f"v_mov_b32 v{ACC+i}, 0")
    def reads(st, s):
        S = SETS[st]; slot = s % R
        r = []
        for ks in range(4):
            b = S + 12*ks
            base = (slot & 1)*SLOT
            r.append(f"ds_read_b64_tr_b16 v[{b+8}:{b+9}], v{11+(slot>>1)} offset:{base + ks*4096}")
            r.append(f"ds_read_b64_tr_b16 v[{b+10}:{b+11}], v{11+(slot>>1)} offset:{base + ks*4096 + 2048}")
            r.append(f"ds_read_b128 v[{b}:{b+3}], v{8+(slot>>1)} offset:{base + ks*1024}")
            r.append(f"ds_read_b128 v[{b+4}:{b+7}], v{8+(slot>>1)} offset:{base + 4096 + ks*1024}")
        return r
    def mfmas(st, last=False):
        S = SETS[st]; r = []
        order = [(ks, tt) for ks in range(4) for tt in range(2)]
        if last: order = [(ks, tt) for tt in range(2) for ks in range(4)]
        for ks, tt in order:
            b = S + 12*ks
            a = ACC + 16*tt
            r.append(f"v_mfma_f32_32x32x16_bf16 v[{a}:{a+15}], v[{b+8}:{b+11}], v[{b+4*tt}:{b+4*tt+3}], v[{a}:{a+15}]")
        return r
    mid = {s: [] for s in range(NST)}
    class L:
        def __init__(self): self.l = []
        def __call__(self, s): self.l += [x.strip() for x in s.strip("\n").split("\n")]
    a = L(); a("s_waitcnt vmcnt(0)")
    for j in range(8): unpack_bf16(a, XR+j, X+2*j)
    mid[9] = a.l
    a = L()
    for j in range(8, 16): unpack_bf16(a, XR+j, X+2*j)
    for j in range(8): unpack_bf16(a, GA+j, G+2*j)
    mid[10] = a.l
    a = L()
    for j in range(8):
        unpack_bf16(a, CB+j, U+2*j)
        a(f"v_add_f32 v{U+2*j}, 1.0, v{U+2*j}")
        a(f"v_add_f32 v{U+2*j+1}, 1.0, v{U+2*j+1}")
        a(f"v_cvt_pk_bf16_f32 v{C1P+j}, v{U+2*j}, v{U+2*j+1}")
    mid[11] = a.l
    a = L()
    for j in range(8):
        unpack_bf16(a, C1P+j, U+2*j)
        a(f"v_lshlrev_b32 v6, 16, v{WRR+j}")
        a(f"v_and_b32 v7, 0xffff0000, v{WRR+j}")
        a(f"v_mul_f32 v{U+2*j}, v{U+2*j}, v6")
        a(f"v_mul_f32 v{U+2*j+1}, v{U+2*j+1}, v7")
    mid[12] = a.l
    a = L()
    a(f"v_add_f32 v14, v{U}, v{U+1}")
    for j in range(2, 16): a(f"v_add_f32 v14, v14, v{U+j}")
    a(f"""v_lshlrev_b32 v6, 3, v3
    v_lshl_add_u32 v6, v4, 3, v6
    s_lshl_b32 s30, s18, 6
    v_add_u32 v6, s30, v6
    v_lshlrev_b32 v7, 8, v3
    v_add_u32 v7, {L_X1}, v7""")
    for q in range(4):
        a(f"v_add_u32 v{WRR+q}, {16*q}, v6")
        a(f"v_and_b32 v{WRR+q}, 255, v{WRR+q}")
        a(f"v_add_u32 v{WRR+q}, v{WRR+q}, v7")
    a(f"""s_lshl_b32 s30, s18, 11
    v_lshlrev_b32 v6, 10, v4
    v_lshl_add_u32 v6, v3, 4, v6
    v_add_u32 v{WRR+4}, s30, v6
    v_lshlrev_b32 v{WRR+5}, 3, v3
    v_lshlrev_b32 v5, 11, v3
    v_lshl_add_u32 v5, v4, 4, v5""")
    mid[13] = a.l
    k("s_barrier")
    for r in reads(0, 0):
        k(r)
    for s in range(NST):
        m = mfmas(s & 1, s == NST-1)
        k("s_waitcnt lgkmcnt(0)")
        k(m[0])
        if s + 1 < NST:
            k("s_barrier")
            rd = reads((s + 1) & 1, s + 1)
        else:
            rd = []
        ex = mid[s]; n = (len(ex) + 6)//7
        for i in range(1, 8):
            for r in rd[(i-1)*3:(i-1)*3+3]:
                k(r)
            k(m[i])
            for e in ex[(i-1)*n:i*n]: k(e)
        if s == PL: param_loads()
        if s == 9: dw_loads()
    stamp(k, 1, 72, TS)
    T = 72; PK = 48; D = 80; STT = 64
    def rnd8(base):
        for j in range(8): k(f"v_cvt_pk_bf16_f32 v{T+j}, v{base+2*j}, v{base+2*j+1}")
        for j in range(8):
            k(f"v_lshlrev_b32 v{base+2*j}, 16, v{T+j}")
            k(f"v_and_b32 v{base+2*j+1}, 0xffff0000, v{T+j}")
    def pk(op, d, a_, b_, c_=None, mods=""):
        c = f", v[{c_}:{c_+1}]" if c_ is not None else ""
        k(f"v_pk_{op}_f32 v[{d}:{d+1}], v[{a_}:{a_+1}], v[{b_}:{b_+1}]{c} {mods}")
    for tt in range(2):
        a_ = ACC + 16*tt; st = STT + 4*tt
        rnd8(a_)
        for j in range(8): pk("mul", a_+2*j, a_+2*j, G+2*j)
        rnd8(a_)
        for j in range(8): pk("add", a_+2*j, a_+2*j, X+16*tt+2*j)
        for j in range(8): k(f"v_cvt_pk_bf16_f32 v{PK+8*tt+j}, v{a_+2*j}, v{a_+2*j+1}")
        for j in range(8):
            k(f"v_lshlrev_b32 v{a_+2*j}, 16, v{PK+8*tt+j}")
            k(f"v_and_b32 v{a_+2*j+1}, 0xffff0000, v{PK+8*tt+j}")
        for q in range(4):
            k(f"ds_write_b64 v{WRR+q}, v[{PK+8*tt+2*q}:{PK+8*tt+2*q+1}] offset:{tt*8192}")
        pk("add", T, a_, a_+2); pk("add", T+2, a_+4, a_+6); pk("add", T+4, a_+8, a_+10); pk("add", T+6, a_+12, a_+14)
        pk("mul", D, a_, U); pk("mul", D+2, a_+2, U+2)
        pk("add", T, T, T+2); pk("add", T+4, T+4, T+6)
        pk("fma", D, a_+4, U+4, D); pk("fma", D+2, a_+6, U+6, D+2)
        pk("add", T, T, T+4)
        pk("fma", D, a_+8, U+8, D); pk("fma", D+2, a_+10, U+10, D+2)
        k(f"v_add_f32 v{st}, v{T}, v{T+1}")
        pk("fma", D, a_+12, U+12, D); pk("fma", D+2, a_+14, U+14, D+2)
        k(f"v_mul_f32 v{T}, 0x3d800000, v{st}")
        pk("add", D, D, D+2)
        k(f"v_mov_b32 v{st+3}, v14")
        k(f"v_add_f32 v{st+2}, v{D}, v{D+1}")
        for j in range(8): pk("add", D+2*j, a_+2*j, T, mods="op_sel_hi:[1,0] neg_lo:[0,1] neg_hi:[0,1]")
        pk("mul", T+2, D, D); pk("mul", T+4, D+2, D+2)
        for j in range(2, 8): pk("fma", T+2+2*(j & 1), D+2*j, D+2*j, T+2+2*(j & 1))
        pk("add", T+2, T+2, T+4)
        k(f"v_add_f32 v{st+1}, v{T+2}, v{T+3}")
        k(f"ds_write_b128 v{WRR+4}, v[{st}:{st+3}] offset:{L_ST + tt*512}")
    k("s_waitcnt lgkmcnt(0)")
    k("s_barrier")
    k("s_waitcnt vmcnt(0)")
    C1, SB, GB = 96, 112, 128
    for j in range(8):
        unpack_bf16(k, C1P+j, C1+2*j); unpack_bf16(k, SBP+j, SB+2*j); unpack_bf16(k, GBP+j, GB+2*j)
    k(f"v_mov_b32 v7, {L_WT}")
    k("v_add_u32 v6, 32, v3")
    k("s_barrier")
    MR = 64
    k(f"""
    ds_read_b64 v[{MR}:{MR+1}], v{WRR+5} offset:{L_MR}
    ds_read_b64 v[{MR+2}:{MR+3}], v{WRR+5} offset:{L_MR+256}
    ds_read_b32 v7, v7
    s_waitcnt lgkmcnt(0)
    v_readfirstlane_b32 s30, v7
    """)
    for tt in range(2):
        a_ = ACC + 16*tt; mr = MR + 2*tt
        for j in range(8): pk("add", D+2*j, a_+2*j, mr, mods="op_sel_hi:[1,0] neg_lo:[0,1] neg_hi:[0,1]")
        rnd8(D)
        for j in range(8): pk("mul", D+2*j, D+2*j, mr, mods="op_sel:[0,1] op_sel_hi:[1,1]")
        rnd8(D)
        for j in range(8): pk("mul", D+2*j, D+2*j, C1+2*j)
        rnd8(D)
        for j in range(8): pk("add", D+2*j, D+2*j, SB+2*j)
        rnd8(D)
        for j in range(8): pk("mul", D+2*j, D+2*j, GB+2*j)
        rnd8(D)
        for j in range(8): pk("add", D+2*j, D+2*j, a_+2*j)
        o = PK + 8*tt
        for j in range(8): k(f"v_cvt_pk_bf16_f32 v{o+j}, v{D+2*j}, v{D+2*j+1}")
        k(f"v_cmp_ne_u32 vcc, s30, v{3 if tt == 0 else 6}")
        for q in (0, 2):
            d = o + 2*q
            k(f"v_permlane32_swap_b32 v{d}, v{d+2}")
            k(f"v_permlane32_swap_b32 v{d+1}, v{d+3}")
        k("s_mov_b64 exec, vcc")
        for q in (0, 2):
            d = o + 2*q
            k(f"buffer_store_dwordx4 v[{d}:{d+3}], v5, s[48:51], s{26+tt} offen offset:{16*q}")
        k("s_mov_b64 exec, -1")
    stamp(k, 2, 72, TS)
    k(f"""
    s_mov_b32 s19, s18
    s_cmp_lg_u32 s65, 0
    s_cbranch_scc1 tail_red
    s_barrier                          ; C
    s_branch tail_down
    """)
    k.label("tail_producer")
    k(f"""
    s_sub_u32 s19, s18, 4              ; w
    v_lshlrev_b32 v8, 4, v2            ; o: lane*16
    v_lshrrev_b32 v3, 4, v2
    s_lshl_b32 s23, s19, 2
    v_add_u32 v4, s23, v3              ; 4w + row
    v_lshlrev_b32 v9, 11, v4
    v_lshrrev_b32 v5, 2, v2
    v_xor_b32 v5, v5, v3
    v_and_b32 v5, 3, v5
    v_lshl_add_u32 v9, v5, 6, v9
    v_and_b32 v5, 3, v2
    v_lshl_add_u32 v9, v5, 4, v9       ; vW
    s_lshl_b32 s25, s16, 1
    s_lshr_b32 s24, s19, 1
    s_add_u32 s25, s25, s24            ; T = 2bm + (w>>1)
    s_lshl_b32 s25, s25, 16
    s_and_b32 s24, s19, 1
    s_lshl_b32 s24, s24, 11
    s_add_u32 s25, s25, s24
    s_add_u32 s25, s25, {WS_O}
    s_lshl_b32 s26, s17, 8
    s_lshl_b32 s27, s19, 11
    s_lshl_b32 s29, s19, 10
    """)
    def issue(s):
        slot = s % R
        k(f"s_add_u32 m0, s27, {slot*SLOT}")
        k(f"s_add_u32 s28, s25, {s*4096}")
        k(f"buffer_load_dwordx4 v8, s[12:15], s28 offen lds")
        k(f"buffer_load_dwordx4 v8, s[12:15], s28 offen offset:1024 lds")
        for i in range(4):
            k(f"s_add_u32 m0, s29, {slot*SLOT + WOFF + i*4096}")
            k(f"s_add_u32 s28, s26, {(s*64 + i*16)*2048}")
            k(f"buffer_load_dwordx4 v9, s[8:11], s28 offen lds")
    for s in range(R):
        issue(s)
    srd(k, 56, 6, WS_SIZE)
    k(f"""
    s_cmp_eq_u32 s65, 0
    s_cselect_b32 s58, s58, 0
    s_lshl_b32 s30, s64, 15
    s_lshl_b32 s31, s19, 13
    s_add_u32 s30, s30, s31
    s_add_u32 s30, s30, {WS_G}
    s_mul_i32 s31, s19, 6144           ; LDS: w*6144
    v_lshlrev_b32 v10, 2, v2           ; lane*4
    s_lshl_b32 s32, s17, 8
    s_add_u32 s33, s32, {WS_MOD + 3*2048}
    s_add_u32 s34, s32, {WS_MOD + 5*2048}
    v_lshlrev_b32 v11, 5, v2           ; lane*32
    """)
    def lds_piece(p): return [4*SLOT, 5*SLOT, 0][p // 6] + (p % 6)*1024
    def gu(p):
        k(f"s_add_u32 m0, s31, {lds_piece(p)}")
        k(f"s_add_u32 s28, s30, {(p >> 3)*0x800000 + (p & 7)*1024}")
        k(f"buffer_load_dwordx4 v8, s[56:59], s28 offen lds")
    PSB, PCB, PGB, PWR = 16, 17, 18, 20
    extra = {11: 6, 12: 6, 13: 4 + 4 + 3 + 2}
    pend = [6]*R
    order = [(s, 6) for s in range(R)]
    for b in range(NST):
        idx = [i for i, (s, n) in enumerate(order) if s == b][0]
        k(f"s_waitcnt vmcnt({sum(n for _, n in order[idx+1:])})")
        k("s_barrier")
        if b >= 1 and b - 1 + R < NST:
            issue(b - 1 + R)
            order.append((b - 1 + R, 6))
        if b in extra:
            for p in range(6*(b-11), min(16, 6*(b-10))): gu(p)
            if b == 13:
                dw_loads()
                k(f"buffer_load_dword v{PSB}, v10, s[12:15], s33 offen")
                k(f"buffer_load_dword v{PCB}, v10, s[12:15], s33 offen offset:2048")
                k(f"buffer_load_dword v{PGB}, v10, s[12:15], s34 offen")
                k(f"buffer_load_dwordx4 v[{PWR}:{PWR+3}], v11, s[44:47], 0 offen")
                k(f"buffer_load_dwordx4 v[{PWR+4}:{PWR+7}], v11, s[44:47], 0 offen offset:16")
            order.append((100 + b, extra[b]))
    stamp(k, 1, 72, TS)
    GF, UF = 96, 128
    k(f"""
    v_lshrrev_b32 v4, 2, v2
    v_and_b32 v4, 3, v4
    v_lshlrev_b32 v4, 5, v4
    v_lshl_add_u32 v4, v3, 8, v4
    v_and_b32 v5, 3, v2
    v_lshl_add_u32 v4, v5, 3, v4
    v_add_u32 v4, s31, v4
    v_add_u32 v5, {4*SLOT}, v4
    s_lshl_b32 s35, s19, 9
    v_lshl_add_u32 v12, v3, 4, s35     ; h fragment: w*512 + g*16
    """)
    def frags():
        for p in range(16):
            d = (GF if p < 8 else UF) + 4*(p & 7)
            lp = lds_piece(p)
            a_, off = ("v5", lp - 4*SLOT) if lp >= 4*SLOT else ("v4", lp)
            k(f"ds_read_b64_tr_b16 v[{d}:{d+1}], {a_} offset:{off}")
            k(f"ds_read_b64_tr_b16 v[{d+2}:{d+3}], {a_} offset:{off+128}")
    k(f"""
    s_barrier                          ; A
    s_cmp_eq_u32 s18, 4
    s_cbranch_scc1 tail_lead
    s_waitcnt vmcnt(0)
    """)
    frags()
    k(f"""
    s_barrier                          ; B
    s_sub_u32 s19, s18, 1
    s_cmp_lg_u32 s65, 0
    s_cbranch_scc1 tail_red
    s_sub_u32 s19, s18, 4
    s_branch tail_gemv
    """)
    k.label("tail_lead")
    RR = 32
    for i in range(8):
        k(f"ds_read_b128 v[{RR+4*i}:{RR+4*i+3}], v8 offset:{L_ST + i*1024}")
    k(f"""
    s_lshl_b32 s36, s16, 13
    s_add_u32 s36, s36, {WS_H1}
    s_lshl_b32 s37, s17, 10
    s_add_u32 s37, s37, s36
    s_add_u32 s38, s36, 4096
    s_mov_b32 s39, -2
    s_waitcnt lgkmcnt(0)
    """)
    A0 = 64
    def combine(n):
        for c in range(4):
            k(f"v_add_f32 v{A0+c}, v{RR+c}, v{RR+4+c}")
        for i in range(2, 8):
            for c in range(4):
                k(f"v_add_f32 v{A0+c}, v{A0+c}, v{RR+4*i+c}")
        k(f"v_mul_f32 v{A0+4}, {f32bits(1.0/(8*n))}, v{A0}")
        k(f"s_mov_b32 s35, {f32bits(1.0/n)}")
        for i in range(8):
            k(f"v_fma_f32 v{RR+4*i}, v{RR+4*i}, s35, -v{A0+4}")
        k(f"v_mul_f32 v{A0+5}, v{RR}, v{RR}")
        k(f"v_mul_f32 v{A0+6}, v{RR+4}, v{RR+4}")
        for i in range(2, 8):
            k(f"v_fmac_f32 v{A0+5+(i&1)}, v{RR+4*i}, v{RR+4*i}")
        k(f"v_add_f32 v{A0+5}, v{A0+5}, v{A0+6}")
        k(f"v_fmac_f32 v{A0+1}, {f32bits(float(n))}, v{A0+5}")
    combine(16)
    for c in range(4): k(f"v_min_u32 v{A0+c}, s39, v{A0+c}")
    k(f"buffer_store_dwordx4 v[{A0}:{A0+3}], v8, s[12:15], s37 offen sc1")
    stamp(k, 2, 72, TS)
    k.label("tail_poll1")
    for i in range(8):
        k(f"buffer_load_dwordx4 v[{RR+4*i}:{RR+4*i+3}], v8, s[12:15], s{36 if i < 4 else 38} offen offset:{(i & 3)*1024} sc1")
    k("s_waitcnt vmcnt(0)")
    k(f"v_max3_u32 v{A0}, v{RR}, v{RR+1}, v{RR+2}")
    k(f"v_max3_u32 v{A0+1}, v{RR+3}, v{RR+4}, v{RR+5}")
    for i in range(6, 32, 4):
        k(f"v_max3_u32 v{A0}, v{A0}, v{RR+i}, v{RR+i+1}")
        if i + 3 < 32: k(f"v_max3_u32 v{A0+1}, v{A0+1}, v{RR+i+2}, v{RR+i+3}")
    k(f"""
    v_max_u32 v{A0}, v{A0}, v{A0+1}
    v_cmp_eq_u32 vcc, -1, v{A0}
    s_sub_u32 s70, s70, 1
    s_cbranch_scc1 tail_poll1x
    s_cbranch_vccnz tail_poll1
tail_poll1x:
    """)
    stamp(k, 3, 72, TS)
    combine(128)
    M, V = A0+4, A0+5
    k(f"v_mul_f32 v{V}, 0x3a800000, v{A0+1}")
    round_bf16_pair(k, M, V, A0+6)
    k(f"v_add_f32 v{V}, 0x3727c5ac, v{V}")
    round_bf16(k, V)
    k(f"v_sqrt_f32 v{V}, v{V}")
    k(f"v_fma_f32 v{A0+2}, -v{M}, v{A0+3}, v{A0+2}")
    round_bf16(k, V)
    k(f"""
    v_rcp_f32 v{V}, v{V}
    s_lshl_b32 s35, s16, 6
    s_sub_u32 s35, 2047, s35
    v_sub_u32 v{A0+7}, s35, v2               ; 2047 - token
    v_mul_f32 v{A0+2}, v{A0+2}, v{V}
    v_lshlrev_b32 v{A0+8}, 3, v2
    v_ashrrev_i32 v{A0+6}, 31, v{A0+2}
    v_or_b32 v{A0+6}, 0x80000000, v{A0+6}
    v_xor_b32 v{A0+2}, v{A0+2}, v{A0+6}      ; monotonic u32
    v_and_b32 v{A0+2}, 0xfffff000, v{A0+2}
    v_or_b32 v{A0+2}, v{A0+2}, v{A0+7}
    ds_write_b64 v{A0+8}, v[{M}:{M+1}] offset:{L_MR}
    """)
    wave_red_u32max(k, A0+2, A0+6)
    k(f"""
    s_lshl_b32 s35, s17, 9
    s_lshl_b32 s36, s16, 2
    s_add_u32 s35, s35, s36
    s_add_u32 s35, s35, {WS_KEY}
    v_lshlrev_b32 v{A0+6}, 7, v2
    v_readfirstlane_b32 s40, v{A0+2}
    s_mov_b64 exec, 15
    buffer_store_dword v{A0+2}, v{A0+6}, s[12:15], s35 offen sc1
    s_mov_b64 exec, -1
    s_not_b32 s41, s40
    s_and_b32 s41, s41, 63
    v_mov_b32 v{A0+6}, {L_WT}
    v_mov_b32 v{A0+7}, s41
    ds_write_b32 v{A0+6}, v{A0+7}
    s_lshl_b32 s42, s41, 3
    v_add_u32 v{A0+6}, s42, v10
    v_and_b32 v{A0+6}, 255, v{A0+6}
    s_lshl_b32 s42, s41, 8
    v_add_u32 v{A0+6}, s42, v{A0+6}
    ds_read_b32 v{A0+8}, v{A0+6} offset:{L_X1}
    v_readlane_b32 s42, v{M}, s41
    v_readlane_b32 s43, v{V}, s41
    s_waitcnt lgkmcnt(1)
    s_barrier                                ; B
    """)
    X0, P0, Q0 = A0+10, A0+12, A0+14
    unpack_bf16(k, PCB, Q0)
    k(f"v_add_f32 v{Q0}, 1.0, v{Q0}")
    k(f"v_add_f32 v{Q0+1}, 1.0, v{Q0+1}")
    round_bf16_pair(k, Q0, Q0+1, A0+6)
    k(f"""
    s_lshl_b32 s35, s16, 12
    s_add_u32 s35, s35, s32
    s_add_u32 s35, s35, {WS_ROW}
    s_waitcnt lgkmcnt(0)
    """)
    unpack_bf16(k, A0+8, X0)
    k(f"v_subrev_f32 v{P0}, s42, v{X0}")
    k(f"v_subrev_f32 v{P0+1}, s42, v{X0+1}")
    round_bf16_pair(k, P0, P0+1, A0+6)
    k(f"v_mul_f32 v{P0}, s43, v{P0}")
    k(f"v_mul_f32 v{P0+1}, s43, v{P0+1}")
    round_bf16_pair(k, P0, P0+1, A0+6)
    k(f"v_mul_f32 v{P0}, v{P0}, v{Q0}")
    k(f"v_mul_f32 v{P0+1}, v{P0+1}, v{Q0+1}")
    round_bf16_pair(k, P0, P0+1, A0+6)
    unpack_bf16(k, PSB, Q0)
    k(f"v_add_f32 v{P0}, v{P0}, v{Q0}")
    k(f"v_add_f32 v{P0+1}, v{P0+1}, v{Q0+1}")
    k(f"v_cvt_pk_bf16_f32 v{A0+9}, v{P0}, v{P0+1}")
    k(f"""
    v_min_u32 v{A0+6}, s39, v{A0+9}
    v_min_u32 v{A0+7}, s39, v{A0+8}
    buffer_store_dword v{A0+6}, v10, s[12:15], s35 offen sc1
    buffer_store_dword v{A0+7}, v10, s[12:15], s35 offen offset:2048 sc1
    """)
    unpack_bf16(k, A0+9, P0)
    unpack_bf16(k, PGB, Q0)
    k(f"v_mul_f32 v{P0}, v{P0}, v{Q0}")
    k(f"v_mul_f32 v{P0+1}, v{P0+1}, v{Q0+1}")
    round_bf16_pair(k, P0, P0+1, A0+6)
    k(f"v_add_f32 v{P0}, v{P0}, v{X0}")
    k(f"v_add_f32 v{P0+1}, v{P0+1}, v{X0+1}")
    k(f"v_cvt_pk_bf16_f32 v{A0+9}, v{P0}, v{P0+1}")
    frags()
    k(f"""
    s_and_b32 s35, s2, 31
    s_lshl_b32 s35, s35, 7
    s_add_u32 s35, s35, {WS_KEY}
    v_and_b32 v{A0+6}, 127, v10              ; (l&31)*4
    """)
    k.label("tail_poll2")
    k(f"""
    buffer_load_dword v{A0+2}, v{A0+6}, s[12:15], s35 offen sc1
    s_waitcnt vmcnt(0)
    v_cmp_eq_u32 vcc, -1, v{A0+2}
    s_sub_u32 s70, s70, 1
    s_cbranch_scc1 tail_poll2x
    s_cbranch_vccnz tail_poll2
tail_poll2x:
    """)
    stamp(k, 4, 72, TS)
    wave_red_u32max(k, A0+2, A0+7)
    HR = 32
    k(f"""
    s_nop 0
    v_readfirstlane_b32 s41, v{A0+2}
    s_not_b32 s42, s41
    s_and_b32 s42, s42, 0x7ff
    s_lshr_b32 s43, s42, 6
    s_lshl_b32 s43, s43, 12
    s_add_u32 s43, s43, {WS_ROW}
    """)
    k.label("tail_poll3")
    k(f"""
    buffer_load_dwordx4 v[{HR}:{HR+3}], v11, s[12:15], s43 offen sc1
    buffer_load_dwordx4 v[{HR+4}:{HR+7}], v11, s[12:15], s43 offen offset:16 sc1
    s_waitcnt vmcnt(0)
    v_max3_u32 v{A0+6}, v{HR}, v{HR+1}, v{HR+2}
    v_max3_u32 v{A0+7}, v{HR+3}, v{HR+4}, v{HR+5}
    v_max3_u32 v{A0+6}, v{A0+6}, v{HR+6}, v{HR+7}
    v_max_u32 v{A0+6}, v{A0+6}, v{A0+7}
    v_cmp_eq_u32 vcc, -1, v{A0+6}
    s_sub_u32 s70, s70, 1
    s_cbranch_scc1 tail_poll3x
    s_cbranch_vccnz tail_poll3
tail_poll3x:
    ds_write_b128 v11, v[{HR}:{HR+3}] offset:{L_H}
    ds_write_b128 v11, v[{HR+4}:{HR+7}] offset:{L_H+16}
    s_not_b32 s35, s40
    s_and_b32 s35, s35, 0x7ff
    s_lshl_b32 s35, s35, 11
    s_add_u32 s35, s35, s32
    s_cmp_eq_u32 s40, s41
    s_cbranch_scc1 tail_nost
    buffer_store_dword v{A0+9}, v10, s[48:51], s35 offen
    """)
    k.label("tail_nost")
    stamp(k, 5, 72, TS)
    k(f"""
    s_cmp_lg_u32 s65, 0
    s_cbranch_scc1 tail_redlead
    s_waitcnt lgkmcnt(0)
    """)
    k.label("tail_gemv")
    HF = 160
    k("s_barrier                          ; C")
    for j in range(8):
        k(f"ds_read_b128 v[{HF+4*j}:{HF+4*j+3}], v12 offset:{L_H + 64*j}")
    DG, DU = 192, 196
    for j in range(8):
        k(f"s_waitcnt lgkmcnt({7-j})")
        k(f"v_mfma_f32_16x16x32_bf16 v[{DG}:{DG+3}], v[{HF+4*j}:{HF+4*j+3}], v[{GF+4*j}:{GF+4*j+3}], {'0' if j == 0 else f'v[{DG}:{DG+3}]'}")
        k(f"v_mfma_f32_16x16x32_bf16 v[{DU}:{DU+3}], v[{HF+4*j}:{HF+4*j+3}], v[{UF+4*j}:{UF+4*j+3}], {'0' if j == 0 else f'v[{DU}:{DU+3}]'}")
    k(f"""
    s_lshl_b32 s35, s19, 7
    v_lshl_add_u32 v4, v2, 3, s35
    s_nop 7
    v_mov_b32 v{DG+1}, v{DU}
    s_mov_b64 exec, 0xffff
    ds_write_b64 v4, v[{DG}:{DG+1}] offset:{L_GU}
    s_mov_b64 exec, -1
    s_waitcnt lgkmcnt(0)
    """)
    k.label("tail_down")
    MK, AF, DD, Z = 200, 208, 204, 64
    k(f"""
    v_and_b32 v4, 3, v2
    v_lshrrev_b32 v5, 4, v2
    v_lshl_add_u32 v4, v4, 2, v5
    v_lshlrev_b32 v4, 3, v4            ; f*8
    v_and_b32 v5, 15, v2               ; m
    v_and_b32 v6, 1, v2
    v_cmp_eq_u32 vcc, 0, v6
    v_mov_b32 v6, 0xffff0000
    v_mov_b32 v7, 0xffff
    v_cndmask_b32 v6, v6, v7, vcc
    v_lshrrev_b32 v5, 1, v5
    """)
    for d in range(4):
        k(f"v_cmp_eq_u32 vcc, {d}, v5")
        k(f"v_cndmask_b32 v{MK+d}, 0, v6, vcc")
    k(f"""
    s_lshl_b32 s35, s64, 12
    s_lshl_b32 s36, s18, 9
    s_add_u32 s35, s35, s36
    s_add_u32 s35, s35, {WS_YP}
    v_and_b32 v5, 15, v2
    v_lshrrev_b32 v6, 4, v2
    v_lshlrev_b32 v5, 5, v5
    v_lshl_add_u32 v5, v6, 4, v5       ; n*32 + q*16
    s_mov_b32 s39, -2
    s_barrier                          ; D
    """)
    for w in range(4):
        k(f"ds_read_b64 v[{Z+2*w}:{Z+2*w+1}], v4 offset:{L_GU + 128*w}")
    k(f"""
    s_waitcnt lgkmcnt(0)
    v_pk_add_f32 v[{Z}:{Z+1}], v[{Z}:{Z+1}], v[{Z+2}:{Z+3}]
    v_pk_add_f32 v[{Z+4}:{Z+5}], v[{Z+4}:{Z+5}], v[{Z+6}:{Z+7}]
    v_pk_add_f32 v[{Z}:{Z+1}], v[{Z}:{Z+1}], v[{Z+4}:{Z+5}]
    """)
    round_bf16_pair(k, Z, Z+1, Z+2)
    k(f"""
    v_mul_f32 v{Z+2}, 0xbfb8aa3b, v{Z}
    v_exp_f32 v{Z+2}, v{Z+2}
    s_nop 0
    v_add_f32 v{Z+2}, 1.0, v{Z+2}
    v_rcp_f32 v{Z+2}, v{Z+2}
    s_nop 0
    v_mul_f32 v{Z}, v{Z}, v{Z+2}
    """)
    round_bf16(k, Z)
    k(f"""
    v_mul_f32 v{Z}, v{Z}, v{Z+1}
    v_cvt_pk_bf16_f32 v{Z}, v{Z}, v{Z}
    s_nop 1
    """)
    for jj in range(4):
        for d in range(4):
            k(f"v_and_b32_dpp v{AF+4*jj+d}, v{Z}, v{MK+d} quad_perm:[{jj},{jj},{jj},{jj}] row_mask:0xf bank_mask:0xf")
    k("s_nop 1")
    for jj in range(4):
        k(f"v_mfma_f32_16x16x32_bf16 v[{DD}:{DD+3}], v[{AF+4*jj}:{AF+4*jj+3}], v[{DW+4*jj}:{DW+4*jj+3}], {'0' if jj == 0 else f'v[{DD}:{DD+3}]'}")
    k("s_mov_b32 exec_hi, 0")
    k("s_nop 7")
    k("s_nop 1")
    for c in range(4): k(f"v_min_u32 v{DD+c}, s39, v{DD+c}")
    k(f"buffer_store_dwordx4 v[{DD}:{DD+3}], v5, s[12:15], s35 offen sc1")
    if TS in FLAGS:
        k("s_mov_b64 exec, -1")
        stamp(k, 6, 72, TS)
        stamp_store(k, 7, 12, 2, 18, 72, 120, TS)
    k("s_endpgm")
    k.label("tail_red")
    Y = 64
    k(f"""
    s_sub_u32 s35, s21, 28
    s_lshl_b32 s35, s35, 3
    s_add_u32 s35, s35, s20            ; c
    s_lshl_b32 s35, s35, 7
    s_lshl_b32 s36, s19, 17
    s_add_u32 s35, s35, s36
    s_add_u32 s35, s35, {WS_YP}
    s_add_u32 s36, s35, {8*4096}
    s_add_u32 s37, s35, {16*4096}
    s_add_u32 s38, s35, {24*4096}
    v_lshrrev_b32 v4, 3, v2
    v_and_b32 v5, 7, v2
    v_lshlrev_b32 v5, 4, v5
    v_lshl_add_u32 v4, v4, 12, v5
    s_lshl_b32 s39, s19, 7
    v_add_u32 v5, s39, v5
    """)
    k.label("tail_poll4")
    for i in range(4):
        k(f"buffer_load_dwordx4 v[{Y+4*i}:{Y+4*i+3}], v4, s[12:15], s{35+i} offen sc1")
    k("s_waitcnt vmcnt(0)")
    k(f"v_max3_u32 v6, v{Y}, v{Y+1}, v{Y+2}")
    k(f"v_max3_u32 v7, v{Y+3}, v{Y+4}, v{Y+5}")
    for i in range(6, 16, 4):
        k(f"v_max3_u32 v6, v6, v{Y+i}, v{Y+i+1}")
        if i + 3 < 16: k(f"v_max3_u32 v7, v7, v{Y+i+2}, v{Y+i+3}")
    k(f"""
    v_max_u32 v6, v6, v7
    v_cmp_eq_u32 vcc, -1, v6
    s_sub_u32 s70, s70, 1
    s_cbranch_scc1 tail_poll4x
    s_cbranch_vccnz tail_poll4
tail_poll4x:
    """)
    pk("add", Y, Y, Y+4); pk("add", Y+2, Y+2, Y+6); pk("add", Y+8, Y+8, Y+12); pk("add", Y+10, Y+10, Y+14)
    pk("add", Y, Y, Y+8); pk("add", Y+2, Y+2, Y+10)
    k("s_nop 1")
    for c in range(4): k(f"v_add_f32_dpp v{Y+4+c}, v{Y+c}, v{Y+c} row_ror:8 row_mask:0xf bank_mask:0xf")
    for c in range(4): k(f"v_mov_b32 v{Y+c}, v{Y+4+c}")
    k("s_nop 1")
    for c in range(4): k(f"v_permlane16_swap_b32 v{Y+c}, v{Y+4+c}")
    for c in range(4): k(f"v_add_f32 v{Y+c}, v{Y+c}, v{Y+4+c}")
    for c in range(4): k(f"v_mov_b32 v{Y+4+c}, v{Y+c}")
    k("s_nop 1")
    for c in range(4): k(f"v_permlane32_swap_b32 v{Y+c}, v{Y+4+c}")
    for c in range(4): k(f"v_add_f32 v{Y+c}, v{Y+c}, v{Y+4+c}")
    k(f"""
    s_mov_b64 exec, 0xff
    ds_write_b128 v5, v[{Y}:{Y+3}] offset:{L_RD}
    s_mov_b64 exec, -1
    s_waitcnt lgkmcnt(0)
    s_barrier                          ; E
    """)
    if TS in FLAGS:
        stamp(k, 6, 72, TS)
        stamp_store(k, 7, 12, 2, 18, 72, 120, TS)
    k("s_endpgm")
    k.label("tail_redlead")
    k(f"""
    s_sub_u32 s35, s21, 28
    s_lshl_b32 s35, s35, 3
    s_add_u32 s35, s35, s20            ; c
    s_lshl_b32 s35, s35, 6             ; c*64 bytes
    s_add_u32 s36, s35, s43
    s_add_u32 s37, s35, {WS_MOD + 5*2048}
    v_and_b32 v4, 63, v10              ; (l&15)*4
    buffer_load_dword v{A0+12}, v4, s[12:15], s37 offen
    """)
    k.label("tail_poll5")
    k(f"""
    buffer_load_dword v{A0+10}, v4, s[12:15], s36 offen sc1               ; h2 pair
    buffer_load_dword v{A0+11}, v4, s[12:15], s36 offen offset:2048 sc1   ; x1 pair
    s_waitcnt vmcnt(0)
    v_max_u32 v5, v{A0+10}, v{A0+11}
    v_cmp_eq_u32 vcc, -1, v5
    s_sub_u32 s70, s70, 1
    s_cbranch_scc1 tail_poll5x
    s_cbranch_vccnz tail_poll5
tail_poll5x:
    """)
    for j in range(8):
        unpack_bf16(k, HR+j, A0); unpack_bf16(k, PWR+j, A0+2)
        k(f"{'v_mul_f32' if j == 0 else 'v_fmac_f32'} v6, v{A0}, v{A0+2}")
        k(f"v_fmac_f32 v6, v{A0+1}, v{A0+3}")
    wave_sum(k, 6, 7)
    round_bf16(k, 6)
    k(f"""
    v_mul_f32 v7, 0xbfb8aa3b, v6
    v_exp_f32 v7, v7
    s_nop 0
    v_add_f32 v7, 1.0, v7
    v_rcp_f32 v7, v7
    s_nop 0
    """)
    round_bf16(k, 7)
    unpack_bf16(k, A0+10, A0); unpack_bf16(k, A0+11, A0+2); unpack_bf16(k, A0+12, A0+4)
    k(f"""
    v_lshlrev_b32 v5, 1, v4            ; (l&15)*8
    s_lshl_b32 s36, s42, 11
    s_add_u32 s36, s36, s35
    s_barrier                          ; E
    """)
    for w in range(7):
        k(f"ds_read_b64 v[{RR+2*w}:{RR+2*w+1}], v5 offset:{L_RD + 128*w}")
    k("s_waitcnt lgkmcnt(0)")
    pk("add", RR, RR, RR+2); pk("add", RR+4, RR+4, RR+6); pk("add", RR+8, RR+8, RR+10)
    pk("add", RR, RR, RR+4); pk("add", RR+8, RR+8, RR+12); pk("add", RR, RR, RR+8)
    round_bf16_pair(k, RR, RR+1, RR+2)
    k(f"v_mul_f32 v{RR}, v{RR}, v7"); k(f"v_mul_f32 v{RR+1}, v{RR+1}, v7")
    round_bf16_pair(k, RR, RR+1, RR+2)
    pk("add", RR, RR, A0)
    round_bf16_pair(k, RR, RR+1, RR+2)
    pk("mul", RR, RR, A0+4)
    round_bf16_pair(k, RR, RR+1, RR+2)
    pk("add", RR, RR, A0+2)
    k(f"""
    v_cvt_pk_bf16_f32 v{RR}, v{RR}, v{RR+1}
    s_mov_b64 exec, 0xffff
    buffer_store_dword v{RR}, v4, s[48:51], s36 offen
    """)
    if TS in FLAGS:
        k("s_mov_b64 exec, -1")
        stamp(k, 6, 72, TS)
        stamp_store(k, 7, 12, 2, 18, 72, 120, TS)
    k.label("tail_kernel_end")
    k("s_endpgm")
    finish(k, (256,1,1), (512,1,1), R*SLOT, 256, 102 if TS in FLAGS else 72)


def hx_reset(k, wavereg, vaddr, r):
    if 'oldtail' in FLAGS: return
    l = k.newlabel('hx')
    k(f"""
    s_cmp_ge_u32 s{wavereg}, 6
    s_cbranch_scc1 {l}
    s_mul_i32 s34, s2, 6144
    s_lshl_b32 s35, s{wavereg}, 10
    s_add_u32 s34, s34, s35
    s_add_u32 s34, s34, {WS_HX}
    v_mov_b32 v{r}, -1
    v_mov_b32 v{r+1}, -1
    v_mov_b32 v{r+2}, -1
    v_mov_b32 v{r+3}, -1
    buffer_store_dwordx4 v[{r}:{r+3}], v{vaddr}, s[12:15], s34 offen
    """)
    k.label(l)

def build():
    OLDPRE = 'q3ln' in FLAGS or 'q_v1' in FLAGS or 'q_v2' in FLAGS
    gen_mod() if OLDPRE else gen_pre5()
    if 'q_v1' in FLAGS: gen_qkv()
    else: gen_qkv3()
    gen_attn() if 'a_v1' in FLAGS else gen_attn4()
    if 'oldtail' in FLAGS:
        gen_wo()
        gen_moe()
        gen_fin()
    else:
        gen_tail()
    hdr = open("cdna_kernels/" + NAME + ".s.ref").read().split("; Override")[0]
    out = hdr
    for (name, grid, block, lds, vgpr, sgpr, agpr, text) in kernels:
        out += f"; @launch kernel={name} grid=({grid[0]},{grid[1]},{grid[2]}) block=({block[0]},{block[1]},{block[2]}) lds={lds}\n"
    out += '.amdgcn_target "amdgcn-amd-amdhsa--gfx950"\n.text\n'
    for (name, grid, block, lds, vgpr, sgpr, agpr, text) in kernels:
        out += f".globl {name}\n.p2align 8\n.type {name},@function\n{name}:\n{text}"
    out += '.section .rodata,"a"\n'
    for (name, grid, block, lds, vgpr, sgpr, agpr, text) in kernels:
        acc = (vgpr + 3)//4*4
        out += f""".p2align 6
.amdhsa_kernel {name}
  .amdhsa_next_free_vgpr {acc + agpr if agpr else vgpr}
  .amdhsa_next_free_sgpr {sgpr}
  .amdhsa_accum_offset {acc}
  .amdhsa_group_segment_fixed_size 0
  .amdhsa_kernarg_size 104
  .amdhsa_user_sgpr_count 2
  .amdhsa_user_sgpr_kernarg_segment_ptr 1
  .amdhsa_system_sgpr_workgroup_id_x 1
  .amdhsa_float_denorm_mode_32 3
.end_amdhsa_kernel
"""
    import re
    for ln in out.split("\n"):
        l = ln.split(";")[0]
        m = re.search(r"offset:(\d+)", l)
        if m and (l.strip().startswith("buffer_") or l.strip().startswith("global_")):
            assert int(m.group(1)) <= 4095, ln
        if m and l.strip().startswith("ds_"):
            assert int(m.group(1)) <= 65535, ln
    return out

if __name__ == "__main__":
    s = build()
    p = sys.argv[1] if len(sys.argv) > 1 else "cdna_kernels/" + NAME + ".s"
    open(p, "w").write(s)
    print("wrote", p, len(s))
```

```python
import sys, os
sys.path.insert(0, os.path.dirname(os.path.abspath(__file__)))
import gen as G
from gen import *

A_SLOT5 = 32768
class AR:
    Q = [8, 16]; NEGM = [24, 40]; S = [56, 72]; P = [88, 96]; O = [104, 120]; L = [136, 140]
    ONES = 144; KB = [148, 156]; VB = [164, 172]; IDX = 7

def M32(d, a, b, c): return f"v_mfma_f32_32x32x16_bf16 v[{d}:{d+15}], v[{a}:{a+3}], v[{b}:{b+3}], v[{c}:{c+15}]"
def DSR(d, a, off): return f"ds_read_b128 v[{d}:{d+3}], {a} offset:{off}"

def tile_max(k, src, d, t):
    k(f"v_max3_f32 v{d}, v{src}, v{src+1}, v{src+2}")
    for i in range(3, 15, 2):
        k(f"v_max3_f32 v{d}, v{d}, v{src+i}, v{src+i+1}")
    k(f"v_max_f32 v{d}, v{d}, v{src+15}")
    k(f"v_mov_b32 v{t}, v{d}")
    k("s_nop 1")
    k(f"v_permlane32_swap_b32 v{d}, v{t}")
    k("s_nop 0")
    k(f"v_max_f32 v{d}, v{d}, v{t}")

def attn5_consts(k, lane):
    R = AR
    k(f"""
    v_and_b32 v2, 4, v{lane}
    v_cmp_eq_u32 vcc, 0, v2
    v_mov_b32 v{R.IDX}, 0x3f803f80
    v_and_b32 v2, 2, v{lane}
    v_cndmask_b32 v{R.ONES}, 0, v{R.IDX}, vcc
    v_cndmask_b32 v{R.ONES+1}, 0, v{R.IDX}, vcc
    v_cndmask_b32 v{R.ONES+2}, v{R.IDX}, 0, vcc
    v_cndmask_b32 v{R.ONES+3}, v{R.IDX}, 0, vcc
    v_cmp_eq_u32 vcc, 0, v2
    v_mov_b32 v2, 0xeeeeeeee
    v_mov_b32 v{R.IDX}, 0x44444444
    s_nop 0
    v_cndmask_b32 v{R.IDX}, v2, v{R.IDX}, vcc
    """)
    for q in range(2):
        for i in range(16): k(f"v_mov_b32 v{R.O[q]+i}, 0")
        for i in range(4): k(f"v_mov_b32 v{R.L[q]+i}, 0")
    for i in range(8): k(f"v_mov_b32 v{R.P[1]+i}, 0")
    for i in range(8): k(f"v_mov_b32 v{R.VB[1]+i}, 0")

def attn5_compute(k, NS, LBASE, ST, pfx="attn", after_store=None):
    R = AR; SLOT = A_SLOT5
    Q, NEGM, S, P, O, L, ONES, KB, VB = R.Q, R.NEGM, R.S, R.P, R.O, R.L, R.ONES, R.KB, R.VB
    def SM(l, p): return f"v_smfmac_f32_16x16x64_bf16 v[{l}:{l+3}], v[{ONES}:{ONES+3}], v[{p}:{p+7}], v{R.IDX}"
    k(f"""
    v_add_u32 v2, {LBASE}, v5
    v_add_u32 v3, {LBASE + SLOT}, v5
    s_mov_b32 s30, {SLOT}
    s_mov_b32 s33, 0
    ds_read_b128 v[{KB[0]}:{KB[0]+3}], v2 offset:0
    ds_read_b128 v[{KB[0]+4}:{KB[0]+7}], v2 offset:1024
    ds_read_b128 v[{KB[1]}:{KB[1]+3}], v2 offset:4096
    ds_read_b128 v[{KB[1]+4}:{KB[1]+7}], v2 offset:{4096+1024}
    s_waitcnt lgkmcnt(2)
    v_mfma_f32_32x32x16_bf16 v[{S[0]}:{S[0]+15}], v[{KB[0]}:{KB[0]+3}], v[{Q[0]}:{Q[0]+3}], 0
    v_mfma_f32_32x32x16_bf16 v[{S[1]}:{S[1]+15}], v[{KB[0]}:{KB[0]+3}], v[{Q[1]}:{Q[1]+3}], 0
    v_mfma_f32_32x32x16_bf16 v[{S[0]}:{S[0]+15}], v[{KB[0]+4}:{KB[0]+7}], v[{Q[0]+4}:{Q[0]+7}], v[{S[0]}:{S[0]+15}]
    v_mfma_f32_32x32x16_bf16 v[{S[1]}:{S[1]+15}], v[{KB[0]+4}:{KB[0]+7}], v[{Q[1]+4}:{Q[1]+7}], v[{S[1]}:{S[1]+15}]
    s_nop 9
    """)
    T0 = P[0]
    tile_max(k, S[0], T0, T0+1)
    tile_max(k, S[1], T0+2, T0+3)
    for i in range(16):
        k(f"v_sub_f32 v{NEGM[1]+i}, 0, v{T0+2}")
    for i in range(16):
        k(f"v_sub_f32 v{NEGM[0]+i}, 0, v{T0}")
        k(f"v_sub_f32 v{S[0]+i}, v{S[0]+i}, v{T0}")
    k("s_waitcnt lgkmcnt(0)")
    k(".p2align 3")
    PAT = os.environ.get('APAT5', 'eeee,xxeeecc,ecece,eceec,eeecc').split(',')
    def phase(Sx, Px, mf, extra):
        e = c = 0; extra = list(extra); last = None
        assert len(mf) == len(PAT)
        for m, pat in zip(mf, PAT):
            k(m); last = 'm'
            for ch in pat:
                if ch == 'e': k(f"v_exp_f32 v{Sx+e}, v{Sx+e}"); e += 1
                elif ch == 'c':
                    assert 2*c+1 < e - (1 if last == 'e' else 0), (c, e)
                    k(f"v_cvt_pk_bf16_f32 v{Px+c}, v{Sx+2*c}, v{Sx+2*c+1}"); c += 1
                elif ch == 'x': k(extra.pop(0))
                last = ch
        assert e == 16 and c == 8 and not extra
    k.label(f"{pfx}_loop")
    for p in range(16):
        j = p >> 1; c = p & 1; n = c ^ 1
        if c == 0:
            kb = KB[j & 1]; vb = VB[(j-1) & 1]
            ex = [DSR(VB[j & 1], "v2", j*4096 + 2048), DSR(VB[j & 1]+4, "v2", j*4096 + 3072)]
            w1 = w2 = ""
        else:
            kb = KB[(j+1) & 1]; vb = VB[j & 1]
            a, off = ("v2", (j+2)*4096) if j + 2 < 8 else ("v3", (j+2-8)*4096)
            ex = [DSR(KB[j & 1], a, off), DSR(KB[j & 1]+4, a, off + 1024)]
            if p == 13: ex[0] = "s_barrier\n" + ex[0]
            w1 = "s_waitcnt lgkmcnt(2)\n"; w2 = "s_waitcnt lgkmcnt(2)\n"
        mf = [w1 + M32(S[n], kb, Q[n], NEGM[n]), M32(S[n], kb+4, Q[n]+4, S[n]),
              w2 + M32(O[n], vb, P[n], O[n]), M32(O[n], vb+4, P[n]+4, O[n]), SM(L[n], P[n])]
        phase(S[c], P[c], mf, ex)
    k(f"""
    v_mov_b32 v2, v3
    s_add_u32 s30, s30, {SLOT}
    s_cmp_ge_u32 s30, {NS*SLOT}
    s_cselect_b32 s30, 0, s30
    s_add_u32 s31, s30, {LBASE}
    v_add_u32 v3, s31, v5
    s_add_u32 s33, s33, 1
    s_cmp_lt_u32 s33, 8
    s_cbranch_scc1 {pfx}_loop
    """)
    k(M32(O[1], VB[1], P[1], O[1])); k(M32(O[1], VB[1]+4, P[1]+4, O[1])); k(SM(L[1], P[1]))
    k(f"""
    s_lshl_b32 s25, s24, 5
    s_add_u32 s25, s25, s16
    s_lshl_b32 s25, s25, 11
    s_add_u32 s25, s25, {WS_O}
    s_add_u32 s26, s25, 65536
    s_mov_b32 s34, {0 if 'forcesafe' in FLAGS else 0x4e800000}          ; 2^30
    """)
    stamp(k, 2, flag=ST)
    T = S[0]
    k(f"v_add_f32 v{L[0]}, v{L[0]}, v{L[0]+2}")
    k(f"v_mul_f32 v{T}, 0, v{O[0]}")
    for i in range(1, 16): k(f"v_fmac_f32 v{T}, 0, v{O[0]+i}")
    k(f"v_add_f32 v{T}, v{T}, v{L[0]}")
    k(f"v_add_f32 v{L[1]}, v{L[1]}, v{L[1]+2}")
    k(f"v_mul_f32 v{T+1}, 0, v{O[1]}")
    for i in range(1, 16): k(f"v_fmac_f32 v{T+1}, 0, v{O[1]+i}")
    k(f"""
    v_add_f32 v{T+1}, v{T+1}, v{L[1]}
    v_add_f32 v{T}, v{T}, v{T+1}
    v_cmp_nlt_f32 vcc, v{T}, s34
    s_nop 1
    s_cmp_lg_u64 vcc, 0
    s_cbranch_scc1 {pfx}_safe
    """)
    k.label(f"{pfx}_fin")
    k(f"v_rcp_f32 v{T}, v{L[0]}")
    k(f"v_rcp_f32 v{T+1}, v{L[1]}")
    OST = os.environ.get('OST', '')
    for q in range(2):
        for i in range(16): k(f"v_mul_f32 v{O[q]+i}, v{O[q]+i}, v{T+q}")
        for e in range(8): k(f"v_cvt_pk_bf16_f32 v{P[q]+e}, v{O[q]+2*e}, v{O[q]+2*e+1}")
        k(f"buffer_store_dwordx4 v[{P[q]}:{P[q]+3}], v5, s[12:15], s{25+q} offen {OST}")
        k(f"buffer_store_dwordx4 v[{P[q]+4}:{P[q]+7}], v5, s[12:15], s{25+q} offen offset:1024 {OST}")

def attn5_safe(k, pfx="attn", ld=""):
    R = AR
    Q, S, P, O, L, ONES, KB, VB = R.Q, R.S, R.P, R.O, R.L, R.ONES, R.KB, R.VB
    def SM(l, p): return f"v_smfmac_f32_16x16x64_bf16 v[{l}:{l+3}], v[{ONES}:{ONES+3}], v[{p}:{p+7}], v{R.IDX}"
    k.label(f"{pfx}_safe")
    M = [P[1], P[1]+1]; AL = P[1]+2; T1 = P[1]+3; T2 = P[1]+4
    PP = P[0]; SA = S[0]
    k(f"""
    s_add_u32 s27, s23, {WS_V}
    s_add_u32 s28, s23, {WS_K}
    s_mov_b32 s33, 0
    v_mov_b32 v{M[0]}, 0xff7fffff
    v_mov_b32 v{M[1]}, 0xff7fffff
    """)
    for q in range(2):
        for i in range(16): k(f"v_mov_b32 v{O[q]+i}, 0")
        for i in range(4): k(f"v_mov_b32 v{L[q]+i}, 0")
    k.label(f"{pfx}_safe_loop")
    k(f"""
    buffer_load_dwordx4 v[{KB[0]}:{KB[0]+3}], v5, s[12:15], s28 offen {ld}
    buffer_load_dwordx4 v[{KB[0]+4}:{KB[0]+7}], v5, s[12:15], s28 offen offset:1024 {ld}
    buffer_load_dwordx4 v[{VB[0]}:{VB[0]+3}], v5, s[12:15], s27 offen {ld}
    buffer_load_dwordx4 v[{VB[0]+4}:{VB[0]+7}], v5, s[12:15], s27 offen offset:1024 {ld}
    s_add_u32 s28, s28, 2048
    s_add_u32 s27, s27, 2048
    s_waitcnt vmcnt(0)
    """)
    for q in range(2):
        k(f"""
        v_mfma_f32_32x32x16_bf16 v[{SA}:{SA+15}], v[{KB[0]}:{KB[0]+3}], v[{Q[q]}:{Q[q]+3}], 0
        v_mfma_f32_32x32x16_bf16 v[{SA}:{SA+15}], v[{KB[0]+4}:{KB[0]+7}], v[{Q[q]+4}:{Q[q]+7}], v[{SA}:{SA+15}]
        s_nop 15
        s_nop 3
        """)
        tile_max(k, SA, T1, T2)
        k(f"""
        v_max_f32 v{T1}, v{T1}, v{M[q]}
        v_sub_f32 v{AL}, v{M[q]}, v{T1}
        v_exp_f32 v{AL}, v{AL}
        v_mov_b32 v{M[q]}, v{T1}
        """)
        for i in range(16): k(f"v_sub_f32 v{SA+i}, v{SA+i}, v{T1}")
        for i in range(16): k(f"v_exp_f32 v{SA+i}, v{SA+i}")
        for i in range(16): k(f"v_mul_f32 v{O[q]+i}, v{O[q]+i}, v{AL}")
        for i in range(4): k(f"v_mul_f32 v{L[q]+i}, v{L[q]+i}, v{AL}")
        for e in range(8): k(f"v_cvt_pk_bf16_f32 v{PP+e}, v{SA+2*e}, v{SA+2*e+1}")
        k("s_nop 1")
        k(M32(O[q], VB[0], PP, O[q])); k(M32(O[q], VB[0]+4, PP+4, O[q])); k(SM(L[q], PP))
        k("s_nop 15\ns_nop 3")
    k(f"""
    s_add_u32 s33, s33, 1
    s_cmp_lt_u32 s33, 64
    s_cbranch_scc1 {pfx}_safe_loop
    v_add_f32 v{L[0]}, v{L[0]}, v{L[0]+2}
    v_add_f32 v{L[1]}, v{L[1]}, v{L[1]+2}
    s_branch {pfx}_fin
    """)

def gen_attn5():
    k = K("attn_kernel")
    R = AR; SLOT = A_SLOT5; NS = int(os.environ.get('ANS', '4')); ST = 'astamp'
    k(f"""
    s_cmp_ge_u32 s2, 256
    s_cbranch_scc1 attn_kernel_end
    """)
    stamp(k, 0, flag=ST)
    k(f"""
    s_load_dwordx2 s[6:7], s[0:1], {KA_WS}
    v_lshrrev_b32 v1, 6, v0
    v_and_b32 v6, 63, v0               ; lane
    s_and_b32 s20, s2, 7               ; x
    s_lshr_b32 s21, s2, 3              ; j
    v_readfirstlane_b32 s18, v1
    s_lshr_b32 s22, s21, 3
    s_lshl_b32 s22, s22, 3
    s_add_u32 s16, s20, s22            ; head
    s_and_b32 s17, s21, 7              ; qblock
    v_lshlrev_b32 v5, 4, v6            ; lane*16
    s_lshl_b32 s23, s16, 17            ; head*64*2048
    s_waitcnt lgkmcnt(0)
    """)
    srd(k, 12, 6, WS_SIZE)
    k(f"""
    s_cmp_ge_u32 s18, 4
    s_cbranch_scc1 attn_helper
    s_lshl_b32 s24, s17, 3
    s_lshl_b32 s25, s18, 1
    s_add_u32 s24, s24, s25            ; Tq
    s_lshl_b32 s25, s24, 11
    s_add_u32 s25, s25, s23
    s_add_u32 s25, s25, {WS_Q}
    """)
    for i in range(4):
        k(f"buffer_load_dwordx4 v[{R.Q[0]+4*i}:{R.Q[0]+4*i+3}], v5, s[12:15], s25 offen offset:{1024*i}")
    attn5_consts(k, 6)
    k("s_waitcnt vmcnt(0)")
    k("s_barrier")
    if 'a_noprio' not in FLAGS: k("s_setprio 2")
    stamp(k, 1, flag=ST)
    attn5_compute(k, NS, 0, ST)
    hx_reset(k, 18, 5, R.S[1])
    if ST in FLAGS:
        k("s_waitcnt vmcnt(0)")
        stamp(k, 3, flag=ST)
        stamp_store(k, 4, 12, 2, 18, vt=200, flag=ST)
    k("s_endpgm")
    attn5_safe(k)
    k.label("attn_helper")
    k(f"""
    s_sub_u32 s19, s18, 4
    s_lshl_b32 s28, s19, 13
    s_lshl_b32 s27, s19, 12
    s_add_u32 s27, s27, s23
    s_mov_b32 s29, s17
    """)
    def dma(slot):
        k(f"""
        s_lshl_b32 s26, s29, 14
        s_add_u32 s26, s26, s27
        s_add_u32 s30, s26, {WS_K}
        s_add_u32 s31, s26, {WS_V - 2048}
        s_add_u32 m0, s28, {slot*SLOT}
        s_add_u32 s29, s29, 1
        s_and_b32 s29, s29, 7
        buffer_load_dwordx4 v5, s[12:15], s30 offen lds
        buffer_load_dwordx4 v5, s[12:15], s30 offen offset:1024 lds
        buffer_load_dwordx4 v5, s[12:15], s31 offen offset:2048 lds
        buffer_load_dwordx4 v5, s[12:15], s31 offen offset:3072 lds
        s_add_u32 m0, s28, {slot*SLOT + 4096}
        s_add_u32 s30, s30, 2048
        s_add_u32 s31, s31, 2048
        buffer_load_dwordx4 v5, s[12:15], s30 offen lds
        buffer_load_dwordx4 v5, s[12:15], s30 offen offset:1024 lds
        buffer_load_dwordx4 v5, s[12:15], s31 offen offset:2048 lds
        buffer_load_dwordx4 v5, s[12:15], s31 offen offset:3072 lds
        """)
    issued = []
    for s in range(NS): dma(s); issued.append(s)
    def wait(s):
        if s > 7: return
        k(f"s_waitcnt vmcnt({8*(len(issued) - 1 - issued.index(s))})")
    wait(0); k("s_barrier")
    for s in range(8):
        wait(s + 1)
        k("s_barrier")
        if s >= 1 and s - 1 + NS <= 7:
            dma((s - 1) % NS); issued.append(s - 1 + NS)
    hx_reset(k, 18, 5, 8)
    k.label("attn_kernel_end")
    k("s_endpgm")
    finish(k, (256,1,1), (512,1,1), NS*SLOT, 256 if ST in FLAGS else 184, 102 if ST in FLAGS else 72)


WS_PBC = 0x100000
WS_LNS = 0x280000
WS_XC2 = 0x290000
WS_FLG = 0x2A0000
F_ASLOT = 32768; F_BBASE = 3*32768; F_BSLOT = 12288
F_TAB = F_BBASE + 4*F_BSLOT
L_GP  = F_TAB
L_TB  = F_TAB + 2048
L_FL  = F_TAB + 3072
L_BC  = F_TAB + 3200
L_SC  = F_TAB + 4096
F_LDS = F_TAB + 8192
SN = 72
SREG = 76
BSC = os.environ.get('BSC', '')

def silu_bf16(k, r, t, sneg):
    k(f"""
    v_lshlrev_b32 v{r}, 16, v{r}
    v_mul_f32 v{t}, s{sneg}, v{r}
    v_exp_f32 v{t}, v{t}
    s_nop 0
    v_add_f32 v{t}, 1.0, v{t}
    v_rcp_f32 v{t}, v{t}
    s_nop 0
    v_mul_f32 v{r}, v{r}, v{t}
    v_cvt_pk_bf16_f32 v{r}, v{r}, v{r}
    v_lshlrev_b32 v{r}, 16, v{r}
    """)

def lds_spin(k, name, vaddr, off, vt, st):
    k.label(name)
    k(f"""
    ds_read_b32 v{vt}, v{vaddr} offset:{off}
    s_waitcnt lgkmcnt(0)
    v_readfirstlane_b32 s{st}, v{vt}
    s_cmp_eq_u32 s{st}, 1
    s_cbranch_scc1 {name}_go
    s_sleep 1
    s_branch {name}
    """)
    k.label(name + "_go")

def wave_sum2(k, a, ta, b, tb):
    for (m1) in ("quad_perm:[1,0,3,2]", "quad_perm:[2,3,0,1]", "row_half_mirror", "row_mirror"):
        k("s_nop 0")
        k(f"v_add_f32_dpp v{ta}, v{a}, v{a} {m1} row_mask:0xf bank_mask:0xf")
        k(f"v_add_f32_dpp v{tb}, v{b}, v{b} {m1} row_mask:0xf bank_mask:0xf")
        a, ta = ta, a; b, tb = tb, b
    for sw in ('16', '32'):
        k(f"v_mov_b32 v{ta}, v{a}")
        k(f"v_mov_b32 v{tb}, v{b}")
        k("s_nop 0")
        k(f"v_permlane{sw}_swap_b32 v{a}, v{ta}")
        k(f"v_permlane{sw}_swap_b32 v{b}, v{tb}")
        k("s_nop 0")
        k(f"v_add_f32 v{a}, v{a}, v{ta}")
        k(f"v_add_f32 v{b}, v{b}, v{tb}")

WR_, WU = 64, 80
def worker_load(k):
    k(f"""
    s_cmp_ge_u32 s32, 3
    s_cselect_b32 s34, 1, 0            ; half
    s_mul_i32 s33, s34, 3
    s_sub_u32 s32, s32, s33            ; seg
    s_mul_i32 s33, s21, {32*6144}
    s_lshl_b32 s35, s32, 11
    s_add_u32 s33, s33, s35
    s_lshl_b32 s35, s20, 8
    s_add_u32 s33, s33, s35
    s_lshl_b32 s35, s34, 7
    s_add_u32 s33, s33, s35            ; W soffset
    v_lshrrev_b32 v60, 3, v2           ; r8
    s_mov_b32 s35, 6144
    v_mul_lo_u32 v62, v60, s35
    v_and_b32 v61, 7, v2               ; c
    v_lshl_add_u32 v62, v61, 4, v62
    """)
    for i in range(4):
        k(f"buffer_load_dwordx4 v[{WR_+4*i}:{WR_+4*i+3}], v62, s[52:55], s33 offen")
        if i < 3: k(f"s_add_u32 s33, s33, {8*6144}")

def worker(k, pfx):
    U = WU
    k(f"""
    s_lshl_b32 s33, s20, 1
    s_add_u32 s33, s33, s34
    s_lshl_b32 s66, s33, 10
    s_lshl_b32 s35, s21, 5
    s_add_u32 s66, s66, s35
    s_lshl_b32 s35, s32, 3
    s_add_u32 s66, s66, s35
    s_add_u32 s66, s66, {WS_FLG}
    s_lshl_b32 s67, s33, 10
    s_mul_i32 s35, s21, {3072*16}
    s_add_u32 s67, s67, s35
    s_lshl_b32 s35, s32, 14
    s_add_u32 s67, s67, s35
    s_add_u32 s67, s67, {WS_PBC}
    s_mul_i32 s33, s33, {2*196608}
    s_lshr_b32 s35, s21, 1
    s_mul_i32 s35, s35, 12288
    s_add_u32 s33, s33, s35
    s_lshl_b32 s35, s32, 12
    s_add_u32 s33, s33, s35
    s_and_b32 s35, s21, 1
    s_lshl_b32 s35, s35, 11
    s_add_u32 s33, s33, s35
    s_add_u32 s33, s33, {WS_WQ}        ; W' soffset
    v_lshrrev_b32 v62, 2, v61
    s_mov_b32 s35, 196608
    v_mul_lo_u32 v62, v62, s35
    v_lshl_add_u32 v62, v60, 6, v62
    v_and_b32 v63, 3, v61
    v_lshl_add_u32 v62, v63, 4, v62
    v_xor_b32 v63, 32, v62             ; odd i
    v_lshlrev_b32 v59, 7, v61
    v_lshl_add_u32 v59, v60, 4, v59
    v_lshlrev_b32 v58, 4, v60
    v_add_u32 v58, {L_TB}, v58
    v_lshlrev_b32 v57, 3, v2
    v_and_b32 v56, 8, v2
    v_cmp_ne_u32 s[60:61], 0, v56
    s_cmp_eq_u32 s32, 2
    s_cselect_b32 s62, 3, 1
    s_mov_b32 s63, 0
    """)
    for i in range(16): unpack_bf16(k, WR_+i, U+2*i)
    lds_spin(k, pfx + "_w1", 19, 0, 56, 22)
    C1_, SA_ = 112, 116; BA, CA, TT = 120, 128, 136; R0 = 144
    k(f"""
    ds_read_b128 v[{C1_}:{C1_+3}], v58 offset:128
    ds_read_b128 v[{SA_}:{SA_+3}], v58
    ds_read_b64 v[{R0+2}:{R0+3}], v19 offset:8
    s_waitcnt lgkmcnt(2)
    """)
    for i in range(4):
        for j in range(8): k(f"v_mul_f32 v{TT+j}, v{C1_+i}, v{U+8*i+j}")
        for j in range(4): k(f"v_cvt_pk_bf16_f32 v{WR_+4*i+j}, v{TT+2*j}, v{TT+2*j+1}")
        k(f"buffer_store_dwordx4 v[{WR_+4*i}:{WR_+4*i+3}], v{62+(i&1)}, s[12:15], s33 offen offset:{512*i} sc1")
    k("s_waitcnt lgkmcnt(0)")
    for i in range(4):
        for j in range(8): k(f"{'v_mul_f32' if i == 0 else 'v_fmac_f32'} v{BA+j}, v{SA_+i}, v{U+8*i+j}")
    for i in range(4):
        if i == 0:
            for j in range(4): unpack_bf16(k, WR_+j, CA+2*j)
        else:
            for j in range(4): unpack_bf16(k, WR_+4*i+j, TT+2*j)
            for j in range(8): k(f"v_add_f32 v{CA+j}, v{CA+j}, v{TT+j}")
    k("s_nop 0")
    for base in (BA, CA):
        for j in range(4): k(f"v_permlane32_swap_b32 v{base+j}, v{base+j+4}")
    for base in (BA, CA):
        for j in range(4): k(f"v_add_f32 v{base+j}, v{base+j}, v{base+j+4}")
    k("s_nop 0")
    for base in (BA, CA):
        for j in range(2): k(f"v_permlane16_swap_b32 v{base+j}, v{base+j+2}")
    k("s_nop 0")
    for base in (BA, CA):
        for j in range(2): k(f"v_add_f32 v{base+j}, v{base+j}, v{base+j+2}")
    k("s_nop 0")
    for q, base in enumerate((BA, CA)):
        for j in range(2): k(f"v_add_f32_dpp v{TT+2*q+j}, v{base+j}, v{base+j} row_ror:8 row_mask:0xf bank_mask:0xf")
    k(f"""
    v_cndmask_b32 v{R0}, v{TT}, v{TT+1}, s[60:61]
    v_cndmask_b32 v{R0+1}, v{TT+2}, v{TT+3}, s[60:61]
    v_readfirstlane_b32 s{SN}, v{R0+2}
    v_readfirstlane_b32 s{SN+1}, v{R0+3}
    s_waitcnt vmcnt(0)
    s_mov_b64 exec, s[62:63]
    buffer_store_dwordx2 v[{R0+2}:{R0+3}], v57, s[12:15], s66 offen sc1
    s_mov_b64 exec, -1
    buffer_store_dwordx4 v[{R0}:{R0+3}], v59, s[12:15], s67 offen sc1
    """)

def front_body(k, ST, fused=False):
    NST = 16
    A_SLOT, B_BASE, B_SLOT = F_ASLOT, F_BBASE, F_BSLOT
    PB = 0x40000
    hm = int(os.environ.get('HMAP', '0'))
    lt = {0: 3, 1: 0, 2: 1, 3: 2}[hm]
    k(f"""
    s_load_dwordx2 s[4:5], s[0:1], {KA_C}
    s_load_dwordx2 s[6:7], s[0:1], {KA_WMOD}
    s_load_dwordx2 s[8:9], s[0:1], {KA_DBG}
    s_load_dwordx2 s[10:11], s[0:1], {KA_WS}
    s_load_dwordx4 s[36:39], s[0:1], {KA_X}      ; x, wqkv
    s_memrealtime s[56:57]
    v_lshrrev_b32 v1, 6, v0         ; wave
    v_and_b32 v2, 63, v0            ; lane
    v_lshlrev_b32 v5, 4, v2         ; lane*16
    v_readfirstlane_b32 s18, v1
    s_and_b32 s20, s2, 7            ; x / member
    s_lshr_b32 s21, s2, 3           ; j / group
    s_lshr_b32 s22, s21, {lt}
    s_lshl_b32 s22, s22, {lt}
    s_and_b32 s23, s20, {(1 << lt) - 1}
    s_add_u32 s16, s22, s23         ; head
    s_and_b32 s17, s21, {(1 << lt) - 1}
    s_lshr_b32 s23, s20, {lt}
    s_lshl_b32 s23, s23, {lt}
    s_add_u32 s17, s17, s23
    s_lshl_b32 s22, s20, 7          ; 128 * member
    v_lshrrev_b32 v3, 2, v2
    v_and_b32 v3, 7, v3
    v_lshl_add_u32 v3, v1, 5, v3
    v_add_u32 v3, s22, v3           ; row = 128j + 32w + ((l>>2)&7)  (+8q)
    s_mov_b32 s22, 12288
    v_mul_lo_u32 v7, v3, s22
    v_lshrrev_b32 v4, 5, v2
    v_lshl_add_u32 v7, v4, 11, v7   ; + slab*2048
    v_and_b32 v4, 3, v2
    v_lshl_add_u32 v7, v4, 4, v7    ; + (l&3)*16
    v_lshlrev_b32 v6, 1, v3         ; c offset
    s_lshl_b32 s23, s21, 6          ; g*64
    s_add_u32 s24, s23, {8*12288}
    s_add_u32 s25, s23, {16*12288}
    s_add_u32 s26, s23, {24*12288}
    s_mov_b32 s70, {PB}
    v_mov_b32 v19, {L_FL}
    v_mov_b32 v10, 0
    v_mov_b32 v11, 0
    s_waitcnt lgkmcnt(0)
    """)
    def st_(i): stamp(k, i, sreg=SREG, flag=ST)
    st_(0)
    srd(k, 12, 10, WS_SIZE)
    srd(k, 52, 38, 1024*3072*2)
    k(f"""
    s_cmp_ge_u32 s18, 4
    s_cbranch_scc1 fr_helper
    """)
    srd(k, 28, 8, 256)
    k(f"""
    s_and_b32 s22, s2, 31
    s_or_b32 s22, s22, s18
    s_cmp_lg_u32 s22, 0
    s_cbranch_scc1 fr_n0
    s_or_b32 s56, s56, 1
    v_mov_b32 v8, s56
    v_mov_b32 v9, s57
    s_mov_b64 exec, 1
    buffer_atomic_cmpswap_x2 v[8:11], v10, s[28:31], 0 offen sc1
    s_mov_b64 exec, -1
fr_n0:
    """)
    srd(k, 44, 6, 1024*6144*2)
    srd(k, 40, 4, 2048)
    for q in range(4): k(f"buffer_load_dwordx4 v[{24+4*q}:{27+4*q}], v7, s[44:47], s{23+q} offen")
    for q in range(4): k(f"buffer_load_ushort v{20+q}, v6, s[40:43], 0 offen offset:{16*q}")
    k(f"""
    s_cmp_lg_u32 s18, 0
    s_cbranch_scc1 fr_n1
    ds_write_b64 v19, v[10:11]
    buffer_load_dwordx2 v[12:13], v10, s[28:31], 0 offen sc1
    s_sleep 8
    buffer_load_dwordx2 v[14:15], v10, s[28:31], 0 offen sc1
    s_sleep 8
    buffer_load_dwordx2 v[16:17], v10, s[28:31], 0 offen sc1
    s_waitcnt vmcnt(0)
    s_branch fr_n2
fr_n1:
    s_sub_u32 s32, s18, 1
    """)
    worker_load(k)
    k(f"""
    s_waitcnt vmcnt(4)
fr_n2:
    s_mov_b32 s22, 0xbfb8aa3b      ; -log2(e)
    """)
    ls = []
    for q in range(4):
        kk = K("t"); silu_bf16(kk, 20+q, 40+q, 22); ls.append(kk.lines)
    for xs in zip(*ls):
        if 's_nop' in xs[0]: continue
        k.lines.extend(xs)
    A = 40; T = 48
    for q in range(4):
        for j in range(4):
            k(f"v_lshlrev_b32 v{T+2*j}, 16, v{24+4*q+j}")
            k(f"v_and_b32 v{T+2*j+1}, 0xffff0000, v{24+4*q+j}")
        for j in range(8): k(f"{'v_mul_f32' if q == 0 else 'v_fmac_f32'} v{A+j}, v{20+q}, v{T+j}")
    k("s_nop 1")
    for j in range(8): k(f"v_add_f32_dpp v{T+j}, v{A+j}, v{A+j} row_ror:4 row_mask:0xf bank_mask:0xf")
    for j in range(8): k(f"v_add_f32_dpp v{A+j}, v{T+j}, v{T+j} row_ror:8 row_mask:0xf bank_mask:0xf")
    for j in range(8): k(f"v_mov_b32 v{T+j}, v{A+j}")
    k("s_nop 1")
    for j in range(8): k(f"v_permlane16_swap_b32 v{A+j}, v{T+j}")
    for j in range(8): k(f"v_add_f32 v{A+j}, v{A+j}, v{T+j}")
    k(f"""
    v_lshrrev_b32 v4, 5, v2
    v_lshlrev_b32 v3, 8, v1
    v_lshl_add_u32 v3, v4, 7, v3
    v_and_b32 v4, 3, v2
    v_lshl_add_u32 v3, v4, 5, v3
    v_add_u32 v3, {L_GP}, v3
    s_mov_b32 s22, 15
    s_mov_b32 s23, 15
    s_mov_b64 exec, s[22:23]
    ds_write_b128 v3, v[{A}:{A+3}]
    ds_write_b128 v3, v[{A+4}:{A+7}] offset:16
    s_mov_b64 exec, -1
    s_cmp_lg_u32 s18, 0
    s_cbranch_scc1 fr_bias
    v_or3_b32 v8, v12, v14, v16
    v_or3_b32 v9, v13, v15, v17
    v_lshlrev_b32 v3, 2, v2
    v_add_u32 v3, {L_GP}, v3
    s_lshl_b32 s22, s21, 12
    s_add_u32 s22, s22, {WS_XCH}
    s_lshl_b32 s23, s20, 9
    s_add_u32 s23, s23, s22
    v_lshlrev_b32 v4, 3, v2
    v_lshrrev_b32 v6, 4, v2
    v_and_b32 v6, 1, v6
    v_lshlrev_b32 v6, 7, v6
    v_and_b32 v7, 3, v2
    v_lshl_add_u32 v6, v7, 5, v6
    v_lshrrev_b32 v7, 2, v2
    v_and_b32 v7, 3, v7
    v_lshl_add_u32 v6, v7, 2, v6
    v_add_u32 v6, {L_TB}, v6
    s_lshr_b32 s24, s16, 1
    s_lshl_b32 s24, s24, 10
    s_add_u32 s24, s24, {WS_FLG}
    v_and_b32 v7, 16, v2
    v_cmp_ne_u32 s[62:63], 0, v7
    s_waitcnt lgkmcnt(0)
    s_barrier                          ; #1
    """)
    st_(1)
    for j in range(4): k(f"ds_read_b32 v{56+j}, v3 offset:{256*j}")
    k(f"""
fr_np:
    s_waitcnt vmcnt(0)
    v_readfirstlane_b32 s{SN}, v8
    v_readfirstlane_b32 s{SN+1}, v9
    s_cmp_lg_u32 s{SN}, 0
    s_cbranch_scc1 fr_npx
    buffer_load_dwordx2 v[8:9], v10, s[28:31], 0 offen sc1
    s_sub_u32 s70, s70, 1
    s_cbranch_scc0 fr_np
fr_npx:
    v_mov_b32 v34, s{SN}
    v_mov_b32 v35, s{SN+1}
    s_waitcnt lgkmcnt(0)
    v_add_f32 v56, v56, v57
    v_add_f32 v58, v58, v59
    v_add_f32 v56, v56, v58
    v_mov_b32 v32, v56
    s_nop 1
    v_mov_b32_dpp v33, v56 quad_perm:[1,0,3,2] row_mask:0xf bank_mask:0xf
    s_mov_b32 s60, 0x55555555
    s_mov_b32 s61, 0x55555555
    s_mov_b64 exec, s[60:61]
    buffer_store_dwordx4 v[32:35], v4, s[12:15], s23 offen sc1
    s_mov_b64 exec, -1
    ds_write_b64 v19, v[34:35] offset:8
fr_poll1:
    buffer_load_dwordx4 v[40:43], v5, s[12:15], s22 offen sc1
    buffer_load_dwordx4 v[44:47], v5, s[12:15], s22 offen offset:1024 sc1
    buffer_load_dwordx4 v[48:51], v5, s[12:15], s22 offen offset:2048 sc1
    buffer_load_dwordx4 v[52:55], v5, s[12:15], s22 offen offset:3072 sc1
    s_waitcnt vmcnt(0)
    v_xor_b32 v36, v42, v34
    v_xor_b32 v37, v43, v35
    v_xor_b32 v38, v46, v34
    v_xor_b32 v39, v47, v35
    v_or3_b32 v36, v36, v37, v38
    v_xor_b32 v37, v50, v34
    v_xor_b32 v38, v51, v35
    v_or3_b32 v36, v36, v39, v37
    v_xor_b32 v37, v54, v34
    v_xor_b32 v39, v55, v35
    v_or3_b32 v36, v36, v38, v37
    v_or_b32 v36, v36, v39
    v_cmp_ne_u32 vcc, 0, v36
    s_sub_u32 s70, s70, 1
    s_cbranch_scc1 fr_poll1x
    s_cbranch_vccnz fr_poll1
fr_poll1x:
    v_add_f32 v16, v40, v44
    v_add_f32 v17, v41, v45
    v_add_f32 v24, v48, v52
    v_add_f32 v25, v49, v53
    v_add_f32 v16, v16, v24
    v_add_f32 v17, v17, v25
    v_mov_b32 v18, v16
    v_mov_b32 v21, v17
    s_nop 1
    v_permlane32_swap_b32 v16, v18
    v_permlane32_swap_b32 v17, v21
    s_nop 0
    v_add_f32 v16, v16, v18
    v_add_f32 v17, v17, v21
    v_cvt_pk_bf16_f32 v20, v16, v17
    v_lshlrev_b32 v16, 16, v20
    v_and_b32 v17, 0xffff0000, v20
    v_add_f32 v32, 1.0, v16
    v_add_f32 v33, 1.0, v17
    v_cvt_pk_bf16_f32 v33, v32, v33
    v_lshlrev_b32 v32, 16, v33
    v_and_b32 v33, 0xffff0000, v33
    v_cndmask_b32 v16, v16, v32, s[62:63]
    v_cndmask_b32 v17, v17, v33, s[62:63]
    v_mov_b32 v21, 1
    ds_write_b32 v6, v16
    ds_write_b32 v6, v17 offset:16
    s_waitcnt lgkmcnt(0)
    ds_write_b32 v19, v21              ; F1
    """)
    st_(2)
    k(f"""
    s_sleep {os.environ.get('FSL', '16')}
fr_poll2:
    buffer_load_dwordx4 v[40:43], v5, s[12:15], s24 offen sc1
    s_waitcnt vmcnt(0)
    v_xor_b32 v40, v40, v34
    v_xor_b32 v41, v41, v35
    v_xor_b32 v42, v42, v34
    v_xor_b32 v43, v43, v35
    v_or3_b32 v40, v40, v41, v42
    v_or_b32 v40, v40, v43
    v_cmp_ne_u32 vcc, 0, v40
    s_sub_u32 s70, s70, 1
    s_cbranch_scc1 fr_poll2x
    s_cbranch_vccnz fr_poll2
fr_poll2x:
    ds_write_b32 v19, v21 offset:4     ; F2
    s_branch fr_cons
    ; ================= waves 1..3 =================
fr_bias:
    s_waitcnt lgkmcnt(0)
    s_barrier                          ; #1
    s_waitcnt vmcnt(0)
    """)
    worker(k, "fr_c")
    k.label("fr_cons")
    k(f"""
    s_lshl_b32 s24, s18, 13            ; w*64*128
    v_and_b32 v3, 15, v2               ; n
    v_lshrrev_b32 v4, 4, v2            ; g
    v_lshrrev_b32 v6, 1, v3            ; f = n>>1
    v_xor_b32 v6, v6, v4               ; g ^ f
    v_lshlrev_b32 v6, 4, v6
    v_lshl_add_u32 v6, v3, 7, v6
    v_add_u32 v8, s24, v6
    v_xor_b32 v9, 64, v8               ; ks=1
    v_add_u32 v10, {2*A_SLOT}, v8      ; slots 2/3
    v_add_u32 v11, {2*A_SLOT}, v9
    v_lshrrev_b32 v6, 2, v2
    v_and_b32 v6, 3, v6                ; r
    v_lshl_add_u32 v6, v4, 3, v6       ; 8g + r
    v_lshlrev_b32 v6, 6, v6            ; *64
    v_and_b32 v7, 1, v4                ; g&1
    v_lshl_add_u32 v6, v7, 5, v6
    v_and_b32 v7, 3, v2                ; c
    v_lshl_add_u32 v6, v7, 3, v6
    v_add_u32 v12, {B_BASE}, v6        ; jj0
    v_xor_b32 v13, 32, v12             ; jj1
    """)
    AS = [20, 60]; BS = [36, 76]; ACC = 100
    MD, MC, MA, MT, MX = 196, 228, 232, 240, 248
    RM = not fused and 'x_norm' not in FLAGS
    if RM:
        k(f"""
        s_lshl_b32 s29, s20, 7
        s_lshl_b32 s30, s18, 5
        s_add_u32 s29, s29, s30            ; row0
        s_lshl_b32 s28, s29, 1             ; c soffset
        v_lshlrev_b32 v16, 4, v4           ; c voffset: q*16
        s_mov_b32 s30, {8*12288}
        v_mul_lo_u32 v17, v4, s30
        v_lshl_add_u32 v17, v3, 4, v17
        v_lshlrev_b32 v18, 5, v3
        s_mul_i32 s29, s29, 12288
        s_lshl_b32 s30, s21, 8
        s_add_u32 s29, s29, s30
        s_add_u32 s29, s29, 4096
        s_lshl_b32 s31, s20, 2
        s_add_u32 s31, s31, s18
        s_lshl_b32 s31, s31, 14
        s_lshl_b32 s30, s21, 9
        s_add_u32 s31, s31, s30
        s_add_u32 s31, s31, {WS_PM}
        s_mov_b32 s30, 0xbfb8aa3b          ; -log2(e)
        """)
    k(f"""
    s_lshl_b32 s24, s18, 10
    v_lshl_add_u32 v14, v3, 4, s24
    v_add_u32 v14, {L_SC}, v14
    s_lshl_b32 s24, s18, 8
    v_lshl_add_u32 v15, v4, 4, s24
    v_add_u32 v15, {L_GP}, v15
    v_lshlrev_b32 v19, 4, v4
    v_add_u32 v19, {L_BC}, v19         ; bias (q/k): g*16 (+ f*64)
    v_lshlrev_b32 v7, 2, v3
    v_add_u32 v7, {L_BC}, v7           ; bias (v): n*4
    """)
    for i in range(96): k(f"v_mov_b32 v{ACC+i}, 0")
    lg = []; done = [-1]
    def ds(tag, txt):
        lg.append(tag); k(txt)
    def need(tags):
        idx = max(i for i, t in enumerate(lg) if t in tags)
        if idx <= done[0]: return
        n = min(15, len(lg) - 1 - idx)
        done[0] = len(lg) - 1 - n
        k(f"s_waitcnt lgkmcnt({n})")
    NSTEP = 2*NST
    def rd(n):
        st, ks = divmod(n, 2)
        slot = st % 3
        A = AS[n & 1]; B = BS[n & 1]
        ra = []; rb = []
        for i in range(4):
            ra.append((('A', n, i), f"ds_read_b128 v[{A+4*i}:{A+4*i+3}], v{8+ks+2*(slot>>1)} offset:{(slot&1)*A_SLOT + i*2048}"))
        for f in range(6):
            for j in range(2):
                d = B + 4*f + 2*j
                seg, jj = divmod(f, 2)
                rb.append((('B', n, f), f"ds_read_b64_tr_b16 v[{d}:{d+1}], v{12+jj} offset:{(st&3)*B_SLOT + seg*4096 + ks*2048 + j*256}"))
        return [ra[0]] + rb[0:2] + ra[1:4] + rb[2:12]
    def mfs(n):
        A = AS[n & 1]; B = BS[n & 1]
        r = []
        for f in range(6):
            for i in (range(4) if f % 2 == 0 else range(3, -1, -1)):
                a = ACC + 4*(4*f + i)
                W = f"v[{B+4*f}:{B+4*f+3}]"; H = f"v[{A+4*i}:{A+4*i+3}]"
                x, y = (W, H) if f < 4 else (H, W)
                r.append(([('A', n, i), ('B', n, f)], f"v_mfma_f32_16x16x32_bf16 v[{a}:{a+3}], {x}, {y}, v[{a}:{a+3}]"))
        return r
    k("s_waitcnt lgkmcnt(0)")
    if 'noprio' not in FLAGS: k("s_setprio " + os.environ.get('CPRIO', '3'))
    k("s_barrier")
    st_(3)
    for t, x in rd(0): ds(t, x)
    fill = []
    if RM:
        k(f"buffer_load_dwordx4 v[{MC}:{MC+3}], v16, s[40:43], s28 offen")
        for i in range(8):
            k(f"buffer_load_dwordx4 v[{MD+4*i}:{MD+4*i+3}], v17, s[44:47], s29 offen")
            k(f"s_add_u32 s29, s29, 12288")
        fill.append("s_waitcnt vmcnt(0)")
        for j in range(4):
            fill.append(f"v_lshlrev_b32 v{MT+2*j}, 16, v{MC+j}")
            fill.append(f"v_and_b32 v{MT+2*j+1}, 0xffff0000, v{MC+j}")
        for i in range(8): fill.append(f"v_mul_f32 v{MA+i}, s30, v{MT+i}")
        for i in range(8): fill.append(f"v_exp_f32 v{MA+i}, v{MA+i}")
        for i in range(8): fill.append(f"v_add_f32 v{MA+i}, 1.0, v{MA+i}")
        for i in range(8): fill.append(f"v_rcp_f32 v{MA+i}, v{MA+i}")
        for i in range(8): fill.append(f"v_mul_f32 v{MT+i}, v{MT+i}, v{MA+i}")
        for i in range(8): fill.append(f"v_cvt_pk_bf16_f32 v{MT+i}, v{MT+i}, v{MT+i}")
        for i in range(8): fill.append(f"v_lshlrev_b32 v{MT+i}, 16, v{MT+i}")
        for i in range(8):
            for j in range(4):
                src = MD + 4*i + j
                op = 'v_mul_f32' if i == 0 else 'v_fmac_f32'
                fill.append(f"v_lshlrev_b32 v{MX}, 16, v{src}")
                fill.append(f"v_and_b32 v{MX+1}, 0xffff0000, v{src}")
                fill.append(f"{op} v{MA+2*j}, v{MT+i}, v{MX}")
                fill.append(f"{op} v{MA+2*j+1}, v{MT+i}, v{MX+1}")
        for sw in ('16', '32'):
            for j in range(8): fill.append(f"v_mov_b32 v{MT+j}, v{MA+j}")
            for j in range(8): fill.append(f"v_permlane{sw}_swap_b32 v{MA+j}, v{MT+j}")
            for j in range(8): fill.append(f"v_add_f32 v{MA+j}, v{MA+j}, v{MT+j}")
        fill.append(f"""s_mov_b64 exec, 0xffff
        buffer_store_dwordx4 v[{MA}:{MA+3}], v18, s[12:15], s31 offen
        buffer_store_dwordx4 v[{MA+4}:{MA+7}], v18, s[12:15], s31 offen offset:16
        s_mov_b64 exec, -1""")
    FILL0 = 10
    STQ, BQ, CQ = 196, 212, 228
    NMV, SDV, BV = 196, 212, 228
    RSQ, RSV = 244, 196
    def accof(idx):
        f, i = divmod(idx, 4)
        if f % 2: i = 3 - i
        return f, i, ACC + 4*(4*f + i)
    pre = {}
    pre[25] = [(('P', 0, i), f"ds_read_b128 v[{STQ+4*i}:{STQ+4*i+3}], v14 offset:{256*i}") for i in range(4)]
    pre[26] = [(('P', 1, f), f"ds_read_b128 v[{BQ+4*f}:{BQ+4*f+3}], v19 offset:{64*f}") for f in range(4)] + \
              [(('P', 2, f), f"ds_read_b128 v[{CQ+4*f}:{CQ+4*f+3}], v19 offset:{384 + 64*f}") for f in range(4)]
    pre[29] = [(('P', 3, i), f"ds_read_b128 v[{NMV+4*i}:{NMV+4*i+3}], v15 offset:{64*i}") for i in range(4)] + \
              [(('P', 5, 0), f"ds_read2_b32 v[{BV}:{BV+1}], v7 offset0:64 offset1:80")]
    pre[30] = []
    for n in range(NSTEP):
        st, ks = divmod(n, 2)
        R = rd(n + 1) if n + 1 < NSTEP else []
        M = mfs(n)
        bnd = (ks == 1 and n + 1 < NSTEP)
        plan = [0, 0, 0] + [1]*16 + [0]*5 if bnd else [1]*16 + [0]*8
        bpos = 3
        PR = list(pre.get(n, []))
        for i in range(24):
            if bnd and i == bpos:
                need([t for t in lg if t[1] == n and t[0] != 'P'])
                k("s_barrier")
            need(M[i][0])
            k(M[i][1])
            for _ in range(plan[i]):
                if R:
                    t, x = R.pop(0); ds(t, x)
            for _ in range(1 if plan[i] else 2):
                if n >= FILL0 and fill: k(fill.pop(0))
            if PR and i >= (19 if bnd else 16):
                assert not fill
                t, x = PR.pop(0); ds(t, x)
            if n in (27, 28):
                f, ii, a = accof((i - 10) % 24)
                if f < 4:
                    need([('P', 0, ii), ('P', 1, f), ('P', 2, f)])
                    for e in range(2*(n - 27), 2*(n - 27) + 2):
                        k(f"v_fmac_f32 v{a+e}, v{BQ+4*f+e}, v{STQ+4*ii+1}")
                        k(f"v_fmac_f32 v{a+e}, v{CQ+4*f+e}, v{STQ+4*ii}")
                elif n == 28:
                    j = 4*(f - 4) + ii
                    k(f"v_mov_b32 v{RSQ+j}, v{STQ + 4*(j & 3) + 3 - (j >> 2)}")
            if n == 29 and i < 5:
                if i < 4: ds(('P', 4, i), f"ds_read_b128 v[{SDV+4*i}:{SDV+4*i+3}], v15 offset:{1024 + 64*i}")
                else: ds(('P', 6, 0), f"ds_read2_b32 v[{BV+2}:{BV+3}], v7 offset0:160 offset1:176")
            if n == 30:
                f, ii, a = accof((i - 10) % 24)
                if f >= 4:
                    need([('P', 3, ii), ('P', 4, ii), ('P', 5, 0), ('P', 6, 0)])
                    for e in range(4):
                        k(f"v_fmac_f32 v{a+e}, v{BV+f-4}, v{SDV+4*ii+e}")
                        k(f"v_fmac_f32 v{a+e}, v{BV+2+f-4}, v{NMV+4*ii+e}")
            if n == 31 and 2 <= i < 6:
                q = i - 2
                ds(('P', 7, q), f"ds_read_b128 v[{RSV+4*q}:{RSV+4*q+3}], v15 offset:{2048 + 64*q}")
        assert not R and not PR
    st_(4)
    return dict(ACC=ACC, RSQ=RSQ, RSV=RSV)


def front_epi_global(k, R, sc=""):
    ACC, RSQ, RSV = R['ACC'], R['RSQ'], R['RSV']
    k(f"""
    s_lshl_b32 s26, s16, 17
    s_lshl_b32 s27, s17, 3
    s_lshl_b32 s25, s18, 1
    s_add_u32 s27, s27, s25            ; T0 = 8tb + 2w
    s_lshl_b32 s27, s27, 11
    s_add_u32 s26, s26, s27
    s_add_u32 s28, s26, {WS_Q}
    s_add_u32 s29, s26, {WS_K}
    s_add_u32 s30, s26, {WS_V}
    v_and_b32 v8, 7, v3
    v_lshrrev_b32 v6, 3, v3
    v_lshl_add_u32 v8, v6, 4, v8       ; (n&7) + 16(n>>3)
    v_lshl_add_u32 v8, v4, 5, v8       ; + g*32
    v_lshlrev_b32 v8, 4, v8
    v_lshl_add_u32 v6, v4, 5, v3       ; g*32 + n
    v_lshlrev_b32 v6, 4, v6
    """)
    cnt = 0
    for seg in (1, 0):
        for i in range(4):
            a0 = ACC + 4*(4*(2*seg) + i); a1 = ACC + 4*(4*(2*seg+1) + i)
            for e in range(4):
                k(f"v_mul_f32 v{a0+e}, v{RSQ+4*seg+i}, v{a0+e}")
                k(f"v_mul_f32 v{a1+e}, v{RSQ+4*seg+i}, v{a1+e}")
            d = 20 + 4*cnt; cnt += 1
            k(f"v_cvt_pk_bf16_f32 v{d}, v{a0}, v{a0+1}")
            k(f"v_cvt_pk_bf16_f32 v{d+1}, v{a0+2}, v{a0+3}")
            k(f"v_cvt_pk_bf16_f32 v{d+2}, v{a1}, v{a1+1}")
            k(f"v_cvt_pk_bf16_f32 v{d+3}, v{a1+2}, v{a1+3}")
            k(f"buffer_store_dwordx4 v[{d}:{d+3}], v8, s[12:15], s{28+seg} offen offset:{(i>>1)*2048 + (i&1)*128} {sc}")
        if seg == 1:
            k("s_waitcnt lgkmcnt(0)")
            for jj in range(2):
                for T in range(2):
                    a0 = ACC + 4*(4*(4+jj) + 2*T); a1 = a0 + 4
                    for e in range(8): k(f"v_mul_f32 v{a0+e}, v{RSV+8*T+e}, v{a0+e}")
                    d = 20 + 4*cnt; cnt += 1
                    k(f"v_cvt_pk_bf16_f32 v{d}, v{a0}, v{a0+1}")
                    k(f"v_cvt_pk_bf16_f32 v{d+1}, v{a0+2}, v{a0+3}")
                    k(f"v_cvt_pk_bf16_f32 v{d+2}, v{a1}, v{a1+1}")
                    k(f"v_cvt_pk_bf16_f32 v{d+3}, v{a1+2}, v{a1+3}")
                    k(f"buffer_store_dwordx4 v[{d}:{d+3}], v6, s[12:15], s30 offen offset:{T*2048 + jj*256} {sc}")

def front_helper(k, ST, fused=False):
    NST = 16
    A_SLOT, B_BASE, B_SLOT = F_ASLOT, F_BBASE, F_BSLOT
    def st_(i): stamp(k, i, sreg=SREG, flag=ST)
    VA = 200; XR = 208; X0 = 160; X1 = 176; TT = 192
    NT = 14; GATE = int(os.environ.get('FGATE', '0'))
    k.label("fr_helper")
    srd(k, 48, 36, 2048*1024*2)
    k(f"""
    s_sub_u32 s19, s18, 4              ; h
    s_cmp_eq_u32 s19, 0
    s_cbranch_scc1 fr_h0
    s_add_u32 s32, s19, 2              ; u = 3..5
    """)
    worker_load(k)
    k(f"""
fr_h0:
    v_lshrrev_b32 v3, 3, v2
    v_lshrrev_b32 v4, 4, v2
    v_and_b32 v6, 7, v2
    v_xor_b32 v7, v6, v4
    v_lshlrev_b32 v7, 4, v7
    v_lshl_add_u32 v8, v3, 11, v7
    v_xor_b32 v9, 64, v8
    s_lshl_b32 s25, s17, 19
    s_lshl_b32 s26, s19, 17
    s_add_u32 s25, s25, s26
    s_lshl_b32 s27, s19, 13            ; LDS: h*8192
    """)
    for p in range(8):
        k(f"v_add_u32 v{VA+p}, {(32*(p>>2) + 16*(p&1) + 8*((p>>1)&1))*2048 - (p&3)*1024}, v{8+(p&1)}")
    vm = []
    def wait(tags, kinds):
        idx = max(i for i, t in enumerate(vm) if t in tags)
        n = sum(1 for t in vm[idx+1:] if t[0] in kinds)
        k(f"s_waitcnt vmcnt({min(63, n)})")
    def adma(s):
        k(f"s_add_u32 s28, s25, {s*128}")
        for p in range(8):
            if p % 4 == 0:
                k(f"s_add_u32 m0, s27, {(s % 3)*A_SLOT + p*1024}")
                k("s_nop 0")
            k(f"buffer_load_dwordx4 v{VA+p}, s[48:51], s28 offen offset:{(p&3)*1024} lds")
        vm.extend([('A', s)]*8)
    def bdma(s):
        k(f"s_add_u32 m0, s45, {(s & 3)*B_SLOT}")
        k(f"s_add_u32 s28, s26, {s*12288}")
        for t in range(3):
            k(f"buffer_load_dwordx4 v5, s[12:15], s28 offen offset:{t*1024} lds {BSC}")
        vm.extend([('B', s)]*3)
    if GATE: k("s_barrier")
    adma(0)
    k(f"""
    s_lshl_b32 s40, s2, 3
    s_lshl_b32 s41, s19, 1
    s_add_u32 s40, s40, s41
    s_lshl_b32 s41, s40, 11
    buffer_load_dwordx4 v[{XR}:{XR+3}], v5, s[48:51], s41 offen
    buffer_load_dwordx4 v[{XR+4}:{XR+7}], v5, s[48:51], s41 offen offset:1024
    buffer_load_dwordx4 v[{XR+8}:{XR+11}], v5, s[48:51], s41 offen offset:2048
    buffer_load_dwordx4 v[{XR+12}:{XR+15}], v5, s[48:51], s41 offen offset:3072
    """)
    adma(1); adma(2)
    k(f"""
    s_lshl_b32 s40, s40, 4
    s_add_u32 s40, s40, {WS_LNS}
    s_lshr_b32 s41, s25, 7
    s_add_u32 s41, s41, {WS_LNS}
    s_mov_b32 s22, 49152
    v_mul_lo_u32 v16, v3, s22
    v_lshl_add_u32 v16, v6, 4, v16
    s_mul_i32 s22, s19, 96
    s_add_u32 s22, s22, {L_BC}
    v_lshl_add_u32 v18, v6, 2, s22
    v_and_b32 v17, 0x27, v2
    v_and_b32 v6, 8, v2
    v_lshl_or_b32 v17, v6, 1, v17
    v_and_b32 v6, 16, v2
    v_lshrrev_b32 v6, 1, v6
    v_or_b32 v17, v17, v6
    v_lshlrev_b32 v17, 4, v17
    s_mul_i32 s45, s19, 3072
    s_mul_i32 s26, s16, 196608
    s_add_u32 s26, s26, s45
    s_add_u32 s26, s26, {WS_WQ}
    s_add_u32 s45, s45, {B_BASE}
    s_lshl_b32 s22, s19, 10
    v_add_u32 v6, s22, v5
    v_add_u32 v6, {L_SC}, v6
    s_lshl_b32 s22, s19, 8
    v_lshl_add_u32 v7, v2, 2, s22
    v_add_u32 v7, {L_GP}, v7
    """)
    for t in range(3):
        k(f"""
        s_mul_i32 s22, s19, 3
        s_add_u32 s22, s22, {t}            ; cb
        s_lshr_b32 s23, s22, 2
        s_lshl_b32 s23, s23, 14
        s_and_b32 s22, s22, 3
        s_lshl_b32 s22, s22, 7
        s_add_u32 s22, s22, s23
        s_lshl_b32 s23, s16, 9
        s_add_u32 s22, s22, s23
        s_add_u32 s{42+t}, s22, {WS_PBC}
        """)
    if not GATE: k("s_barrier")
    k("s_waitcnt vmcnt(0)")
    st_(1)
    k(f"""
    s_cmp_eq_u32 s19, 0
    s_cbranch_scc1 fr_hln
    """)
    worker(k, "fr_h")
    k.label("fr_hln")
    for j in range(16): unpack_bf16(k, XR+j, X0+2*j)
    S0, U0, S1, U1, M0, M1 = TT, TT+1, TT+2, TT+3, TT+4, TT+5
    k(f"v_add_f32 v{S0}, v{X0}, v{X0+1}"); k(f"v_add_f32 v{S1}, v{X1}, v{X1+1}")
    for i in range(2, 16):
        k(f"v_add_f32 v{S0}, v{S0}, v{X0+i}"); k(f"v_add_f32 v{S1}, v{S1}, v{X1+i}")
    k("s_nop 0")
    wave_sum2(k, S0, U0, S1, U1)
    k(f"v_mul_f32 v{M0}, 0x3a800000, v{S0}"); k(f"v_mul_f32 v{M1}, 0x3a800000, v{S1}")
    for i in range(16):
        k(f"v_sub_f32 v{X0+i}, v{X0+i}, v{M0}"); k(f"v_sub_f32 v{X1+i}, v{X1+i}, v{M1}")
    for i in range(16):
        op = 'v_mul_f32' if i == 0 else 'v_fmac_f32'
        k(f"{op} v{S0}, v{X0+i}, v{X0+i}"); k(f"{op} v{S1}, v{X1+i}, v{X1+i}")
    k("s_nop 0")
    wave_sum2(k, S0, U0, S1, U1)
    RC = 20
    k(f"""
    v_cmp_eq_u32 vcc, 1, v2
    v_cndmask_b32 v{RC}, v{M0}, v{M1}, vcc
    v_cndmask_b32 v{RC+1}, v{S0}, v{S1}, vcc
    v_mul_f32 v{RC+1}, 0x3a800000, v{RC+1}
    v_cvt_pk_bf16_f32 v{RC+2}, v{RC}, v{RC+1}
    v_lshlrev_b32 v{RC}, 16, v{RC+2}
    v_and_b32 v{RC+1}, 0xffff0000, v{RC+2}
    v_add_f32 v{RC+1}, 0x3727c5ac, v{RC+1}
    v_cvt_pk_bf16_f32 v{RC+1}, v{RC+1}, v{RC+1}
    v_lshlrev_b32 v{RC+1}, 16, v{RC+1}
    v_sqrt_f32 v{RC+1}, v{RC+1}
    v_xor_b32 v{RC}, 0x80000000, v{RC}
    v_cvt_pk_bf16_f32 v{RC+1}, v{RC+1}, v{RC+1}
    v_lshlrev_b32 v{RC+1}, 16, v{RC+1}
    """)
    lds_spin(k, "fr_h1", 19, 0, 3, 22)
    k(f"""
    ds_read_b64 v[{NT}:{NT+1}], v19 offset:8
    s_waitcnt lgkmcnt(0)
    v_mov_b32 v{RC+2}, v{NT}
    v_mov_b32 v{RC+3}, v{NT+1}
    v_readfirstlane_b32 s{SN}, v{NT}
    v_readfirstlane_b32 s{SN+1}, v{NT+1}
    s_mov_b64 exec, 3
    buffer_store_dwordx4 v[{RC}:{RC+3}], v5, s[12:15], s40 offen sc1
    s_mov_b64 exec, -1
    """)
    lds_spin(k, "fr_h2", 19, 4, 3, 22)
    st_(2)
    for s in range(4): bdma(s)
    GR = 64
    def gl(i):
        if i < 12:
            t, gb = divmod(i, 4)
            k(f"s_add_u32 s28, s{42+t}, {gb*8*49152}")
            k(f"buffer_load_dwordx4 v[{GR+4*i}:{GR+4*i+3}], v16, s[12:15], s28 offen sc1")
        else:
            k(f"buffer_load_dwordx4 v[{GR+48}:{GR+51}], v17, s[12:15], s41 offen sc1")
    GB = int(os.environ.get('FGB', '3')); GC = int(os.environ.get('FGC', '11')); GN = int(os.environ.get('FGN', '3'))
    gi = 0
    for b in range(NST):
        wait([('A', b), ('B', b)], 'AB')
        if b == GC + 1: k("s_waitcnt lgkmcnt(0)")
        k("s_barrier")
        if b == 0: st_(3)
        if b >= 1 and b + 2 < NST: adma(b + 2)
        if b >= 1 and b + 3 < NST: bdma(b + 3)
        if b >= GB and 'x_nog' not in FLAGS:
            for _ in range(GN):
                if gi < 13: gl(gi); vm.append(('G', 0)); gi += 1
        if b == GC and 'x_nog' not in FLAGS:
            assert gi == 13
            gidx = max(i for i, t in enumerate(vm) if t[0] == 'G')
            k(f"s_waitcnt vmcnt({len(vm) - 1 - gidx})")
            k.label("fr_gchk")
            for i in range(13):
                k(f"v_xor_b32 v{GR+4*i+2}, v{GR+4*i+2}, v{NT}")
                k(f"v_xor_b32 v{GR+4*i+3}, v{GR+4*i+3}, v{NT+1}")
            k(f"v_or_b32 v24, v{GR+2}, v{GR+3}")
            k(f"v_or_b32 v25, v{GR+6}, v{GR+7}")
            for i in range(2, 13):
                k(f"v_or3_b32 v{24+(i&1)}, v{24+(i&1)}, v{GR+4*i+2}, v{GR+4*i+3}")
            k(f"""
            v_or_b32 v24, v24, v25
            v_cmp_ne_u32 vcc, 0, v24
            s_sub_u32 s70, s70, 1
            s_cbranch_scc1 fr_gok
            s_cbranch_vccz fr_gok
            s_waitcnt vmcnt(0)
            """)
            for i in range(13): gl(i)
            k("s_waitcnt vmcnt(0)\ns_branch fr_gchk")
            k.label("fr_gok")
            P0 = 24; Q0 = 32
            for t in range(3):
                for q in range(2):
                    r = GR + 16*t + q
                    k(f"v_add_f32 v{P0+2*t+q}, v{r}, v{r+4}")
                    k(f"v_add_f32 v{Q0+2*t+q}, v{r+8}, v{r+12}")
            for j in range(6): k(f"v_add_f32 v{Q0+j}, v{P0+j}, v{Q0+j}")
            L = GR + 48
            k(f"v_rcp_f32 v{L+2}, v{L+1}")
            k(f"s_mov_b32 s22, {f32bits(QK_SCALE)}")
            for j in range(6): k(f"v_add_f32_dpp v{P0+j}, v{Q0+j}, v{Q0+j} row_ror:8 row_mask:0xf bank_mask:0xf")
            k(f"v_mul_f32 v{L+3}, s22, v{L+2}")
            for sw in ('16', '32'):
                for j in range(6): k(f"v_mov_b32 v{Q0+j}, v{P0+j}")
                for j in range(6): k(f"v_permlane{sw}_swap_b32 v{P0+j}, v{Q0+j}")
                for j in range(6): k(f"v_add_f32 v{P0+j}, v{P0+j}, v{Q0+j}")
            k(f"""
            ds_write_b128 v6, v[{L}:{L+3}]
            ds_write_b32 v7, v{L}
            ds_write_b32 v7, v{L+1} offset:1024
            ds_write_b32 v7, v{L+2} offset:2048
            s_mov_b64 exec, 0xff
            """)
            for t in range(3):
                k(f"ds_write_b32 v18, v{P0+2*t} offset:{32*t}")
                k(f"ds_write_b32 v18, v{P0+2*t+1} offset:{384 + 32*t}")
            k("s_mov_b64 exec, -1")
    st_(4)

def gen_front():
    k = K("qkv_kernel")
    ST = 'frstamp'
    k("""
    s_cmp_ge_u32 s2, 256
    s_cbranch_scc1 qkv_kernel_end
    """)
    R = front_body(k, ST)
    front_epi_global(k, R)
    if ST in FLAGS:
        k("s_waitcnt vmcnt(0)")
        stamp(k, 5, sreg=SREG, flag=ST)
        stamp_store(k, 6, 12, 2, 18, sreg=SREG, vt=8, flag=ST)
    k("s_endpgm")
    front_helper(k, ST)
    stamp_store(k, 6, 12, 2, 18, sreg=SREG, vt=8, flag='fhstamp')
    if ST in FLAGS:
        stamp(k, 5, sreg=SREG, flag=ST)
        stamp_store(k, 6, 12, 2, 18, sreg=SREG, vt=8, flag=ST)
    k.label("qkv_kernel_end")
    k("s_endpgm")
    finish(k, (256,1,1), (512,1,1), F_LDS, 256, 102)

if __name__ == "__main__":
    if 'a5' in FLAGS:
        G.gen_attn4 = gen_attn5
    if 'fr' in FLAGS:
        G.gen_pre5 = gen_front
        G.gen_qkv3 = lambda: None
    s = G.build()
    p = sys.argv[1]
    open(p, "w").write(s)
    print("wrote", p, len(s))
```
